```python
import torch

def _softmax(x, axis=-1):
    return torch.softmax(x, dim=axis)
def _gelu(x):
    return torch.nn.functional.gelu(x, approximate="tanh")
def _silu(x):
    return torch.nn.functional.silu(x)
def _sigmoid(x):
    return torch.sigmoid(x)
def _layernorm(x, axis=-1, eps=1e-5):
    m = x.mean(dim=axis, keepdim=True)
    v = x.var(dim=axis, keepdim=True, unbiased=False)
    return (x - m) / torch.sqrt(v + eps)
def _scatter_add(tgt, idx, src, axis=0):
    return tgt.clone().index_add_(axis, idx, src)
def _segment_sum(src, seg, n):
    out = torch.zeros((n,) + src.shape[1:], dtype=src.dtype)
    return out.index_add_(0, seg, src)
def _pad(x, pw):
    flat = tuple(v for pair in reversed(pw) for v in pair)
    return torch.nn.functional.pad(x, flat)

kernel_name = 'concat_heads__mha_block_cached__mha_block_cached__near_ridge'

def setup_inputs():

    _w = (lambda a: (lambda t: t.to(torch.bfloat16) if t.is_floating_point() else t)(torch.as_tensor(a)))
    def _A_setup():
        B, Sq, D = 16, 160, 640
        H, Sk, Dh = 32, 1024, 128
        return {
            "x": _w((lambda *s: torch.randn(*s, dtype=torch.bfloat16) * 0.8)(B, Sq, D)),
            "k_cache": _w((lambda *s: torch.randn(*s, dtype=torch.bfloat16) * 0.8)(B, H, Sk, Dh)),
            "v_cache": _w((lambda *s: torch.randn(*s, dtype=torch.bfloat16) * 0.05)(B, H, Sk, Dh)),
            "wq": _w((lambda *s: torch.randn(*s, dtype=torch.bfloat16) * 0.8)(D, H * Dh) * (D ** -0.5)),
            "wo": _w((lambda *s: torch.randn(*s, dtype=torch.bfloat16) * 0.05)(H * Dh, D) * ((H * Dh) ** -0.5)),
        }
    _A_in = _A_setup()

    def _B_setup():
        B, Sq, D = 16, 160, 640
        H, Sk, Dh = 32, 1024, 128
        return {
            "x": _w((lambda *s: torch.randn(*s, dtype=torch.bfloat16) * 0.8)(B, Sq, D)),
            "k_cache": _w((lambda *s: torch.randn(*s, dtype=torch.bfloat16) * 0.8)(B, H, Sk, Dh)),
            "v_cache": _w((lambda *s: torch.randn(*s, dtype=torch.bfloat16) * 0.05)(B, H, Sk, Dh)),
            "wq": _w((lambda *s: torch.randn(*s, dtype=torch.bfloat16) * 0.8)(D, H * Dh) * (D ** -0.5)),
            "wo": _w((lambda *s: torch.randn(*s, dtype=torch.bfloat16) * 0.05)(H * Dh, D) * ((H * Dh) ** -0.5)),
        }
    _B_in = _B_setup()

    return {
        "A_x": _A_in["x"],
        "A_k_cache": _A_in["k_cache"],
        "A_v_cache": _A_in["v_cache"],
        "A_wq": _A_in["wq"],
        "A_wo": _A_in["wo"],
        "B_x": _B_in["x"],
        "B_k_cache": _B_in["k_cache"],
        "B_v_cache": _B_in["v_cache"],
        "B_wq": _B_in["wq"],
        "B_wo": _B_in["wo"],
    }

def reference(A_x, A_k_cache, A_v_cache, A_wq, A_wo, B_x, B_k_cache, B_v_cache, B_wq, B_wo):
    def _A_ref(x, k_cache, v_cache, wq, wo):
        B, Sq, D = x.shape
        H, Dh = 32, 128
        q = (lambda x, *d: x.permute(*d))((x @ wq).reshape(B, Sq, H, Dh), 0, 2, 1, 3)
        scores = torch.einsum("bhqd,bhkd->bhqk", q, k_cache) * (Dh ** -0.5)
        p = _softmax(scores, axis=-1)
        o = torch.einsum("bhqk,bhkd->bhqd", p, v_cache)
        return (lambda x, *d: x.permute(*d))(o, 0, 2, 1, 3).reshape(B, Sq, H * Dh) @ wo

    def _B_ref(x, k_cache, v_cache, wq, wo):
        B, Sq, D = x.shape
        H, Dh = 32, 128
        q = (lambda x, *d: x.permute(*d))((x @ wq).reshape(B, Sq, H, Dh), 0, 2, 1, 3)
        scores = torch.einsum("bhqd,bhkd->bhqk", q, k_cache) * (Dh ** -0.5)
        p = _softmax(scores, axis=-1)
        o = torch.einsum("bhqk,bhkd->bhqd", p, v_cache)
        return (lambda x, *d: x.permute(*d))(o, 0, 2, 1, 3).reshape(B, Sq, H * Dh) @ wo

    a = _A_ref(A_x, A_k_cache, A_v_cache, A_wq, A_wo)
    b = _B_ref(B_x, B_k_cache, B_v_cache, B_wq, B_wo)
    return torch.concatenate([a, b], axis=-1)
```

```python
import re

class I:
    __slots__ = ("text", "kind", "rd", "wr", "tag", "info", "time")
    def __init__(self, text, kind, rd=(), wr=(), tag=None, info=None):
        self.text = text; self.kind = kind
        self.rd = tuple(rd); self.wr = tuple(wr)
        self.tag = tag; self.info = info; self.time = None
    def __repr__(self):
        return self.text

def regs(prefix, base, n):
    return [f"{prefix}{base+i}" for i in range(n)]

def rng(prefix, base, n):
    if n == 1:
        return f"{prefix}{base}"
    return f"{prefix}[{base}:{base+n-1}]"

class R:
    def __init__(self, p, b, n):
        self.p = p; self.b = b; self.n = n
    def __str__(self):
        return rng(self.p, self.b, self.n)
    def regs(self):
        return regs(self.p, self.b, self.n)
    def sub(self, o, n):
        assert o + n <= self.n
        return R(self.p, self.b + o, n)

def V(b, n=1): return R("v", b, n)
def A(b, n=1): return R("a", b, n)

def mfma16(d, a, b, c):
    rd = a.regs() + b.regs()
    if c != 0:
        rd += c.regs()
    ct = "0" if c == 0 else str(c)
    return I(f"v_mfma_f32_16x16x32_bf16 {d}, {a}, {b}, {ct}", "mfma", rd, d.regs(), info=dict(c=(c != 0), cregs=(c.regs() if c != 0 else [])))

def valu(text, rd, wr, trans=False):
    return I(text, "trans" if trans else "valu", rd, wr)

def salu(text, rd=(), wr=()):
    return I(text, "salu", rd, wr)

def ds_read(op, d, addr, off, tag=None):
    return I(f"{op} {d}, {addr} offset:{off}", "lds", addr.regs(), d.regs(), tag=tag)

def nop(n=0):
    return I(f"s_nop {n}", "nop", info=n)

def label(name):
    return I(f"{name}:", "label")

def raw(text, kind="salu"):
    return I(text, kind)


def insert_lgkm_waits(stream, lat=0, timekey=None):
    out = []
    q = []
    nm = 0
    for ins in stream:
        if ins.kind == "wait" and ins.info == "lgkm0":
            q = []
            out.append(ins); continue
        touched = set(ins.rd) | set(ins.wr)
        need = -1
        for k, (rs, t) in enumerate(q):
            if rs & touched:
                need = k
        if need >= 0:
            if lat:
                while need + 1 < len(q) and nm - q[need + 1][1] >= lat:
                    need += 1
            n = len(q) - need - 1
            assert n <= 15, "lgkmcnt overflow"
            out.append(I(f"s_waitcnt lgkmcnt({n})", "wait", info="auto"))
            q = q[need + 1:]
        if ins.kind == "lds":
            if ins.wr:
                q.append((set(ins.wr), nm))
            else:
                q.append((set(), nm))
            assert len(q) <= 15, f"too many outstanding lds ops at {ins.text}"
        if ins.kind == "mfma":
            nm += 1
        out.append(ins)
    return out


def resolve_vm_waits(stream, ignore=()):
    ops = []
    for ins in stream:
        if ins.kind in ("dma", "vmem"):
            if isinstance(ins.tag, tuple) and ins.tag[0] in ignore:
                continue
            ops.append(ins.tag)
        elif ins.kind == "wait" and isinstance(ins.info, tuple) and ins.info[0] == "vm":
            tags = ins.info[1]
            last = -1
            for k, t in enumerate(ops):
                if t in tags:
                    last = k
            missing = [t for t in tags if t not in ops]
            if missing and not (len(ins.info) > 3 and ins.info[3] == "optional"):
                raise Exception(f"vm wait for never-issued tags {missing}")
            n = len(ops) - last - 1
            if len(ins.info) > 2 and ins.info[2] is not None:
                n = min(n, ins.info[2])
            assert n <= 63
            extra = " lgkmcnt(0)" if "lgkmcnt(0)" in ins.text else ""
            ins.text = f"s_waitcnt vmcnt({n}){extra}"
    return stream


def check_hazards(stream, name="", fix=False):
    errs = []
    outs = []
    pos = 0
    last_mfma_wr = {}
    last_valu_wr = {}
    last_trans_wr = {}
    last_mfma_c = {}
    last_m0 = -100
    last_sgpr_valu = {}
    for ins in stream:
        if ins.kind == "label":
            outs.append(ins)
            continue
        k = ins.kind
        if fix:
            need = 0
            def deficit(tbl, r, req):
                return (req - (pos - tbl[r] - 1)) if r in tbl else 0
            if k in ("valu", "trans"):
                for r in list(ins.rd) + list(ins.wr): need = max(need, deficit(last_mfma_wr, r, 8))
                for r in ins.wr: need = max(need, deficit(last_mfma_c, r, 3))
                if k == "valu":
                    for r in ins.rd: need = max(need, deficit(last_trans_wr, r, 1))
                if "permlane" in ins.text:
                    for r in ins.rd: need = max(need, deficit(last_valu_wr, r, 2))
                if "readfirstlane" in ins.text or "readlane" in ins.text:
                    for r in ins.rd: need = max(need, deficit(last_valu_wr, r, 1))
                for r in ins.rd: need = max(need, deficit(last_sgpr_valu, r, 2))
            if k == "mfma":
                cregs = set(ins.info["cregs"])
                for r in ins.rd:
                    need = max(need, deficit(last_valu_wr, r, 2))
                    if not (r in cregs and r in ins.wr): need = max(need, deficit(last_mfma_wr, r, 8))
            if k in ("lds", "vmem", "dma"):
                for r in list(ins.rd) + list(ins.wr): need = max(need, deficit(last_mfma_wr, r, 8))
                if k in ("vmem", "dma"):
                    for r in ins.rd: need = max(need, deficit(last_sgpr_valu, r, 5))
            if k == "dma": need = max(need, 1 - (pos - last_m0 - 1))
            if need > 0:
                outs.append(nop(need - 1)); pos += need
                errs.append(f"{name}: inserted s_nop {need-1} before '{ins.text}'")
        if k in ("valu", "trans"):
            for r in list(ins.rd) + list(ins.wr):
                if r in last_mfma_wr and pos - last_mfma_wr[r] - 1 < 8:
                    errs.append(f"{name}: MFMA D -> VALU {r} dist {pos-last_mfma_wr[r]-1} at '{ins.text}'")
            for r in ins.wr:
                if r in last_mfma_c and pos - last_mfma_c[r] - 1 < 3:
                    errs.append(f"{name}: MFMA srcC read -> VALU write {r} at '{ins.text}'")
            if k == "valu":
                for r in ins.rd:
                    if r in last_trans_wr and pos - last_trans_wr[r] - 1 < 1:
                        errs.append(f"{name}: trans -> valu {r} at '{ins.text}'")
            if "permlane" in ins.text:
                for r in list(ins.rd):
                    if r in last_valu_wr and pos - last_valu_wr[r] - 1 < 2:
                        errs.append(f"{name}: valu -> permlane {r} at '{ins.text}'")
            if "readfirstlane" in ins.text or "readlane" in ins.text:
                for r in ins.rd:
                    if r in last_valu_wr and pos - last_valu_wr[r] - 1 < 1:
                        errs.append(f"{name}: valu -> readlane {r} at '{ins.text}'")
            for r in ins.rd:
                if r in last_sgpr_valu and pos - last_sgpr_valu[r] - 1 < 2:
                    errs.append(f"{name}: valu sgpr write -> valu read {r} at '{ins.text}'")
        if k == "mfma":
            for r in ins.rd:
                if r in last_valu_wr and pos - last_valu_wr[r] - 1 < 2:
                    errs.append(f"{name}: VALU -> MFMA {r} dist {pos-last_valu_wr[r]-1} at '{ins.text}'")
            cregs = set(ins.info["cregs"])
            for r in ins.rd:
                if r in last_mfma_wr:
                    d = pos - last_mfma_wr[r] - 1
                    if r in cregs and r in ins.wr:
                        pass
                    elif d < 8:
                        errs.append(f"{name}: MFMA D -> MFMA A/B {r} dist {d} at '{ins.text}'")
        if k in ("lds", "vmem", "dma"):
            for r in list(ins.rd) + list(ins.wr):
                if r in last_mfma_wr and pos - last_mfma_wr[r] - 1 < 8:
                    errs.append(f"{name}: MFMA D -> mem {r} at '{ins.text}'")
            if k in ("vmem", "dma"):
                for r in ins.rd:
                    if r in last_sgpr_valu and pos - last_sgpr_valu[r] - 1 < 5:
                        errs.append(f"{name}: valu sgpr write -> vmem {r} at '{ins.text}'")
        if k == "dma":
            if pos - last_m0 - 1 < 1:
                errs.append(f"{name}: m0 -> dma at '{ins.text}'")
        if k == "mfma":
            for r in ins.wr:
                last_mfma_wr[r] = pos
                last_valu_wr.pop(r, None); last_trans_wr.pop(r, None)
            for r in ins.info["cregs"]:
                last_mfma_c[r] = pos
        elif k in ("valu", "trans"):
            for r in ins.wr:
                if r.startswith("s") or r == "vcc":
                    last_sgpr_valu[r] = pos
                else:
                    last_valu_wr[r] = pos
                    last_mfma_wr.pop(r, None)
                    if k == "trans":
                        last_trans_wr[r] = pos
                    else:
                        last_trans_wr.pop(r, None)
        elif k == "lds":
            for r in ins.wr:
                last_mfma_wr.pop(r, None); last_valu_wr.pop(r, None); last_trans_wr.pop(r, None)
        if "m0" in ins.wr:
            last_m0 = pos
        outs.append(ins)
        if k == "nop":
            pos += ins.info + 1
        else:
            pos += 1
    if fix:
        return outs, errs
    return errs


def emit(stream):
    lines = []
    for ins in stream:
        if ins.text.startswith("buffer_"):
            m = re.search(r"offset:(\d+)", ins.text)
            assert not m or int(m.group(1)) < 4096, ins.text
        if ins.kind == "label":
            lines.append(ins.text)
        else:
            lines.append("    " + ins.text)
    return lines
```

```python
from asmlib import *
LDS2 = 81920
def s(n): return f"s{n}"
def srd(n): return f"s[{n}:{n+3}]"
sWO, sOi, sOut = 8, 12, 16
S_W, S_KP, S_QH, S_WOFF, S_OOFF, S_LW, S_CNT, S_T0, S_T1, S_OUTOFF = 20, 21, 22, 23, 24, 25, 26, 27, 28, 29
vWd = 8
vOd = 13
vAr = 18
vOut = 19
vRed = 20
vAr2 = 21
vB = 32
vA = 192
SLOT = 20480
def BF(buf, i2, q): return V(vB + ((buf * 2 + i2) * 5 + q) * 4, 4)
def AF(i2, t): return V(vA + (i2 * 5 + t) * 4, 4)
def acc(t, q): return A((t * 5 + q) * 4, 4)

class Timeline:
    def __init__(self):
        self.m = {}; self.n = {}; self.v = {}
    def mfma(self, t, ins): self.m[t] = ins
    def N(self, t, ins): self.n.setdefault(t, []).append(ins)
    def stream(self, t0, t1, fill_nop=True):
        out = []
        for t in range(t0, t1):
            if t in self.m: out.append(self.m[t])
            elif fill_nop: out.append(nop(0))
            out += self.n.get(t, [])
        return out

def wo_dma(st):
    out = []
    out.append(salu(f"s_add_u32 m0, {s(S_LW)}, {(st % 4) * SLOT}", [], ["m0"]) if st % 4 else salu(f"s_mov_b32 m0, {s(S_LW)}", [], ["m0"]))
    for j in range(4):
        t = f"buffer_load_dwordx4 v{vWd + j}, {srd(sWO)}, {s(S_WOFF)} offen" + (f" offset:{1024*j}" if j else "") + " lds"
        out.append(I(t, "dma", [f"v{vWd+j}", "m0"], [], tag=("wo", st)))
    out.append(salu(f"s_add_u32 m0, {s(S_LW)}, {(st % 4) * SLOT + 4096}", [], ["m0"]))
    out.append(I(f"buffer_load_dwordx4 v{vWd + 4}, {srd(sWO)}, {s(S_WOFF)} offen lds", "dma", [f"v{vWd+4}", "m0"], [], tag=("wo", st)))
    out.append(salu(f"s_add_u32 {s(S_WOFF)}, {s(S_WOFF)}, {128*1280}"))
    return out

def o_loads(st):
    out = []
    for i2 in range(2):
        for q in range(5):
            d = BF(st % 4, i2, q)
            t = f"buffer_load_dwordx4 {d}, v{vOd + q}, {srd(sOi)}, {s(S_OOFF)} offen" + (f" offset:{2048*i2}" if i2 else "")
            out.append(I(t, "vmem", [f"v{vOd+q}"], d.regs(), tag=("O", st)))
    out.append(salu(f"s_add_u32 {s(S_OOFF)}, {s(S_OOFF)}, 4096"))
    return out

def build_k2():
    L = []; a = L.append
    a("    s_cmp_ge_u32 s2, 256"); a("    s_cbranch_scc1 L2_done")
    P = []
    p = P.append
    p("s_load_dwordx2 s[4:5], s[0:1], 32")
    p("s_load_dwordx2 s[6:7], s[0:1], 72")
    p("s_load_dwordx2 s[30:31], s[0:1], 80")
    p("s_load_dwordx2 s[32:33], s[0:1], 96")
    p("v_lshrrev_b32 v1, 6, v0")
    p("v_and_b32 v2, 63, v0")
    p(f"v_readfirstlane_b32 {s(S_W)}, v1")
    p("s_and_b32 s3, s2, 7")
    p("s_lshr_b32 s34, s2, 3")
    p("s_and_b32 s35, s34, 7")
    p("s_lshr_b32 s34, s34, 3")
    p("s_lshl_b32 s36, s3, 2")
    p("s_add_u32 s36, s36, s34")
    p("s_lshr_b32 s37, s36, 4")
    p("s_and_b32 s38, s36, 15")
    p(f"s_lshr_b32 {s(S_KP)}, {s(S_W)}, 1")
    p(f"s_and_b32 {s(S_QH)}, {s(S_W)}, 1")
    p("s_waitcnt lgkmcnt(0)")
    p("s_cmp_eq_u32 s37, 0")
    p("s_cselect_b32 s4, s4, s6"); p("s_cselect_b32 s5, s5, s7")
    def mk(n, lo, hi, size):
        p(f"s_mov_b32 s{n}, s{lo}"); p(f"s_and_b32 s{n+1}, s{hi}, 0xffff"); p(f"s_mov_b32 s{n+2}, {size}"); p(f"s_mov_b32 s{n+3}, 0x20000")
    mk(sWO, 4, 5, 4096 * 1280)
    mk(sOi, 32, 33, 2 * 16 * 10 * 128 * 1024)
    mk(sOut, 30, 31, 16 * 160 * 2560)
    p(f"s_mul_i32 {s(S_T0)}, {s(S_W)}, {32*1280}")
    p(f"s_mul_i32 {s(S_T1)}, s35, 160")
    p(f"s_add_u32 {s(S_WOFF)}, {s(S_T0)}, {s(S_T1)}")
    p(f"s_mul_i32 {s(S_LW)}, {s(S_W)}, 5120")
    p(f"s_mul_i32 {s(S_T0)}, s36, 10")
    p(f"s_mul_i32 {s(S_T1)}, {s(S_QH)}, 5")
    p(f"s_add_u32 {s(S_T0)}, {s(S_T0)}, {s(S_T1)}")
    p(f"s_lshl_b32 {s(S_T0)}, {s(S_T0)}, 7")
    p(f"s_add_u32 {s(S_T0)}, {s(S_T0)}, {s(S_KP)}")
    p(f"s_lshl_b32 {s(S_OOFF)}, {s(S_T0)}, 10")
    p(f"s_mul_i32 {s(S_T0)}, s38, 160")
    p(f"s_mul_i32 {s(S_T1)}, {s(S_QH)}, 80")
    p(f"s_add_u32 {s(S_T0)}, {s(S_T0)}, {s(S_T1)}")
    p(f"s_mul_i32 {s(S_OUTOFF)}, {s(S_T0)}, 2560")
    p(f"s_mul_i32 {s(S_T0)}, s37, 1280")
    p(f"s_add_u32 {s(S_OUTOFF)}, {s(S_OUTOFF)}, {s(S_T0)}")
    p(f"s_mul_i32 {s(S_T0)}, s35, 160")
    p(f"s_add_u32 {s(S_OUTOFF)}, {s(S_OUTOFF)}, {s(S_T0)}")
    p("v_and_b32 v3, 15, v2"); p("v_lshrrev_b32 v4, 4, v2")
    for j in range(5):
        p(f"v_add_u32 v5, {64*j}, v2")
        p("v_mul_u32_u24 v6, 6554, v5"); p("v_lshrrev_b32 v6, 16, v6")
        p("v_mul_u32_u24 v7, 10, v6"); p("v_sub_u32 v7, v5, v7")
        p("v_mul_u32_u24 v6, 1280, v6"); p("v_lshl_add_u32 v6, v7, 4, v6")
        p(f"v_subrev_u32 v{vWd+j}, {1024*j if j < 4 else 0}, v6")
    p("v_lshlrev_b32 v5, 4, v2")
    for q in range(5):
        p(f"v_add_u32 v{vOd+q}, {q*131072}, v5")
    p("v_lshrrev_b32 v6, 2, v3"); p("v_and_b32 v7, 3, v3")
    p("v_lshl_add_u32 v6, v4, 2, v6"); p("v_mul_u32_u24 v6, 160, v6"); p("v_lshl_add_u32 v6, v7, 3, v6")
    p(f"s_mul_i32 {s(S_T0)}, {s(S_KP)}, 5120")
    p(f"v_add_u32 v{vAr}, {s(S_T0)}, v6")
    p(f"v_add_u32 v{vAr2}, {2*SLOT}, v{vAr}")
    p("v_mul_u32_u24 v6, 2560, v3"); p(f"v_lshl_add_u32 v{vOut}, v4, 3, v6")
    p(f"s_mul_i32 {s(S_T0)}, {s(S_QH)}, 25600")
    p(f"v_add_u32 v{vRed}, {s(S_T0)}, v5")
    L += ["    " + x for x in P]

    II = 50; NS = 32
    tl = Timeline()
    init = []
    for st in range(4):
        w_ = wo_dma(st)
        init += w_[:1] + [nop(0)] + w_[1:6] + [nop(0)] + w_[6:]
        init += o_loads(st)
        if st == 3: pass
    for st in range(-1, NS):
        T = st * II
        if st >= 0:
            for t in range(II):
                i2, tt, q = t // 25, (t % 25) // 5, t % 5
                first = (st == 0 and i2 == 0)
                tl.mfma(T + t, mfma16(acc(tt, q), AF(i2, tt), BF(st % 4, i2, q), 0 if first else acc(tt, q)))
        n = st + 1
        if n < NS:
            tl.N(T + 36, I("s_waitcnt lgkmcnt(0)", "wait", info="lgkm0"))
            tl.N(T + 37, I("s_waitcnt vmcnt(?)", "wait", info=("vm", [("wo", n), ("O", n)], None)))
            tl.N(T + 38, I("s_barrier", "barrier"))
            k = 0
            for i2 in range(2):
                for tt in range(5):
                    for u in range(2):
                        t = T + 39 + k if i2 == 0 else T + 50 + (k - 10)
                        tl.N(t, ds_read("ds_read_b64_tr_b16", AF(i2, tt).sub(2 * u, 2), V(vAr if n % 4 < 2 else vAr2), (n % 2) * SLOT + i2 * 10240 + u * 2560 + 32 * tt))
                        k += 1
            if st >= 0 and st + 4 < NS:
                w = wo_dma(st + 4)
                tl.N(T + 59, w[0])
                for j in range(4): tl.N(T + 60 + j, w[1 + j])
                tl.N(T + 63, w[5])
                tl.N(T + 64, w[6])
                tl.N(T + 65, w[7])
                ol = o_loads(st + 4)
                for j in range(10): tl.N(T + 66 + j, ol[j])
                tl.N(T + 76, ol[10])
    pre = tl.stream(-II + 36, 0, fill_nop=False)
    stages = [tl.stream(st * II, (st + 1) * II) for st in range(NS)]
    flat = []
    def mark(n): flat.append(I(f"@@{n}", "label"))
    mark("init"); flat += init
    mark("pre"); flat += pre + [I("s_waitcnt lgkmcnt(0)", "wait", info="lgkm0")]
    for st in range(NS):
        mark(f"s{st}"); flat += stages[st]
    resolve_vm_waits(flat)
    flat = insert_lgkm_waits(flat, lat=6)
    errs = check_hazards(flat, "k2")
    assert not errs, errs[:5]
    seg = {}; cur = None
    for ins in flat:
        if ins.kind == "label" and ins.text.startswith("@@"):
            cur = ins.text[2:]; seg[cur] = []
        else: seg[cur].append(ins)
    cat = lambda names: [x for n in names for x in seg[n]]
    txt = lambda st: [x.text for x in st]
    body = cat([f"s{k}" for k in range(4, 8)])
    for it in range(1, 6):
        assert txt(body) == txt(cat([f"s{k}" for k in range(4 + 4 * it, 8 + 4 * it)])), f"k2 iteration {it}"
    L += emit(seg["init"]) + emit(seg["pre"]) + emit(cat(["s0", "s1", "s2", "s3"]))
    L.append(f"    s_mov_b32 {s(S_CNT)}, 6")
    L.append(".p2align 6"); L.append("L2_loop:")
    L += emit(body)
    L += [f"    s_sub_u32 {s(S_CNT)}, {s(S_CNT)}, 1", f"    s_cmp_lg_u32 {s(S_CNT)}, 0", "    s_cbranch_scc1 L2_loop"]
    L += emit(cat(["s28", "s29", "s30", "s31"]))
    F = []; f = F.append
    f("s_waitcnt vmcnt(0) lgkmcnt(0)")
    f("s_nop 7")
    f("s_barrier")
    f(f"s_cmp_eq_u32 {s(S_KP)}, 0"); f("s_cbranch_scc1 L2_recv")
    for k in range(25):
        f(f"ds_write_b128 v{vRed}, a[{4*k}:{4*k+3}] offset:{k*1024}")
    f("s_waitcnt lgkmcnt(0)")
    f("s_barrier")
    f("s_branch L2_done")
    F.append("L2_recv:")
    f("s_barrier")
    for k in range(25):
        f(f"ds_read_b128 v[{vB+4*k}:{vB+4*k+3}], v{vRed} offset:{k*1024}")
        if k % 8 == 7 or k == 24:
            f("s_waitcnt lgkmcnt(0)")
    for tt in range(5):
        for q in range(5):
            k = tt * 5 + q
            r = vB + 4 * k
            for j in range(4):
                f(f"v_accvgpr_read_b32 v{vA + j}, a{4*k + j}")
            for j in range(4):
                f(f"v_add_f32 v{r + j}, v{r + j}, v{vA + j}")
            f(f"v_cvt_pk_bf16_f32 v{r}, v{r}, v{r+1}")
            f(f"v_cvt_pk_bf16_f32 v{r+1}, v{r+2}, v{r+3}")
            f(f"s_add_u32 {s(S_T0)}, {s(S_OUTOFF)}, {q*16*2560}")
            f(f"buffer_store_dwordx2 v[{r}:{r+1}], v{vOut}, {srd(sOut)}, {s(S_T0)} offen offset:{32*tt}")
    for x in F:
        L.append(x if x.endswith(":") else "    " + x)
    L.append("L2_done:"); L.append("    s_endpgm")
    return L
```

```python
import sys, math, struct
from asmlib import *

NAME = "concat_heads__mha_block_cached__mha_block_cached__near_ridge"
K1 = "mha_attn_kernel"
K2 = "mha_oproj_kernel"

def fbits(x):
    return struct.unpack("<I", struct.pack("<f", x))[0]

KR = 0
VR = 65536
XR = 131072
XSLOT = 10752
FLAGS = XR + 3 * XSLOT
LDS1 = 163840

sX, sWQ, sK, sV, sO = 8, 12, 16, 20, 24
S_W, S_HSEL, S_HALF, S_TASK, S_B, S_H = 28, 29, 30, 31, 32, 33
S_KOFF, S_VOFF, S_XOFF, S_WQOFF, S_XWR, S_XRD, S_CNT = 34, 35, 36, 37, 38, 39, 40
S_LK, S_LV, S_C, S_KQS, S_KQM, S_HOFF, S_OOFF = 41, 42, 44, 72, 46, 47, 48
S_KQSMAX, S_KQMMAX, S_B0, S_XW0 = 49, 50, 51, 43
S_T0, S_T1, S_T2, S_T3 = 68, 69, 70, 71
S_XWEND = 73
def s(n): return f"s{n}"
def srd(n): return f"s[{n}:{n+3}]"

vQ, vS, vP = 16, 96, 136
vKr, vVr, vWr, vXr, vXpat = 176, 180, 188, 192, 193
vKd, vVd, vWd, vXd = 194, 198, 200, 204
vL = 207
vOst = 212
vT = 216
aO, aKF, aVF = 0, 160, 192

def Qf(qt, st): return V(vQ + (qt * 4 + st) * 4, 4)
def Sf(kt, qt): return V(vS + (kt * 5 + qt) * 4, 4)
def Pf(par, qt): return V(vP + (par * 5 + qt) * 4, 4)
def KF(kt, st): return A(aKF + (kt * 4 + st) * 4, 4)
def VF(dt): return A(aVF + dt * 4, 4)
def Of(dt, qt): return A(aO + (dt * 5 + qt) * 4, 4)

def dma(voff, srdn, soff, ioff, nt, tag):
    t = f"buffer_load_dwordx4 v{voff}, {srd(srdn)}, {soff} offen"
    if ioff: t += f" offset:{ioff}"
    if nt: t += " nt"
    t += " lds"
    return I(t, "dma", [f"v{voff}", "m0"], [], tag=tag)

def set_m0(base_s, const):
    if const == 0:
        return salu(f"s_mov_b32 m0, {s(base_s)}", [], ["m0"])
    return salu(f"s_add_u32 m0, {s(base_s)}, {const}", [], ["m0"])

def vmwait(tags, lgkm0=False, cap=None):
    t = "s_waitcnt vmcnt(?)" + (" lgkmcnt(0)" if lgkm0 else "")
    return I(t, "wait", info=("vm", tags, cap))

def lgkm0():
    return I("s_waitcnt lgkmcnt(0)", "wait", info="lgkm0")

def barrier():
    return I("s_barrier", "barrier")


class Timeline:
    def __init__(self):
        self.m = {}; self.n = {}; self.v = {}
    def mfma(self, t, ins):
        assert t not in self.m, t
        self.m[t] = ins
    def N(self, t, ins):
        self.n.setdefault(t, []).append(ins)
    def Vv(self, t, ins):
        self.v.setdefault(t, []).append(ins)
    def stream(self, t0, t1, fill_nop=True):
        out = []
        for t in range(t0, t1):
            if t in self.m:
                out.append(self.m[t])
            elif fill_nop:
                out.append(nop(0))
            out += self.n.get(t, [])
            out += self.v.get(t, [])
        return out


def lgkm0_mark(ins):
    return ins


def q_groups_initial():
    out = []
    def wq(c):
        out.append(set_m0(S_LV, (c % 4) * 16384))
        out.append(nop(0))
        for j in range(4):
            out.append(dma(vWd + j, sWQ, s(S_WQOFF), 1024 * j, False, ("wq", c)))
        out.append(salu(f"s_add_u32 {s(S_WQOFF)}, {s(S_WQOFF)}, {32*8192}"))
    def x(c):
        out.append(set_m0(S_XW0, (c % 3) * XSLOT))
        out.append(nop(0))
        for j in range(3):
            out.append(dma(vXd + j, sX, s(S_XOFF), 1024 * j, False, ("x", c)))
        out.append(salu(f"s_add_u32 {s(S_XOFF)}, {s(S_XOFF)}, 64"))
    wq(0); x(0); wq(1); x(1); wq(2)
    out.append(salu(f"s_add_u32 {s(S_XWR)}, {s(S_XW0)}, {2*XSLOT}"))
    out.append(salu(f"s_mov_b32 {s(S_XRD)}, {XR}"))
    return out


def q_phase():
    II = 40
    tl = Timeline()
    NCH = 20
    def AF(dt): return A(aKF + dt * 4, 4)
    def BF(par, qt): return V(vS + (par * 5 + qt) * 4, 4)
    def acc(dt, qt): return A(aO + (dt * 5 + qt) * 4, 4)
    for c in range(-1, NCH):
        T = c * II
        if c >= 0:
            for t in range(II):
                dt, qt = t // 5, t % 5
                tl.mfma(T + t, mfma16(acc(dt, qt), AF(dt), BF(c & 1, qt), 0 if c == 0 else acc(dt, qt)))
        n = c + 1
        w = vmwait([("x", n), ("wq", n)], lgkm0=True)
        w.info = ("vm", [("x", n), ("wq", n)], None)
        tl.N(T + 24, lgkm0())
        tl.N(T + 25, vmwait([("x", n), ("wq", n)]))
        tl.N(T + 26, barrier())
        tl.Vv(T + 26, valu(f"v_add_u32 v{vXr}, {s(S_XRD)}, v{vXpat}", [f"v{vXpat}"], [f"v{vXr}"]))
        slot = n % 4
        def rdB(t, qt):
            tl.N(T + t, ds_read("ds_read_b128", BF(n & 1, qt), V(vXr), qt * 1024))
        def rdA(t, dt, u):
            st, odd = dt // 2, dt % 2
            tl.N(T + t, ds_read("ds_read_b64_tr_b16", AF(dt).sub(2 * u, 2), V(vWr + st), slot * 16384 + u * 1024 + odd * 8))
        rdB(27, 0); rdA(28, 0, 0); rdA(29, 0, 1); rdB(30, 1); rdB(31, 2); rdB(32, 3); rdB(33, 4)
        rdA(34, 1, 0); rdA(35, 1, 1); rdA(36, 2, 0); rdA(37, 2, 1); rdA(38, 3, 0); rdA(39, 3, 1)
        rdA(48, 4, 0); rdA(49, 4, 1); rdA(50, 5, 0); rdA(51, 5, 1); rdA(52, 6, 0); rdA(53, 6, 1); rdA(54, 7, 0); rdA(55, 7, 1)
        tl.N(T + 56, salu(f"s_add_u32 {s(S_XRD)}, {s(S_XRD)}, {XSLOT}"))
        tl.N(T + 57, salu(f"s_cmp_eq_u32 {s(S_XRD)}, {XR + 3*XSLOT}"))
        tl.N(T + 57, salu(f"s_cselect_b32 {s(S_XRD)}, {XR}, {s(S_XRD)}"))
        tl.N(T + 39, salu(f"s_mov_b32 m0, {s(S_XWR)}", [], ["m0"]))
        for j in range(3):
            tl.N(T + 40 + j, dma(vXd + j, sX, s(S_XOFF), 1024 * j, False, ("x", n + 2)))
        tl.N(T + 42, set_m0(S_LV, ((n + 3) % 4) * 16384))
        for j in range(4):
            tl.N(T + 43 + j, dma(vWd + j, sWQ, s(S_WQOFF), 1024 * j, False, ("wq", n + 3)))
        tl.N(T + 46, salu(f"s_mov_b32 m0, {s(S_KQM)}", [], ["m0"]))
        tl.N(T + 47, dma(vKd + (n % 4), sK, s(S_KQS), 1024 * (n % 4), True, ("kq", n)))
        tl.N(T + 58, salu(f"s_add_u32 {s(S_XOFF)}, {s(S_XOFF)}, 64"))
        tl.N(T + 59, salu(f"s_add_u32 {s(S_WQOFF)}, {s(S_WQOFF)}, {32*8192}"))
        tl.N(T + 60, salu(f"s_add_u32 {s(S_XWR)}, {s(S_XWR)}, {XSLOT}"))
        tl.N(T + 62, salu(f"s_cmp_eq_u32 {s(S_XWR)}, {s(S_XWEND)}"))
        tl.N(T + 62, salu(f"s_cselect_b32 {s(S_XWR)}, {s(S_XW0)}, {s(S_XWR)}"))
        if n % 4 == 3:
            tl.N(T + 63, salu(f"s_add_u32 {s(S_KQS)}, {s(S_KQS)}, 8192"))
            tl.N(T + 63, salu(f"s_min_u32 {s(S_KQS)}, {s(S_KQS)}, {s(S_KQSMAX)}"))
            tl.N(T + 58, salu(f"s_add_u32 {s(S_KQM)}, {s(S_KQM)}, 16384"))
            tl.N(T + 59, salu(f"s_min_u32 {s(S_KQM)}, {s(S_KQM)}, {s(S_KQMMAX)}"))
    pre = tl.stream(-II + 24, 0, fill_nop=False)
    chunks = [tl.stream(c * II, (c + 1) * II) for c in range(NCH)]
    return pre, chunks


def q_convert():
    out = []
    for qt in range(5):
        for st in range(4):
            t0 = vT + ((qt * 4 + st) % 2) * 8
            for odd in range(2):
                src = Of(2 * st + odd, qt)
                for j in range(4):
                    out.append(valu(f"v_accvgpr_read_b32 v{t0 + odd*4 + j}, a{src.b + j}", [f"a{src.b+j}"], [f"v{t0+odd*4+j}"]))
            for p in range(4):
                r = t0 + 2 * p
                out.append(valu(f"v_pk_mul_f32 v[{r}:{r+1}], v[{r}:{r+1}], s[{S_C}:{S_C+1}]", [f"v{r}", f"v{r+1}"], [f"v{r}", f"v{r+1}"]))
            q = Qf(qt, st)
            for p in range(4):
                out.append(valu(f"v_cvt_pk_bf16_f32 v{q.b + p}, v{t0 + 2*p}, v{t0 + 2*p + 1}", [f"v{t0+2*p}", f"v{t0+2*p+1}"], [f"v{q.b+p}"]))
    return out


def a_phase(next_task_loads):
    II = 80
    tl = Timeline()
    NE = 32
    simple = [0,1,2,7,8,9] + list(range(10, 20)) + [24,25,26,31,32,33,38,39,40,45,46,47,52,53,54,59,60,61,66,67,68,73,74,75]
    kt0_reads = [66, 67, 68, 73]
    kt1_reads = [74, 75, 80, 81]
    dma_t = [82, 87, 88, 89, 90, 91, 92, 93]
    v_reads = [94,95,96,97,98,99,104,105,106,111,112,113,118,119,120,125]
    for e in range(-1, NE + 1):
        T = e * II
        if 0 <= e < NE:
            for t in range(40):
                kt, st, qt = t // 20, (t % 20) // 5, t % 5
                tl.mfma(T + t, mfma16(Sf(kt, qt), KF(kt, st), Qf(qt, st), 0 if st == 0 else Sf(kt, qt)))
        if 1 <= e <= NE:
            for t in range(40):
                dt, qt = t // 5, t % 5
                tl.mfma(T + 40 + t, mfma16(Of(dt, qt), VF(dt), Pf((e - 1) & 1, qt), 0 if e == 1 else Of(dt, qt)))
        if 0 <= e < NE:
            for kt in range(2):
                t = T + 20 + 35 * kt
                for qt in range(5):
                    S = Sf(kt, qt); P = Pf(e & 1, qt)
                    for j in range(4):
                        r = f"v{S.b + j}"
                        tl.Vv(t + j, valu(f"v_exp_f32 {r}, {r}", [r], [r], trans=True))
                    L = f"v{vL + qt}"
                    for j in range(4):
                        r = f"v{S.b + j}"
                        if e == 0 and kt == 0 and j == 0:
                            tl.Vv(t + 4, valu(f"v_mov_b32 {L}, {r}", [r], [L]))
                        else:
                            tl.Vv(t + 4 + j // 2, valu(f"v_add_f32 {L}, {L}, {r}", [L, r], [L]))
                    for jj in range(2):
                        d = f"v{P.b + 2*kt + jj}"
                        tl.Vv(t + 6, valu(f"v_cvt_pk_bf16_f32 {d}, v{S.b + 2*jj}, v{S.b + 2*jj + 1}", [f"v{S.b+2*jj}", f"v{S.b+2*jj+1}"], [d]))
                    t += 7
        n = e + 1
        if n <= NE:
            if e >= 0:
                tags = []
                if 4 <= n < NE: tags.append(("K", n))
                tags.append(("V", e))
                tl.N(T + 63, lgkm0())
                tl.N(T + 64, vmwait(tags))
                tl.N(T + 65, barrier())
            if n < NE:
                slot = n % 4
                for st in range(4):
                    tl.N(T + kt0_reads[st], ds_read("ds_read_b128", KF(0, st), V(vKr + st), slot * 16384))
                    tl.N(T + kt1_reads[st], ds_read("ds_read_b128", KF(1, st), V(vKr + st), slot * 16384 + 4096))
            if 0 <= e < NE:
                slot = e % 4
                for dt in range(8):
                    for u in range(2):
                        tl.N(T + v_reads[2 * dt + u], ds_read("ds_read_b64_tr_b16", VF(dt).sub(2 * u, 2), V(vVr + dt), slot * 16384 + u * 4096))
            if 0 <= e <= 29:
                kn, vn = e + 4, e + 3
                tl.N(T + 79, set_m0(S_LK, (kn % 4) * 16384))
                for j in range(4):
                    tl.N(T + dma_t[j], dma(vKd + j, sK, s(S_KOFF), 1024 * j, True, ("K", kn)))
                tl.N(T + dma_t[3], set_m0(S_LV, (vn % 4) * 16384))
                for j in range(4):
                    tl.N(T + dma_t[4 + j], dma(vVd + (j & 1), sV, s(S_VOFF), 1024 * j, True, ("V", vn)))
                tl.N(T + 100, salu(f"s_add_u32 {s(S_KOFF)}, {s(S_KOFF)}, 8192"))
                tl.N(T + 101, salu(f"s_add_u32 {s(S_VOFF)}, {s(S_VOFF)}, 8192"))
            if e == 31:
                for k, ins in enumerate(next_task_loads):
                    tl.N(T + 66, ins)
    pre = tl.stream(-II + 63, 0, fill_nop=False)
    ep = [tl.stream(e * II, (e + 1) * II) for e in range(NE + 1)]
    return pre, ep


def o_epilogue():
    out = []
    t = vT
    for qt in range(5):
        L = vL + qt
        a_, b_ = t + 2 * qt, t + 2 * qt + 1
        out.append(valu(f"v_mov_b32 v{a_}, v{L}", [f"v{L}"], [f"v{a_}"]))
        out.append(valu(f"v_mov_b32 v{b_}, v{L}", [f"v{L}"], [f"v{b_}"]))
    out.append(nop(1))
    for qt in range(5):
        a_, b_ = t + 2 * qt, t + 2 * qt + 1
        out.append(valu(f"v_permlane32_swap_b32 v{a_}, v{b_}", [f"v{a_}", f"v{b_}"], [f"v{a_}", f"v{b_}"]))
    out.append(nop(1))
    for qt in range(5):
        a_, b_ = t + 2 * qt, t + 2 * qt + 1
        out.append(valu(f"v_add_f32 v{a_}, v{a_}, v{b_}", [f"v{a_}", f"v{b_}"], [f"v{a_}"]))
    for qt in range(5):
        a_, b_ = t + 2 * qt, t + 2 * qt + 1
        out.append(valu(f"v_mov_b32 v{b_}, v{a_}", [f"v{a_}"], [f"v{b_}"]))
    out.append(nop(1))
    for qt in range(5):
        a_, b_ = t + 2 * qt, t + 2 * qt + 1
        out.append(valu(f"v_permlane16_swap_b32 v{a_}, v{b_}", [f"v{a_}", f"v{b_}"], [f"v{a_}", f"v{b_}"]))
    out.append(nop(1))
    for qt in range(5):
        a_, b_ = t + 2 * qt, t + 2 * qt + 1
        L = vL + qt
        out.append(valu(f"v_add_f32 v{L}, v{a_}, v{b_}", [f"v{a_}", f"v{b_}"], [f"v{L}"]))
    return out

def o_store():
    out = []
    t = vT
    for qt in range(5):
        L = vL + qt
        r = t + 2 * qt
        out.append(valu(f"v_rcp_f32 v{r}, v{L}", [f"v{L}"], [f"v{r}"], trans=True))
    out.append(nop(0))
    for qt in range(5):
        r = t + 2 * qt
        out.append(valu(f"v_mov_b32 v{r+1}, v{r}", [f"v{r}"], [f"v{r+1}"]))
    base = t + 10
    k = 0
    for qt in range(5):
        inv = t + 2 * qt
        for vv in range(4):
            t0 = base + 2 + (k % 2) * 12
            t0 = vS + (k % 3) * 12
            for odd in range(2):
                src = Of(2 * vv + odd, qt)
                for j in range(4):
                    out.append(valu(f"v_accvgpr_read_b32 v{t0 + odd*4 + j}, a{src.b + j}", [f"a{src.b+j}"], [f"v{t0+odd*4+j}"]))
            for p in range(4):
                r = t0 + 2 * p
                out.append(valu(f"v_pk_mul_f32 v[{r}:{r+1}], v[{r}:{r+1}], v[{inv}:{inv+1}]", [f"v{r}", f"v{r+1}", f"v{inv}", f"v{inv+1}"], [f"v{r}", f"v{r+1}"]))
            d = t0 + 8
            for p in range(4):
                out.append(valu(f"v_cvt_pk_bf16_f32 v{d + p}, v{t0 + 2*p}, v{t0 + 2*p + 1}", [f"v{t0+2*p}", f"v{t0+2*p+1}"], [f"v{d+p}"]))
            out.append(salu(f"s_add_u32 {s(S_T0)}, {s(S_OOFF)}, {qt*131072 + vv*1024}"))
            out.append(I(f"buffer_store_dwordx4 v[{d}:{d+3}], v{vOst}, {srd(sO)}, {s(S_T0)} offen", "vmem", regs("v", d, 4) + [f"v{vOst}"], [], tag=("O", k)))
            k += 1
    return out


def k1_prologue():
    L = []
    a = L.append
    a("s_cmp_ge_u32 s2, 256")
    a("s_cbranch_scc1 L1_done")
    a("s_load_dwordx8 s[52:59], s[0:1], 0")
    a("s_load_dwordx8 s[60:67], s[0:1], 40")
    a("s_load_dwordx2 s[4:5], s[0:1], 96")
    a("v_lshrrev_b32 v1, 6, v0")
    a("v_and_b32 v2, 63, v0")
    a(f"v_readfirstlane_b32 {s(S_W)}, v1")
    a("s_and_b32 s3, s2, 7")
    a("s_lshr_b32 s6, s2, 3")
    a(f"s_lshr_b32 {s(S_HSEL)}, {s(S_W)}, 1")
    a(f"s_and_b32 {s(S_HALF)}, {s(S_W)}, 1")
    a(f"s_lshr_b32 {s(S_B0)}, s6, 2")
    a("s_and_b32 s6, s6, 3")
    a("s_and_b32 s7, s3, 3")
    a("s_lshl_b32 s7, s7, 3")
    a("s_lshl_b32 s6, s6, 1")
    a("s_add_u32 s7, s7, s6")
    a(f"s_add_u32 {s(S_H)}, s7, {s(S_HSEL)}")
    a("s_lshr_b32 s3, s3, 2")
    a(f"s_mov_b32 {s(S_T3)}, s3")
    a("s_waitcnt lgkmcnt(0)")
    a("s_cmp_eq_u32 s3, 0")
    for k in range(8):
        a(f"s_cselect_b32 s{52+k}, s{52+k}, s{60+k}")
    def mk(n, lo, hi, size):
        a(f"s_mov_b32 s{n}, s{lo}")
        a(f"s_and_b32 s{n+1}, s{hi}, 0xffff")
        a(f"s_mov_b32 s{n+2}, {size}")
        a(f"s_mov_b32 s{n+3}, 0x20000")
    mk(sX, 52, 53, 16 * 160 * 1280)
    mk(sK, 54, 55, 0x8000000)
    mk(sV, 56, 57, 0x8000000)
    mk(sWQ, 58, 59, 640 * 8192)
    mk(sO, 4, 5, 2 * 16 * 10 * 128 * 1024)
    c = math.log2(math.e) / math.sqrt(128.0)
    a(f"s_mov_b32 s{S_C}, {fbits(c):#x}")
    a(f"s_mov_b32 s{S_C+1}, {fbits(c):#x}")
    a(f"s_lshl_b32 s6, {s(S_HSEL)}, 13")
    a(f"s_lshl_b32 s7, {s(S_HALF)}, 12")
    a(f"s_add_u32 {s(S_LK)}, s6, s7")
    a(f"s_add_u32 {s(S_LV)}, {s(S_LK)}, {VR}")
    a(f"s_add_u32 {s(S_KQMMAX)}, {s(S_LK)}, {3*16384}")
    a(f"s_mul_i32 s6, {s(S_W)}, 2560")
    a(f"s_add_u32 {s(S_XW0)}, s6, {XR}")
    a(f"s_add_u32 {s(S_XWEND)}, {s(S_XW0)}, {3*XSLOT}")
    a("v_and_b32 v3, 15, v2")
    a("v_lshrrev_b32 v4, 4, v2")
    a(f"s_lshl_b32 s6, {s(S_HSEL)}, 13")
    a("v_xor_b32 v5, v4, v3")
    a("v_lshlrev_b32 v5, 4, v5")
    a("v_lshlrev_b32 v6, 8, v3")
    a("v_add3_u32 v5, v5, v6, s6")
    for st in range(4):
        a(f"v_xor_b32 v{vKr+st}, {st << 6}, v5")
    a("v_lshrrev_b32 v6, 2, v3")
    a("v_and_b32 v7, 3, v3")
    a("v_lshl_add_u32 v8, v4, 2, v6")
    a("v_and_b32 v9, 7, v8")
    a("v_lshlrev_b32 v9, 1, v9")
    a("v_lshrrev_b32 v10, 1, v7")
    a("v_xor_b32 v9, v9, v10")
    a("v_lshlrev_b32 v9, 4, v9")
    a("v_and_b32 v10, 1, v7")
    a("v_lshlrev_b32 v10, 3, v10")
    a("v_lshlrev_b32 v8, 8, v8")
    a("v_add3_u32 v9, v9, v10, v8")
    a(f"s_add_u32 s7, s6, {VR}")
    a("v_add_u32 v9, s7, v9")
    for dt in range(8):
        a(f"v_xor_b32 v{vVr+dt}, {dt << 5}, v9")
    a("v_lshl_add_u32 v8, v4, 3, v6")
    a("v_lshlrev_b32 v8, 8, v8")
    a("v_lshlrev_b32 v9, 2, v6")
    a("v_xor_b32 v9, v9, v7")
    a("v_lshlrev_b32 v9, 4, v9")
    a("v_add3_u32 v9, v9, v8, s7")
    for st in range(4):
        a(f"v_xor_b32 v{vWr+st}, {st << 6}, v9")
    a("v_lshrrev_b32 v8, 3, v3")
    a("v_lshlrev_b32 v8, 1, v8")
    a("v_xor_b32 v8, v8, v4")
    a("v_lshlrev_b32 v8, 4, v8")
    a("v_lshlrev_b32 v9, 6, v3")
    a(f"s_mul_i32 s7, {s(S_HALF)}, {80*64}")
    a(f"v_add3_u32 v{vXpat}, v8, v9, s7")
    a("v_xor_b32 v8, v3, v4")
    a("v_lshlrev_b32 v8, 4, v8")
    a("v_lshl_add_u32 v8, v4, 8, v8")
    for j in range(4):
        a(f"v_xor_b32 v{vKd+j}, {j << 6}, v8")
    a("v_lshlrev_b32 v8, 1, v4")
    a("v_xor_b32 v8, v8, v3")
    a("v_lshlrev_b32 v8, 4, v8")
    a("v_lshl_add_u32 v8, v4, 8, v8")
    a(f"v_mov_b32 v{vVd}, v8")
    a(f"v_xor_b32 v{vVd+1}, {8 << 4}, v8")
    a("v_lshlrev_b32 v8, 2, v4")
    a("v_xor_b32 v8, v8, v3")
    a("v_lshlrev_b32 v8, 4, v8")
    a("v_lshl_add_u32 v8, v4, 13, v8")
    for j in range(4):
        a(f"v_add_u32 v{vWd+j}, {j*31744}, v8")
    a("v_lshrrev_b32 v8, 5, v2")
    a(f"v_add_u32 v8, {s(S_W)}, v8")
    a("v_and_b32 v8, 1, v8")
    a("v_lshlrev_b32 v8, 1, v8")
    a("v_and_b32 v9, 3, v2")
    a("v_xor_b32 v8, v8, v9")
    a("v_lshlrev_b32 v8, 4, v8")
    a("v_lshrrev_b32 v9, 2, v2")
    a("v_mul_u32_u24 v9, 1280, v9")
    a("v_add_u32 v8, v8, v9")
    for j in range(3):
        a(f"v_add_u32 v{vXd+j}, {j*19456}, v8")
    a(f"v_lshlrev_b32 v{vOst}, 4, v2")
    a(f"s_mov_b32 {s(S_TASK)}, 0")
    return L


def task_setup_q():
    o = []
    o.append(salu(f"s_lshl_b32 {s(S_T0)}, {s(S_TASK)}, 3"))
    o.append(salu(f"s_add_u32 {s(S_B)}, {s(S_T0)}, {s(S_B0)}"))
    o.append(salu(f"s_mul_i32 {s(S_T0)}, {s(S_B)}, 160"))
    o.append(salu(f"s_mul_i32 {s(S_T1)}, {s(S_W)}, 40"))
    o.append(salu(f"s_add_u32 {s(S_T0)}, {s(S_T0)}, {s(S_T1)}"))
    o.append(salu(f"s_mul_i32 {s(S_XOFF)}, {s(S_T0)}, 1280"))
    o.append(salu(f"s_lshl_b32 {s(S_T0)}, {s(S_HALF)}, 17"))
    o.append(salu(f"s_lshl_b32 {s(S_T1)}, {s(S_H)}, 8"))
    o.append(salu(f"s_add_u32 {s(S_WQOFF)}, {s(S_T0)}, {s(S_T1)}"))
    return o

def task_setup_kv():
    o = []
    o.append(salu(f"s_lshl_b32 {s(S_T0)}, {s(S_B)}, 5"))
    o.append(salu(f"s_add_u32 {s(S_T0)}, {s(S_T0)}, {s(S_H)}"))
    o.append(salu(f"s_lshl_b32 {s(S_HOFF)}, {s(S_T0)}, 18"))
    o.append(salu(f"s_add_u32 {s(sK+2)}, {s(S_HOFF)}, 262144"))
    o.append(salu(f"s_mov_b32 {s(sV+2)}, {s(sK+2)}"))
    o.append(salu(f"s_lshl_b32 {s(S_T0)}, {s(S_HALF)}, 12"))
    o.append(salu(f"s_add_u32 {s(S_KQS)}, {s(S_HOFF)}, {s(S_T0)}"))
    o.append(salu(f"s_add_u32 {s(S_KQSMAX)}, {s(S_KQS)}, {3*8192}"))
    o.append(salu(f"s_mov_b32 {s(S_KQM)}, {s(S_LK)}"))
    o.append(salu(f"s_add_u32 {s(S_KOFF)}, {s(S_KQS)}, {4*8192}"))
    o.append(salu(f"s_mov_b32 {s(S_VOFF)}, {s(S_KQS)}"))
    o.append(salu(f"s_lshl_b32 {s(S_T0)}, {s(S_T3)}, 4"))
    o.append(salu(f"s_add_u32 {s(S_T0)}, {s(S_T0)}, {s(S_B)}"))
    o.append(salu(f"s_mul_i32 {s(S_T0)}, {s(S_T0)}, 10"))
    o.append(salu(f"s_mul_i32 {s(S_T1)}, {s(S_HALF)}, 5"))
    o.append(salu(f"s_add_u32 {s(S_T0)}, {s(S_T0)}, {s(S_T1)}"))
    o.append(salu(f"s_lshl_b32 {s(S_T0)}, {s(S_T0)}, 7"))
    o.append(salu(f"s_lshl_b32 {s(S_T1)}, {s(S_H)}, 2"))
    o.append(salu(f"s_add_u32 {s(S_T0)}, {s(S_T0)}, {s(S_T1)}"))
    o.append(salu(f"s_lshl_b32 {s(S_OOFF)}, {s(S_T0)}, 10"))
    return o


def same_text(a, b):
    return [x.text for x in a] == [x.text for x in b]


def build_k1():
    lines = []
    lines += ["    " + x for x in k1_prologue()]
    setup_q = task_setup_q()
    init = q_groups_initial()
    qpre, qch = q_phase()
    conv = q_convert()
    nxt = [raw(f"s_cmp_eq_u32 {s(S_TASK)}, 1"), raw("s_cbranch_scc1 L1_nonext", "branch"),
           raw(f"s_mov_b32 {s(S_TASK)}, 1")] + task_setup_q() + q_groups_initial() + \
          [label("L1_nonext")]
    nxt = [raw(f"s_mov_b32 {s(S_T2)}, {s(S_TASK)}"), raw(f"s_cmp_eq_u32 {s(S_TASK)}, 1"), raw("s_cbranch_scc1 L1_nonext", "branch"),
           raw(f"s_mov_b32 {s(S_TASK)}, 1")] + task_setup_q() + q_groups_initial() + [label("L1_nonext")]
    for x in nxt:
        if x.kind == "dma": x.tag = ("next", x.tag)
    apre, aep = a_phase(nxt)
    vinit = []
    for n in range(3):
        vinit.append(set_m0(S_LV, n * 16384))
        vinit.append(nop(0))
        for j in range(4):
            vinit.append(dma(vVd + (j & 1), sV, s(S_VOFF), 1024 * j, True, ("V", n)))
        vinit.append(salu(f"s_add_u32 {s(S_VOFF)}, {s(S_VOFF)}, 8192"))
    mid = [vmwait([("kq", 19)], cap=0), barrier()] + vinit
    kvset = task_setup_kv()
    epi1 = o_epilogue()
    epi2 = o_store()
    flat = []
    marks = {}
    def add(name, st):
        marks[name] = (len(flat), len(flat) + len(st))
        flat.extend(st)
    add("setup_q", setup_q); add("init", init)
    add("kvset", kvset)
    add("qpre", qpre)
    for c in range(20): add(f"q{c}", qch[c])
    add("mid", mid)
    add("apre", apre)
    add("conv", [nop(7)] + conv)
    for e in range(33): add(f"e{e}", aep[e])
    add("epi1", [nop(7)] + epi1)
    add("epi2", epi2)
    tagged = []
    names = list(marks.keys())
    for nme in names:
        a_, b_ = marks[nme]
        tagged.append(I(f"@@{nme}", "label"))
        tagged.extend(flat[a_:b_])
    resolve_vm_waits(tagged)
    tagged = insert_lgkm_waits(tagged, lat=6)
    tagged, notes = check_hazards(tagged, "k1", fix=True)
    for e_ in notes[:40]:
        print("NOTE", e_, file=sys.stderr)
    errs = check_hazards(tagged, "k1")
    assert not errs, errs[:5]
    seg = {}
    cur = None
    for ins in tagged:
        if ins.kind == "label" and ins.text.startswith("@@"):
            cur = ins.text[2:]; seg[cur] = []
        else:
            seg[cur].append(ins)
    def cat(names): return [x for n in names for x in seg[n]]
    qloop = cat([f"q{c}" for c in range(4, 8)])
    for it in range(2, 5):
        assert same_text(qloop, cat([f"q{c}" for c in range(4 * it, 4 * it + 4)])), f"Q loop iteration {it} differs"
    aloop = cat([f"e{e}" for e in range(2, 6)])
    for it in range(1, 7):
        other = cat([f"e{e}" for e in range(2 + 4 * it, 6 + 4 * it)])
        if not same_text(aloop, other):
            for x, y in zip(aloop, other):
                if x.text != y.text:
                    print("DIFF", it, x.text, "|", y.text, file=sys.stderr); break
            raise Exception(f"A loop iteration {it} differs")
    E = lambda st: emit(st)
    lines += E(seg["setup_q"]) + E(seg["init"])
    lines.append("L1_task:")
    lines += E(seg["kvset"]) + E(seg["qpre"])
    lines += E(cat(["q0", "q1", "q2", "q3"]))
    lines.append(f"    s_mov_b32 {s(S_CNT)}, 4")
    lines.append(".p2align 6")
    lines.append("L1_qloop:")
    lines += E(qloop)
    lines += [f"    s_sub_u32 {s(S_CNT)}, {s(S_CNT)}, 1", f"    s_cmp_lg_u32 {s(S_CNT)}, 0", "    s_cbranch_scc1 L1_qloop"]
    lines += E(seg["mid"]) + E(seg["apre"]) + E(seg["conv"])
    lines += E(cat(["e0", "e1"]))
    lines.append(f"    s_mov_b32 {s(S_CNT)}, 7")
    lines.append(".p2align 6")
    lines.append("L1_aloop:")
    lines += E(aloop)
    lines += [f"    s_sub_u32 {s(S_CNT)}, {s(S_CNT)}, 1", f"    s_cmp_lg_u32 {s(S_CNT)}, 0", "    s_cbranch_scc1 L1_aloop"]
    lines += E(cat(["e30", "e31", "e32"]))
    lines += E(seg["epi1"]) + E(seg["epi2"])
    lines += [f"    s_cmp_eq_u32 {s(S_T2)}, 0", "    s_cbranch_scc1 L1_task"]
    lines.append("L1_done:")
    lines.append("    s_endpgm")
    return lines


def kernel_desc(name, vgpr, accum, sgpr=102):
    return [f".amdhsa_kernel {name}",
            f"  .amdhsa_next_free_vgpr {vgpr}", f"  .amdhsa_next_free_sgpr {sgpr}", f"  .amdhsa_accum_offset {accum}",
            "  .amdhsa_group_segment_fixed_size 0", "  .amdhsa_kernarg_size 104",
            "  .amdhsa_user_sgpr_count 2", "  .amdhsa_user_sgpr_kernarg_segment_ptr 1",
            "  .amdhsa_system_sgpr_workgroup_id_x 1", "  .amdhsa_float_denorm_mode_32 3", ".end_amdhsa_kernel"]


HEADER = open("cdna_kernels/" + NAME + ".s.ref").read().split("; Override launch")[0]

def build(only_k1=False):
    from gen_k2 import build_k2, LDS2
    out = [HEADER.rstrip("\n")]
    out.append(f"; @launch kernel={K1} grid=(256,1,1) block=(256,1,1) lds={LDS1}")
    if not only_k1:
        out.append(f"; @launch kernel={K2} grid=(256,1,1) block=(256,1,1) lds={LDS2}")
    out.append('.amdgcn_target "amdgcn-amd-amdhsa--gfx950"')
    out.append(".text")
    for nm, body in ((K1, build_k1()), (K2, build_k2())):
        out += [f".globl {nm}", ".p2align 8", f".type {nm},@function", f"{nm}:"]
        out += body
    out += ['.section .rodata,"a"', ".p2align 6"]
    out += kernel_desc(K1, 512, 256)
    out += [".p2align 6"]
    out += kernel_desc(K2, 336, 232)
    return "\n".join(out) + "\n"

if __name__ == "__main__":
    txt = build()
    path = sys.argv[1] if len(sys.argv) > 1 else "cdna_kernels/" + NAME + ".s"
    open(path, "w").write(txt)
    print("wrote", path, len(txt), "bytes")
```

```python
from asmlib import *
LDS2 = 81920
def s(n): return f"s{n}"
def srd(n): return f"s[{n}:{n+3}]"
sWO, sOi, sOut = 8, 12, 16
S_W, S_KP, S_QH, S_WOFF, S_OOFF, S_LW, S_CNT, S_T0, S_T1, S_OUTOFF = 20, 21, 22, 23, 24, 25, 26, 27, 28, 29
vWd = 8
vOd = 13
vAr = 18
vOut = 19
vRed = 20
vAr2 = 21
vB = 32
vA = 192
SLOT = 20480
def BF(buf, i2, q): return V(vB + ((buf * 2 + i2) * 5 + q) * 4, 4)
def AF(i2, t): return V(vA + (i2 * 5 + t) * 4, 4)
def acc(t, q): return A((t * 5 + q) * 4, 4)

class Timeline:
    def __init__(self):
        self.m = {}; self.n = {}; self.v = {}
    def mfma(self, t, ins): self.m[t] = ins
    def N(self, t, ins): self.n.setdefault(t, []).append(ins)
    def stream(self, t0, t1, fill_nop=True):
        out = []
        for t in range(t0, t1):
            if t in self.m: out.append(self.m[t])
            elif fill_nop: out.append(nop(0))
            out += self.n.get(t, [])
        return out

def wo_dma(st):
    out = []
    out.append(salu(f"s_add_u32 m0, {s(S_LW)}, {(st % 4) * SLOT}", [], ["m0"]) if st % 4 else salu(f"s_mov_b32 m0, {s(S_LW)}", [], ["m0"]))
    for j in range(4):
        t = f"buffer_load_dwordx4 v{vWd + j}, {srd(sOi)}, {s(S_WOFF)} offen" + (f" offset:{1024*j}" if j else "") + " lds"
        out.append(I(t, "dma", [f"v{vWd+j}", "m0"], [], tag=("wo", st)))
    out.append(salu(f"s_add_u32 m0, {s(S_LW)}, {(st % 4) * SLOT + 4096}", [], ["m0"]))
    out.append(I(f"buffer_load_dwordx4 v{vWd + 4}, {srd(sOi)}, {s(S_WOFF)} offen lds", "dma", [f"v{vWd+4}", "m0"], [], tag=("wo", st)))
    out.append(salu(f"s_add_u32 {s(S_WOFF)}, {s(S_WOFF)}, 4096"))
    return out

def o_loads(st):
    out = []
    for i2 in range(2):
        for q in range(5):
            d = BF(st % 4, i2, q)
            t = f"buffer_load_dwordx4 {d}, v{vOd + q}, {srd(sOi)}, {s(S_OOFF)} offen" + (f" offset:{2048*i2}" if i2 else "")
            out.append(I(t, "vmem", [f"v{vOd+q}"], d.regs(), tag=("O", st)))
    out.append(salu(f"s_add_u32 {s(S_OOFF)}, {s(S_OOFF)}, 4096"))
    return out

import os
DBG = os.environ.get('K2DBG', '')
def build_k2():
    L = []; a = L.append
    a("    s_cmp_ge_u32 s2, 256"); a("    s_cbranch_scc1 L2_done")
    P = []
    p = P.append
    p("s_load_dwordx2 s[30:31], s[0:1], 80")
    p("s_load_dwordx2 s[32:33], s[0:1], 96")
    p("v_lshrrev_b32 v1, 6, v0")
    p("v_and_b32 v2, 63, v0")
    p(f"v_readfirstlane_b32 {s(S_W)}, v1")
    p("s_and_b32 s3, s2, 7")
    p("s_lshr_b32 s34, s2, 3")
    p("s_and_b32 s35, s34, 7")
    p("s_lshr_b32 s34, s34, 3")
    p("s_lshl_b32 s36, s3, 2")
    p("s_add_u32 s36, s36, s34")
    p("s_lshr_b32 s37, s36, 4")
    p("s_and_b32 s38, s36, 15")
    p(f"s_lshr_b32 {s(S_KP)}, {s(S_W)}, 1")
    p(f"s_and_b32 {s(S_QH)}, {s(S_W)}, 1")
    p("s_waitcnt lgkmcnt(0)")
    def mk(n, lo, hi, size):
        p(f"s_mov_b32 s{n}, s{lo}"); p(f"s_and_b32 s{n+1}, s{hi}, 0xffff"); p(f"s_mov_b32 s{n+2}, {size}"); p(f"s_mov_b32 s{n+3}, 0x20000")
    mk(sOi, 32, 33, (42 << 20) + 2 * 40 * 128 * 1024)
    mk(sOut, 30, 31, 16 * 160 * 2560)
    p(f"s_mul_i32 {s(S_T0)}, s37, 40")
    p(f"s_mul_i32 {s(S_T1)}, s35, 5")
    p(f"s_add_u32 {s(S_T0)}, {s(S_T0)}, {s(S_T1)}")
    p(f"s_lshl_b32 {s(S_T0)}, {s(S_T0)}, 7")
    p(f"s_add_u32 {s(S_T0)}, {s(S_T0)}, {s(S_W)}")
    p(f"s_lshl_b32 {s(S_T0)}, {s(S_T0)}, 10")
    p(f"s_add_u32 {s(S_WOFF)}, {s(S_T0)}, {42 << 20}")
    p(f"s_mul_i32 {s(S_LW)}, {s(S_W)}, 5120")
    p(f"s_mul_i32 {s(S_T0)}, s36, 10")
    p(f"s_mul_i32 {s(S_T1)}, {s(S_QH)}, 5")
    p(f"s_add_u32 {s(S_T0)}, {s(S_T0)}, {s(S_T1)}")
    p(f"s_lshl_b32 {s(S_T0)}, {s(S_T0)}, 7")
    p(f"s_add_u32 {s(S_T0)}, {s(S_T0)}, {s(S_KP)}")
    p(f"s_lshl_b32 {s(S_OOFF)}, {s(S_T0)}, 10")
    p(f"s_mul_i32 {s(S_T0)}, s38, 160")
    p(f"s_mul_i32 {s(S_T1)}, {s(S_QH)}, 80")
    p(f"s_add_u32 {s(S_T0)}, {s(S_T0)}, {s(S_T1)}")
    p(f"s_mul_i32 {s(S_OUTOFF)}, {s(S_T0)}, 2560")
    p(f"s_mul_i32 {s(S_T0)}, s37, 1280")
    p(f"s_add_u32 {s(S_OUTOFF)}, {s(S_OUTOFF)}, {s(S_T0)}")
    p(f"s_mul_i32 {s(S_T0)}, s35, 160")
    p(f"s_add_u32 {s(S_OUTOFF)}, {s(S_OUTOFF)}, {s(S_T0)}")
    p("v_and_b32 v3, 15, v2"); p("v_lshrrev_b32 v4, 4, v2")
    p("v_lshlrev_b32 v5, 4, v2")
    for q in range(5):
        p(f"v_add_u32 v{vOd+q}, {q*131072}, v5")
        p(f"v_add_u32 v{vWd+q}, {q*131072 - (1024*q if q < 4 else 0)}, v5")
    p(f"s_mul_i32 {s(S_T0)}, {s(S_KP)}, 5120")
    p(f"v_add_u32 v{vAr}, {s(S_T0)}, v5")
    p(f"v_add_u32 v{vAr2}, {2*SLOT}, v{vAr}")
    p("v_mul_u32_u24 v6, 2560, v3"); p(f"v_lshl_add_u32 v{vOut}, v4, 3, v6")
    p(f"s_mul_i32 {s(S_T0)}, {s(S_QH)}, 25600")
    p(f"v_add_u32 v{vRed}, {s(S_T0)}, v5")
    L += ["    " + x for x in P]

    II = 50; NS = 32
    tl = Timeline()
    init = []
    for st in range(4):
        w_ = wo_dma(st)
        init += w_[:1] + [nop(0)] + w_[1:6] + [nop(0)] + w_[6:]
        init += o_loads(st)
        if st == 3: pass
    for st in range(-1, NS):
        T = st * II
        if st >= 0:
            for t in range(II):
                i2, tt, q = t // 25, (t % 25) // 5, t % 5
                first = (st == 0 and i2 == 0)
                tl.mfma(T + t, mfma16(acc(tt, q), AF(i2, tt), BF(st % 4, i2, q), 0 if first else acc(tt, q)))
        n = st + 1
        if n < NS:
            tl.N(T + 36, I("s_waitcnt lgkmcnt(0)", "wait", info="lgkm0"))
            tl.N(T + 37, I("s_waitcnt vmcnt(?)", "wait", info=("vm", [("wo", n), ("O", n)], None)))
            tl.N(T + 38, I("s_barrier", "barrier"))
            for i2 in range(2):
                for tt in range(5):
                    t = T + 39 + 2 * tt if i2 == 0 else T + 50 + 2 * tt
                    tl.N(t, ds_read("ds_read_b128", AF(i2, tt), V(vAr if n % 4 < 2 else vAr2), (n % 2) * SLOT + i2 * 10240 + 1024 * tt))
            if st >= 0 and st + 4 < NS:
                w = wo_dma(st + 4)
                tl.N(T + 59, w[0])
                for j in range(4): tl.N(T + 60 + j, w[1 + j])
                tl.N(T + 63, w[5])
                tl.N(T + 64, w[6])
                tl.N(T + 65, w[7])
                ol = o_loads(st + 4)
                for j in range(10): tl.N(T + 66 + j, ol[j])
                tl.N(T + 76, ol[10])
    pre = tl.stream(-II + 36, 0, fill_nop=False)
    stages = [tl.stream(st * II, (st + 1) * II) for st in range(NS)]
    flat = []
    def mark(n): flat.append(I(f"@@{n}", "label"))
    mark("init"); flat += init
    mark("pre"); flat += pre + [I("s_waitcnt lgkmcnt(0)", "wait", info="lgkm0")]
    for st in range(NS):
        mark(f"s{st}"); flat += stages[st]
    resolve_vm_waits(flat)
    flat = insert_lgkm_waits(flat, lat=6)
    errs = check_hazards(flat, "k2")
    assert not errs, errs[:5]
    seg = {}; cur = None
    for ins in flat:
        if ins.kind == "label" and ins.text.startswith("@@"):
            cur = ins.text[2:]; seg[cur] = []
        else: seg[cur].append(ins)
    cat = lambda names: [x for n in names for x in seg[n]]
    txt = lambda st: [x.text for x in st]
    body = cat([f"s{k}" for k in range(4, 8)])
    for it in range(1, 6):
        assert txt(body) == txt(cat([f"s{k}" for k in range(4 + 4 * it, 8 + 4 * it)])), f"k2 iteration {it}"
    if DBG:
        def filt(st):
            o = []
            for x in st:
                if 'm' in DBG and x.kind == 'mfma': continue
                if 'o' in DBG and x.kind == 'vmem': continue
                if 'w' in DBG and x.kind == 'dma': continue
                if 'l' in DBG and x.kind == 'lds': continue
                if 'b' in DBG and x.kind == 'barrier': continue
                o.append(x)
            return o
        for k in list(seg.keys()):
            if k.startswith('s'): seg[k] = filt(seg[k])
        body = cat([f"s{k}" for k in range(4, 8)])
    L += emit(seg["init"]) + emit(seg["pre"]) + emit(cat(["s0", "s1", "s2", "s3"]))
    L.append(f"    s_mov_b32 {s(S_CNT)}, 6")
    L.append(".p2align 6"); L.append("L2_loop:")
    L += emit(body)
    L += [f"    s_sub_u32 {s(S_CNT)}, {s(S_CNT)}, 1", f"    s_cmp_lg_u32 {s(S_CNT)}, 0", "    s_cbranch_scc1 L2_loop"]
    L += emit(cat(["s28", "s29", "s30", "s31"]))
    F = []; f = F.append
    f("s_waitcnt vmcnt(0) lgkmcnt(0)")
    f("s_nop 7")
    f("s_barrier")
    f(f"s_cmp_eq_u32 {s(S_KP)}, 0"); f("s_cbranch_scc1 L2_recv")
    for k in range(25):
        f(f"ds_write_b128 v{vRed}, a[{4*k}:{4*k+3}] offset:{k*1024}")
    f("s_waitcnt lgkmcnt(0)")
    f("s_barrier")
    f("s_branch L2_done")
    F.append("L2_recv:")
    f("s_barrier")
    for k in range(25):
        f(f"ds_read_b128 v[{vB+4*k}:{vB+4*k+3}], v{vRed} offset:{k*1024}")
        if k % 8 == 7 or k == 24:
            f("s_waitcnt lgkmcnt(0)")
    for tt in range(5):
        for q in range(5):
            k = tt * 5 + q
            r = vB + 4 * k
            for j in range(4):
                f(f"v_accvgpr_read_b32 v{vA + j}, a{4*k + j}")
            for j in range(4):
                f(f"v_add_f32 v{r + j}, v{r + j}, v{vA + j}")
            f(f"v_cvt_pk_bf16_f32 v{r}, v{r}, v{r+1}")
            f(f"v_cvt_pk_bf16_f32 v{r+1}, v{r+2}, v{r+3}")
            f(f"s_add_u32 {s(S_T0)}, {s(S_OUTOFF)}, {q*16*2560}")
            f(f"buffer_store_dwordx2 v[{r}:{r+1}], v{vOut}, {srd(sOut)}, {s(S_T0)} offen offset:{32*tt}")
    for x in F:
        L.append(x if x.endswith(":") else "    " + x)
    L.append("L2_done:"); L.append("    s_endpgm")
    return L
```

```python
import sys, math, struct
from asmlib import *

NAME = "concat_heads__mha_block_cached__mha_block_cached__near_ridge"
K1 = "mha_attn_kernel"
K2 = "mha_oproj_kernel"

def fbits(x):
    return struct.unpack("<I", struct.pack("<f", x))[0]

KR = 0
VR = 65536
XR = 131072
XSLOT = 20480
FLAGS = XR
LDS1 = 163840
WF_BASE = 42 << 20
WS_USED = (64 << 20) + 256 * 81920
STAMP_BASE = 56 << 20

sX, sWQ, sK, sV, sO = 8, 12, 16, 20, 24
sWO = 88
S_W, S_HSEL, S_HALF, S_TASK, S_B, S_H = 28, 29, 30, 31, 32, 33
S_KOFF, S_VOFF, S_XOFF, S_WQOFF, S_XWR, S_XRD, S_CNT = 34, 35, 36, 37, 38, 39, 40
S_LK, S_LV, S_C, S_KQS, S_KQM, S_HOFF, S_OOFF = 41, 42, 44, 72, 46, 47, 48
S_KQSMAX, S_KQMMAX, S_B0, S_XW0 = 49, 50, 51, 43
S_T0, S_T1, S_T2, S_T3 = 68, 69, 70, 71
S_XWEND = 73
S_PFX, S_PFW, S_PAIR = 80, 81, 82
S_WQST, S_WQEND, S_XST, S_XEND, S_ROT = 92, 93, 94, 95, 96
PF = False
ROT = False
MAP2 = False
S_TYPE, S_PASS, S_ADONE, S_BQ, S_BA, S_B8, S_QS, S_STK = 97, 98, 99, 100, 32, 83, 72, 79
QS_BASE = 64 << 20
XY = True
XSEL = "odd"
S_TASKI = 79
def s(n): return f"s{n}"
def srd(n): return f"s[{n}:{n+3}]"

vQ, vS, vP = 16, 96, 136
vKr, vVr, vWr, vXr, vXpat = 176, 180, 188, 192, 232
vKd, vVd, vWd, vXd = 194, 198, 200, 234
vL = 207
vOst = 212
vPfX, vPfW, vDum = 213, 214, 12
vT = 216
aO, aKF, aVF = 0, 160, 192

def Qf(qt, st): return V(vQ + (qt * 4 + st) * 4, 4)
def Sf(kt, qt): return V(vS + (kt * 5 + qt) * 4, 4)
def Pf(par, qt): return V(vP + (par * 5 + qt) * 4, 4)
def KF(kt, st): return A(aKF + (kt * 4 + st) * 4, 4)
def VF(dt): return A(aVF + dt * 4, 4)
def Of(dt, qt): return A(aO + (dt * 5 + qt) * 4, 4)

def dma(voff, srdn, soff, ioff, nt, tag):
    t = f"buffer_load_dwordx4 v{voff}, {srd(srdn)}, {soff} offen"
    if ioff: t += f" offset:{ioff}"
    if nt: t += " nt"
    t += " lds"
    return I(t, "dma", [f"v{voff}", "m0"], [], tag=tag)

def set_m0(base_s, const):
    if const == 0:
        return salu(f"s_mov_b32 m0, {s(base_s)}", [], ["m0"])
    return salu(f"s_add_u32 m0, {s(base_s)}, {const}", [], ["m0"])

def vmwait(tags, lgkm0=False, cap=None):
    t = "s_waitcnt vmcnt(?)" + (" lgkmcnt(0)" if lgkm0 else "")
    return I(t, "wait", info=("vm", tags, cap))

def lgkm0():
    return I("s_waitcnt lgkmcnt(0)", "wait", info="lgkm0")

def barrier():
    return I("s_barrier", "barrier")


class Timeline:
    def __init__(self):
        self.m = {}; self.n = {}; self.v = {}
    def mfma(self, t, ins):
        assert t not in self.m, t
        self.m[t] = ins
    def N(self, t, ins):
        self.n.setdefault(t, []).append(ins)
    def Vv(self, t, ins):
        self.v.setdefault(t, []).append(ins)
    def stream(self, t0, t1, fill_nop=True):
        out = []
        for t in range(t0, t1):
            if t in self.m:
                out.append(self.m[t])
            elif fill_nop:
                out.append(nop(0))
            out += self.n.get(t, [])
            out += self.v.get(t, [])
        return out


def lgkm0_mark(ins):
    return ins


def x_dma(sc, m0_ins, soff=None, tg="x"):
    soff = S_XOFF if soff is None else soff
    out = [m0_ins]
    for j in range(4):
        out.append(dma(vXd + j, sX, s(soff), 1024 * j, False, (tg, sc)))
    out.append(salu("s_add_u32 m0, m0, 4096", ["m0"], ["m0"]))
    out.append(dma(vXd + 4, sX, s(soff), 0, False, (tg, sc)))
    out.append(salu(f"s_add_u32 {s(S_XOFF)}, {s(S_XOFF)}, 128"))
    out.append(salu(f"s_cmp_lt_u32 {s(S_XOFF)}, {s(S_XEND)}"))
    out.append(salu(f"s_cselect_b32 {s(S_XOFF)}, {s(S_XOFF)}, {s(S_XST)}"))
    return out

def wq_advance():
    return [salu(f"s_add_u32 {s(S_WQOFF)}, {s(S_WQOFF)}, {32*8192}"),
            salu(f"s_cmp_lt_u32 {s(S_WQOFF)}, {s(S_WQEND)}"),
            salu(f"s_cselect_b32 {s(S_WQOFF)}, {s(S_WQOFF)}, {s(S_WQST)}")]

def pf_loads():
    out = []
    if PF:
        for j in range(2):
            out.append(I(f"buffer_load_dword v{vDum}, v{vPfX}, {srd(sX)}, {s(S_PFX)} offen", "vmem", [f"v{vPfX}"], [f"v{vDum}"], tag=("pf", 0)))
            out.append(salu(f"s_add_u32 {s(S_PFX)}, {s(S_PFX)}, 8192"))
        for j in range(2):
            out.append(I(f"buffer_load_dword v{vDum}, v{vPfW}, {srd(sWQ)}, {s(S_PFW)} offen", "vmem", [f"v{vPfW}"], [f"v{vDum}"], tag=("pf", 1)))
            out.append(salu(f"s_add_u32 {s(S_PFW)}, {s(S_PFW)}, {64*8192}"))
    return out

def wo_convert_load():
    out = []
    out.append(salu(f"s_and_b32 {s(S_T0)}, s2, 127"))
    out.append(salu(f"s_mul_i32 {s(S_T0)}, {s(S_T0)}, 40960"))
    out.append(salu(f"s_mul_i32 {s(S_T1)}, {s(S_W)}, 10240"))
    out.append(salu(f"s_add_u32 {s(S_T0)}, {s(S_T0)}, {s(S_T1)}"))
    for grp in range(3):
        out.append(salu(f"s_add_u32 m0, {s(S_T1)}, {grp*4096}", [], ["m0"]))
        out.append(nop(0))
        for j in range(4 if grp < 2 else 2):
            out.append(dma(vOst, sWO, s(S_T0), 1024 * j, False, ("cv", 0)))
        out.append(salu(f"s_add_u32 {s(S_T0)}, {s(S_T0)}, 4096"))
    return out

def wo_convert_store(nyounger):
    out = []
    out.append(I(f"s_waitcnt vmcnt({nyounger})", "wait", info="fixed"))
    out.append(barrier())
    t = vT
    out.append(valu(f"v_lshrrev_b32 v{t}, 6, v{vOst}", [], [f"v{t}"]))
    out.append(valu(f"v_mul_u32_u24 v{t}, 1280, v{t}", [f"v{t}"], [f"v{t}"]))
    out.append(valu(f"v_lshrrev_b32 v{t+1}, 4, v{vOst}", [], [f"v{t+1}"]))
    out.append(valu(f"v_and_b32 v{t+1}, 3, v{t+1}", [f"v{t+1}"], [f"v{t+1}"]))
    out.append(valu(f"v_lshl_add_u32 v{t}, v{t+1}, 3, v{t}", [f"v{t}", f"v{t+1}"], [f"v{t}"]))
    out.append(salu(f"s_mul_i32 {s(S_T0)}, {s(S_W)}, 320"))
    out.append(valu(f"v_add_u32 v{t}, {s(S_T0)}, v{t}", [f"v{t}"], [f"v{t}"]))
    for tt in range(10):
        for u in range(2):
            out.append(ds_read("ds_read_b64_tr_b16", V(vS + 4 * tt + 2 * u, 2), V(t), u * 20480 + 32 * tt))
        if tt == 4: out.append(lgkm0())
    out.append(lgkm0())
    out.append(salu(f"s_lshr_b32 {s(S_T0)}, s2, 7"))
    out.append(salu(f"s_mul_i32 {s(S_T0)}, {s(S_T0)}, 40"))
    out.append(salu(f"s_mul_i32 {s(S_T1)}, {s(S_W)}, 10"))
    out.append(salu(f"s_add_u32 {s(S_T0)}, {s(S_T0)}, {s(S_T1)}"))
    out.append(salu(f"s_lshl_b32 {s(S_T0)}, {s(S_T0)}, 7"))
    out.append(salu(f"s_and_b32 {s(S_T1)}, s2, 127"))
    out.append(salu(f"s_add_u32 {s(S_T0)}, {s(S_T0)}, {s(S_T1)}"))
    out.append(salu(f"s_lshl_b32 {s(S_T0)}, {s(S_T0)}, 10"))
    out.append(salu(f"s_add_u32 {s(S_T0)}, {s(S_T0)}, {WF_BASE}"))
    for tt in range(10):
        d = vS + 4 * tt
        out.append(I(f"buffer_store_dwordx4 v[{d}:{d+3}], v{vOst}, {srd(sO)}, {s(S_T0)} offen", "vmem", regs("v", d, 4) + [f"v{vOst}"], [], tag=("cv", 1)))
        out.append(salu(f"s_add_u32 {s(S_T0)}, {s(S_T0)}, 131072"))
    out.append(barrier())
    return out

def q_groups_initial(first=False):
    out = []
    def wq(c):
        out.append(set_m0(S_LV, (c % 4) * 16384))
        out.append(nop(0))
        for j in range(4):
            out.append(dma(vWd + j, sWQ, s(S_WQOFF), 1024 * j, False, ("wq", c)))
        out.extend(wq_advance())
    def x(sc):
        g = x_dma(sc, set_m0(S_XW0, ((sc + 2) % 3) * XSLOT))
        out.extend([g[0], nop(0)] + g[1:6] + [nop(0)] + g[6:])
    if first:
        out += pf_loads()
    wq(0); x(0); wq(1); wq(2)
    x(1)
    if not first:
        out += pf_loads()
    out.append(salu(f"s_add_u32 {s(S_XWR)}, {s(S_XW0)}, {1*XSLOT}"))
    out.append(salu(f"s_mov_b32 {s(S_XRD)}, {2*XSLOT}"))
    return out


def k_tile_dma(n):
    out = [set_m0(S_LK, (n % 4) * 16384)]
    for j in range(4):
        out.append(dma(vKd + j, sK, s(S_KOFF), 1024 * j, True, ("K", n)))
    out.append(salu(f"s_add_u32 {s(S_KOFF)}, {s(S_KOFF)}, 8192"))
    return out

def v_tile_dma(n):
    out = [set_m0(S_LV, (n % 4) * 16384)]
    for j in range(4):
        out.append(dma(vVd + (j & 1), sV, s(S_VOFF), 1024 * j, True, ("V", n)))
    out.append(salu(f"s_add_u32 {s(S_VOFF)}, {s(S_VOFF)}, 8192"))
    return out


def q_phase(stash=False):
    II = 40
    tl = Timeline()
    NCH = 20
    def AF(dt): return A(aKF + dt * 4, 4)
    def BF(par, qt): return V(vS + (par * 5 + qt) * 4, 4)
    def acc(dt, qt): return A(aO + (dt * 5 + qt) * 4, 4)
    for c in range(-1, NCH):
        T = c * II
        if c >= 0:
            for t in range(II):
                dt, qt = t // 5, t % 5
                tl.mfma(T + t, mfma16(acc(dt, qt), AF(dt), BF(c & 1, qt), 0 if c == 0 else acc(dt, qt)))
        n = c + 1
        if n < NCH:
            tl.N(T + 24, lgkm0())
            tl.N(T + 25, vmwait([("x", n >> 1), ("wq", n)]))
            tl.N(T + 26, barrier())
            tl.Vv(T + 26, valu(f"v_add_u32 v{vXr}, {s(S_XRD)}, v{vXpat + (n & 1)}", [f"v{vXpat + (n & 1)}"], [f"v{vXr}"]))
            slot = n % 4
            def rdB(t, qt):
                tl.N(T + t, ds_read("ds_read_b128", BF(n & 1, qt), V(vXr), qt * 2048))
            def rdA(t, dt, u):
                st, odd = dt // 2, dt % 2
                tl.N(T + t, ds_read("ds_read_b64_tr_b16", AF(dt).sub(2 * u, 2), V(vWr + st), slot * 16384 + u * 1024 + odd * 8))
            rdB(27, 0); rdA(28, 0, 0); rdA(29, 0, 1); rdB(30, 1); rdB(31, 2); rdB(32, 3); rdB(33, 4)
            rdA(34, 1, 0); rdA(35, 1, 1); rdA(36, 2, 0); rdA(37, 2, 1); rdA(38, 3, 0); rdA(39, 3, 1)
            rdA(50, 4, 0); rdA(51, 4, 1); rdA(52, 5, 0); rdA(53, 5, 1); rdA(54, 6, 0); rdA(55, 6, 1); rdA(56, 7, 0); rdA(57, 7, 1)
            if n & 1:
                tl.N(T + 58, salu(f"s_add_u32 {s(S_XRD)}, {s(S_XRD)}, {XSLOT}"))
                tl.N(T + 59, salu(f"s_cmp_eq_u32 {s(S_XRD)}, {3*XSLOT}"))
                tl.N(T + 59, salu(f"s_cselect_b32 {s(S_XRD)}, 0, {s(S_XRD)}"))
            t = T + 40
            if n + 3 < NCH:
                tl.N(T + 39, set_m0(S_LV, ((n + 3) % 4) * 16384))
                for j in range(4):
                    tl.N(t + j, dma(vWd + j, sWQ, s(S_WQOFF), 1024 * j, False, ("wq", n + 3)))
                wa = wq_advance()
                tl.N(T + 60, wa[0]); tl.N(T + 63, wa[1]); tl.N(T + 63, wa[2])
            if n % 2 == 0 and n // 2 + 2 < NCH // 2:
                g = x_dma(n // 2 + 2, salu(f"s_mov_b32 m0, {s(S_XWR)}", [], ["m0"]))
                tl.N(T + 43, g[0])
                for j in range(4):
                    tl.N(T + 44 + j, g[1 + j])
                tl.N(T + 47, g[5])
                tl.N(T + 48, g[6])
                tl.N(T + 49, g[7])
                tl.N(T + 64, g[8]); tl.N(T + 64, g[9])
                tl.N(T + 61, salu(f"s_add_u32 {s(S_XWR)}, {s(S_XWR)}, {XSLOT}"))
                tl.N(T + 62, salu(f"s_cmp_eq_u32 {s(S_XWR)}, {s(S_XWEND)}"))
                tl.N(T + 62, salu(f"s_cselect_b32 {s(S_XWR)}, {s(S_XW0)}, {s(S_XWR)}"))
            early = {17: [("K", 0), ("V", 0)], 18: [("V", 1)], 19: [("K", 1), ("V", 2)]}
            if not stash and n in early:
                tt = T + 39
                for kind, idx in early[n]:
                    g = k_tile_dma(idx) if kind == "K" else v_tile_dma(idx)
                    tl.N(tt, g[0])
                    for j in range(4):
                        tl.N(tt + 1 + j, g[1 + j])
                    tl.N(tt + 4, g[5])
                    tt += 5
            if stash:
                def wq2(c, tt):
                    tl.N(tt, set_m0(S_LV, (c % 4) * 16384))
                    for j in range(4):
                        tl.N(tt + 1 + j, dma(vWd + j, sWQ, s(S_WQOFF), 1024 * j, False, ("wq2", c)))
                    wa = wq_advance()
                    tl.N(tt + 5, wa[0]); tl.N(tt + 6, wa[1]); tl.N(tt + 6, wa[2])
                if n == 16:
                    su = [salu(f"s_mov_b32 {s(S_BQ)}, {s(S_B0)}")] + task_setup_q()
                    for k_, ins in enumerate(su):
                        tl.N(T + 65 + k_ // 2, ins)
                if n == 17:
                    wq2(0, T + 39)
                    tl.N(T + 46, salu(f"s_add_u32 {s(S_T1)}, {s(S_XOFF)}, 128"))
                    g = x_dma(1, set_m0(S_XW0, 0), soff=S_T1, tg="x2")
                    tl.N(T + 47, g[0])
                    for j in range(4):
                        tl.N(T + 48 + j, g[1 + j])
                    tl.N(T + 51, g[5])
                    tl.N(T + 52, g[6])
                if n == 18: wq2(1, T + 39)
                if n == 19: wq2(2, T + 39)
    pre = tl.stream(-II + 24, 0, fill_nop=False)
    chunks = [tl.stream(c * II, (c + 1) * II) for c in range(NCH)]
    return pre, chunks


def q_convert():
    out = []
    for qt in range(5):
        for st in range(4):
            t0 = vT + ((qt * 4 + st) % 2) * 8
            for odd in range(2):
                src = Of(2 * st + odd, qt)
                for j in range(4):
                    out.append(valu(f"v_accvgpr_read_b32 v{t0 + odd*4 + j}, a{src.b + j}", [f"a{src.b+j}"], [f"v{t0+odd*4+j}"]))
            for p in range(4):
                r = t0 + 2 * p
                out.append(valu(f"v_pk_mul_f32 v[{r}:{r+1}], v[{r}:{r+1}], s[{S_C}:{S_C+1}]", [f"v{r}", f"v{r+1}"], [f"v{r}", f"v{r+1}"]))
            q = Qf(qt, st)
            for p in range(4):
                out.append(valu(f"v_cvt_pk_bf16_f32 v{q.b + p}, v{t0 + 2*p}, v{t0 + 2*p + 1}", [f"v{t0+2*p}", f"v{t0+2*p+1}"], [f"v{q.b+p}"]))
    return out


def a_phase(next_task_loads):
    II = 80
    tl = Timeline()
    NE = 32
    simple = [0,1,2,7,8,9] + list(range(10, 20)) + [24,25,26,31,32,33,38,39,40,45,46,47,52,53,54,59,60,61,66,67,68,73,74,75]
    kt0_reads = [66, 67, 68, 73]
    kt1_reads = [74, 75, 80, 81]
    dma_t = [82, 87, 88, 89, 90, 91, 92, 93]
    v_reads = [94,95,96,97,98,99,104,105,106,111,112,113,118,119,120,125]
    for e in range(-1, NE + 1):
        T = e * II
        if 0 <= e < NE:
            for t in range(40):
                kt, st, qt = t // 20, (t % 20) // 5, t % 5
                tl.mfma(T + t, mfma16(Sf(kt, qt), KF(kt, st), Qf(qt, st), 0 if st == 0 else Sf(kt, qt)))
        if 1 <= e <= NE:
            for t in range(40):
                dt, qt = t // 5, t % 5
                tl.mfma(T + 40 + t, mfma16(Of(dt, qt), VF(dt), Pf((e - 1) & 1, qt), 0 if e == 1 else Of(dt, qt)))
        if 0 <= e < NE:
            for kt in range(2):
                t = T + 20 + 35 * kt
                for qt in range(5):
                    S = Sf(kt, qt); P = Pf(e & 1, qt)
                    for j in range(4):
                        r = f"v{S.b + j}"
                        tl.Vv(t + j, valu(f"v_exp_f32 {r}, {r}", [r], [r], trans=True))
                    L = f"v{vL + qt}"
                    for j in range(4):
                        r = f"v{S.b + j}"
                        if e == 0 and kt == 0 and j == 0:
                            tl.Vv(t + 4, valu(f"v_mov_b32 {L}, {r}", [r], [L]))
                        else:
                            tl.Vv(t + 4 + j // 2, valu(f"v_add_f32 {L}, {L}, {r}", [L, r], [L]))
                    for jj in range(2):
                        d = f"v{P.b + 2*kt + jj}"
                        tl.Vv(t + 6, valu(f"v_cvt_pk_bf16_f32 {d}, v{S.b + 2*jj}, v{S.b + 2*jj + 1}", [f"v{S.b+2*jj}", f"v{S.b+2*jj+1}"], [d]))
                    t += 7
        n = e + 1
        if n <= NE:
            if e >= 0:
                tags = []
                if n < NE: tags.append(("K", n))
                tags.append(("V", e))
                tl.N(T + 63, lgkm0())
                tl.N(T + 64, vmwait(tags, cap=(0 if e == 31 else None)))
                tl.N(T + 65, barrier())
            if n < NE:
                slot = n % 4
                for st in range(4):
                    tl.N(T + kt0_reads[st], ds_read("ds_read_b128", KF(0, st), V(vKr + st), slot * 16384))
                    tl.N(T + kt1_reads[st], ds_read("ds_read_b128", KF(1, st), V(vKr + st), slot * 16384 + 4096))
            if 0 <= e < NE:
                slot = e % 4
                for dt in range(8):
                    for u in range(2):
                        tl.N(T + v_reads[2 * dt + u], ds_read("ds_read_b64_tr_b16", VF(dt).sub(2 * u, 2), V(vVr + dt), slot * 16384 + u * 4096))
            if 0 <= e <= 29:
                kn, vn = e + 4, e + 3
                tl.N(T + 79, set_m0(S_LK, (kn % 4) * 16384))
                for j in range(4):
                    tl.N(T + dma_t[j], dma(vKd + j, sK, s(S_KOFF), 1024 * j, True, ("K", kn)))
                tl.N(T + dma_t[3], set_m0(S_LV, (vn % 4) * 16384))
                for j in range(4):
                    tl.N(T + dma_t[4 + j], dma(vVd + (j & 1), sV, s(S_VOFF), 1024 * j, True, ("V", vn)))
                tl.N(T + 100, salu(f"s_add_u32 {s(S_KOFF)}, {s(S_KOFF)}, 8192"))
                tl.N(T + 101, salu(f"s_add_u32 {s(S_VOFF)}, {s(S_VOFF)}, 8192"))
            if e == 31:
                for k, ins in enumerate(next_task_loads):
                    tl.N(T + 66, ins)
    pre = tl.stream(-II + 63, 0, fill_nop=False)
    ep = [tl.stream(e * II, (e + 1) * II) for e in range(NE + 1)]
    return pre, ep


def o_epilogue():
    out = []
    t = vT
    for qt in range(5):
        L = vL + qt
        a_, b_ = t + 2 * qt, t + 2 * qt + 1
        out.append(valu(f"v_mov_b32 v{a_}, v{L}", [f"v{L}"], [f"v{a_}"]))
        out.append(valu(f"v_mov_b32 v{b_}, v{L}", [f"v{L}"], [f"v{b_}"]))
    out.append(nop(1))
    for qt in range(5):
        a_, b_ = t + 2 * qt, t + 2 * qt + 1
        out.append(valu(f"v_permlane32_swap_b32 v{a_}, v{b_}", [f"v{a_}", f"v{b_}"], [f"v{a_}", f"v{b_}"]))
    out.append(nop(1))
    for qt in range(5):
        a_, b_ = t + 2 * qt, t + 2 * qt + 1
        out.append(valu(f"v_add_f32 v{a_}, v{a_}, v{b_}", [f"v{a_}", f"v{b_}"], [f"v{a_}"]))
    for qt in range(5):
        a_, b_ = t + 2 * qt, t + 2 * qt + 1
        out.append(valu(f"v_mov_b32 v{b_}, v{a_}", [f"v{a_}"], [f"v{b_}"]))
    out.append(nop(1))
    for qt in range(5):
        a_, b_ = t + 2 * qt, t + 2 * qt + 1
        out.append(valu(f"v_permlane16_swap_b32 v{a_}, v{b_}", [f"v{a_}", f"v{b_}"], [f"v{a_}", f"v{b_}"]))
    out.append(nop(1))
    for qt in range(5):
        a_, b_ = t + 2 * qt, t + 2 * qt + 1
        L = vL + qt
        out.append(valu(f"v_add_f32 v{L}, v{a_}, v{b_}", [f"v{a_}", f"v{b_}"], [f"v{L}"]))
    return out

def o_store():
    out = []
    t = vT
    for qt in range(5):
        L = vL + qt
        r = t + 2 * qt
        out.append(valu(f"v_rcp_f32 v{r}, v{L}", [f"v{L}"], [f"v{r}"], trans=True))
    out.append(nop(0))
    for qt in range(5):
        r = t + 2 * qt
        out.append(valu(f"v_mov_b32 v{r+1}, v{r}", [f"v{r}"], [f"v{r+1}"]))
    base = t + 10
    k = 0
    for qt in range(5):
        inv = t + 2 * qt
        for vv in range(4):
            t0 = base + 2 + (k % 2) * 12
            t0 = vS + (k % 3) * 12
            for odd in range(2):
                src = Of(2 * vv + odd, qt)
                for j in range(4):
                    out.append(valu(f"v_accvgpr_read_b32 v{t0 + odd*4 + j}, a{src.b + j}", [f"a{src.b+j}"], [f"v{t0+odd*4+j}"]))
            for p in range(4):
                r = t0 + 2 * p
                out.append(valu(f"v_pk_mul_f32 v[{r}:{r+1}], v[{r}:{r+1}], v[{inv}:{inv+1}]", [f"v{r}", f"v{r+1}", f"v{inv}", f"v{inv+1}"], [f"v{r}", f"v{r+1}"]))
            d = t0 + 8
            for p in range(4):
                out.append(valu(f"v_cvt_pk_bf16_f32 v{d + p}, v{t0 + 2*p}, v{t0 + 2*p + 1}", [f"v{t0+2*p}", f"v{t0+2*p+1}"], [f"v{d+p}"]))
            out.append(salu(f"s_add_u32 {s(S_T0)}, {s(S_OOFF)}, {qt*131072 + vv*1024}"))
            out.append(I(f"buffer_store_dwordx4 v[{d}:{d+3}], v{vOst}, {srd(sO)}, {s(S_T0)} offen", "vmem", regs("v", d, 4) + [f"v{vOst}"], [], tag=("O", k)))
            k += 1
    return out


def k1_prologue():
    L = []
    a = L.append
    a("s_cmp_ge_u32 s2, 256")
    a("s_cbranch_scc1 L1_done")
    a("s_load_dwordx8 s[52:59], s[0:1], 0")
    a("s_load_dwordx8 s[60:67], s[0:1], 40")
    a("s_load_dwordx2 s[4:5], s[0:1], 96")
    a("s_load_dwordx2 s[84:85], s[0:1], 32")
    a("s_load_dwordx2 s[86:87], s[0:1], 72")
    a("v_lshrrev_b32 v1, 6, v0")
    a("v_and_b32 v2, 63, v0")
    a(f"v_readfirstlane_b32 {s(S_W)}, v1")
    a("s_and_b32 s3, s2, 7")
    a("s_lshr_b32 s6, s2, 3")
    a(f"s_lshr_b32 {s(S_HSEL)}, {s(S_W)}, 1")
    a(f"s_and_b32 {s(S_HALF)}, {s(S_W)}, 1")
    a(f"s_lshr_b32 {s(S_B0)}, s6, 2")
    a("s_and_b32 s6, s6, 3")
    a(f"s_mov_b32 {s(S_PAIR)}, s6")
    if ROT:
        a(f"s_lshr_b32 s7, {s(S_B0)}, 2"); a(f"s_add_u32 s7, s7, {s(S_B0)}"); a("s_lshl_b32 s7, s7, 1")
        a(f"s_mul_i32 {s(S_ROT)}, s6, 5"); a(f"s_add_u32 s7, s7, {s(S_ROT)}")
        a(f"s_and_b32 {s(S_ROT)}, s6, 1"); a(f"s_sub_u32 s7, s7, {s(S_ROT)}")
        a("s_sub_u32 s3, s7, 20"); a("s_cmp_ge_u32 s7, 20"); a(f"s_cselect_b32 {s(S_ROT)}, s3, s7")
        a("s_and_b32 s3, s2, 7")
    else:
        a(f"s_mov_b32 {s(S_ROT)}, 0")
    if MAP2:
        a("s_lshr_b32 s7, s3, 1")
    else:
        a("s_and_b32 s7, s3, 3")
    a("s_lshl_b32 s7, s7, 3")
    a("s_lshl_b32 s6, s6, 1")
    a("s_add_u32 s7, s7, s6")
    a(f"s_add_u32 {s(S_H)}, s7, {s(S_HSEL)}")
    if MAP2:
        a("s_and_b32 s3, s3, 1")
    else:
        a("s_lshr_b32 s3, s3, 2")
    a(f"s_mov_b32 {s(S_T3)}, s3")
    a("s_waitcnt lgkmcnt(0)")
    a("s_cmp_eq_u32 s3, 0")
    for k in range(8):
        a(f"s_cselect_b32 s{52+k}, s{52+k}, s{60+k}")
    def mk(n, lo, hi, size):
        a(f"s_mov_b32 s{n}, s{lo}")
        a(f"s_and_b32 s{n+1}, s{hi}, 0xffff")
        a(f"s_mov_b32 s{n+2}, {size}")
        a(f"s_mov_b32 s{n+3}, 0x20000")
    mk(sX, 52, 53, 16 * 160 * 1280)
    mk(sK, 54, 55, 0x8000000)
    mk(sV, 56, 57, 0x8000000)
    mk(sWQ, 58, 59, 640 * 8192)
    mk(sO, 4, 5, WS_USED)
    a("s_cmp_lt_u32 s2, 128")
    a("s_cselect_b32 s84, s84, s86")
    a("s_cselect_b32 s85, s85, s87")
    mk(sWO, 84, 85, 4096 * 1280)
    c = math.log2(math.e) / math.sqrt(128.0)
    a(f"s_mov_b32 s{S_C}, {fbits(c):#x}")
    a(f"s_mov_b32 s{S_C+1}, {fbits(c):#x}")
    a(f"s_lshl_b32 s6, {s(S_HSEL)}, 13")
    a(f"s_lshl_b32 s7, {s(S_HALF)}, 12")
    a(f"s_add_u32 {s(S_LK)}, s6, s7")
    a(f"s_add_u32 {s(S_LV)}, {s(S_LK)}, {VR}")
    a(f"s_mul_i32 {s(S_XW0)}, {s(S_W)}, 5120")
    a(f"s_add_u32 {s(S_XWEND)}, {s(S_XW0)}, {3*XSLOT}")
    a("v_and_b32 v3, 15, v2")
    a("v_lshrrev_b32 v4, 4, v2")
    a(f"s_lshl_b32 s6, {s(S_HSEL)}, 13")
    a("v_xor_b32 v5, v4, v3")
    a("v_lshlrev_b32 v5, 4, v5")
    a("v_lshlrev_b32 v6, 8, v3")
    a("v_add3_u32 v5, v5, v6, s6")
    for st in range(4):
        a(f"v_xor_b32 v{vKr+st}, {st << 6}, v5")
    a("v_lshrrev_b32 v6, 2, v3")
    a("v_and_b32 v7, 3, v3")
    a("v_lshl_add_u32 v8, v4, 2, v6")
    a("v_and_b32 v9, 7, v8")
    a("v_lshlrev_b32 v9, 1, v9")
    a("v_lshrrev_b32 v10, 1, v7")
    a("v_xor_b32 v9, v9, v10")
    a("v_lshlrev_b32 v9, 4, v9")
    a("v_and_b32 v10, 1, v7")
    a("v_lshlrev_b32 v10, 3, v10")
    a("v_lshlrev_b32 v8, 8, v8")
    a("v_add3_u32 v9, v9, v10, v8")
    a(f"s_add_u32 s7, s6, {VR}")
    a("v_add_u32 v9, s7, v9")
    for dt in range(8):
        a(f"v_xor_b32 v{vVr+dt}, {dt << 5}, v9")
    a("v_lshl_add_u32 v8, v4, 3, v6")
    a("v_lshlrev_b32 v8, 8, v8")
    a("v_lshlrev_b32 v9, 2, v6")
    a("v_xor_b32 v9, v9, v7")
    a("v_lshlrev_b32 v9, 4, v9")
    a("v_add3_u32 v9, v9, v8, s7")
    for st in range(4):
        a(f"v_xor_b32 v{vWr+st}, {st << 6}, v9")
    a("v_lshrrev_b32 v8, 1, v3")
    a("v_xor_b32 v8, v8, v4")
    a("v_lshlrev_b32 v8, 4, v8")
    a("v_lshlrev_b32 v9, 7, v3")
    a(f"s_mul_i32 s7, {s(S_HALF)}, {80*128}")
    a(f"v_add3_u32 v{vXpat}, v8, v9, s7")
    a(f"v_xor_b32 v{vXpat+1}, 64, v{vXpat}")
    a("v_xor_b32 v8, v3, v4")
    a("v_lshlrev_b32 v8, 4, v8")
    a("v_lshl_add_u32 v8, v4, 8, v8")
    for j in range(4):
        a(f"v_xor_b32 v{vKd+j}, {j << 6}, v8")
    a("v_lshlrev_b32 v8, 1, v4")
    a("v_xor_b32 v8, v8, v3")
    a("v_lshlrev_b32 v8, 4, v8")
    a("v_lshl_add_u32 v8, v4, 8, v8")
    a(f"v_mov_b32 v{vVd}, v8")
    a(f"v_xor_b32 v{vVd+1}, {8 << 4}, v8")
    a("v_lshlrev_b32 v8, 2, v4")
    a("v_xor_b32 v8, v8, v3")
    a("v_lshlrev_b32 v8, 4, v8")
    a("v_lshl_add_u32 v8, v4, 13, v8")
    for j in range(4):
        a(f"v_add_u32 v{vWd+j}, {j*31744}, v8")
    a("v_lshrrev_b32 v9, 3, v2")
    a("v_mul_u32_u24 v9, 1280, v9")
    a("v_and_b32 v10, 7, v2")
    for j in range(5):
        a(f"s_add_u32 s7, {s(S_W)}, {j}")
        a("s_and_b32 s7, s7, 1")
        a("s_lshl_b32 s7, s7, 2")
        a("v_add_u32 v8, s7, v4")
        a("v_xor_b32 v8, v8, v10")
        a("v_lshlrev_b32 v8, 4, v8")
        a(f"v_add3_u32 v{vXd+j}, v8, v9, {0}") if False else None
        a(f"s_mov_b32 s7, {8*j*1280 - (1024*j if j < 4 else 0)}")
        a(f"v_add3_u32 v{vXd+j}, v8, v9, s7")
    a(f"v_lshlrev_b32 v{vOst}, 4, v2")
    a(f"v_lshlrev_b32 v{vPfX}, 7, v2")
    a("v_lshrrev_b32 v8, 2, v2"); a("v_lshlrev_b32 v8, 13, v8"); a("v_and_b32 v9, 3, v2"); a("v_lshlrev_b32 v9, 7, v9")
    a(f"v_add_u32 v{vPfW}, v8, v9")
    if XY:
        a(f"s_getreg_b32 {s(S_TYPE)}, hwreg(HW_REG_XCC_ID)")
        a(f"s_and_b32 {s(S_TYPE)}, {s(S_TYPE)}, 1")
        if XSEL == "even":
            a(f"s_xor_b32 {s(S_TYPE)}, {s(S_TYPE)}, 1")
        elif XSEL == "slot":
            a(f"s_lshr_b32 {s(S_TYPE)}, s2, 5"); a(f"s_and_b32 {s(S_TYPE)}, {s(S_TYPE)}, 1")
        elif XSEL == "all":
            a(f"s_mov_b32 {s(S_TYPE)}, 1")
    else:
        a(f"s_mov_b32 {s(S_TYPE)}, 0")
    import os
    if os.environ.get("K1XEXIT"):
        a(f"s_cmp_eq_u32 {s(S_TYPE)}, 1"); a("s_cbranch_scc1 L1_done")
    a(f"s_mov_b32 {s(S_PASS)}, {s(S_TYPE)}")
    a(f"s_mov_b32 {s(S_ADONE)}, 0")
    a(f"s_mov_b32 {s(S_BA)}, {s(S_B0)}")
    a(f"s_add_u32 {s(S_B8)}, {s(S_B0)}, 8")
    a(f"s_cmp_eq_u32 {s(S_TYPE)}, 1")
    a(f"s_cselect_b32 {s(S_BQ)}, {s(S_B8)}, {s(S_B0)}")
    a(f"s_mul_i32 s6, s2, 81920"); a(f"s_mul_i32 s7, {s(S_W)}, 20480"); a("s_add_u32 s6, s6, s7")
    a(f"s_add_u32 {s(S_QS)}, s6, {QS_BASE}")
    return L


def task_setup_q():
    o = []
    o.append(salu(f"s_mul_i32 {s(S_T0)}, {s(S_BQ)}, 160"))
    o.append(salu(f"s_mul_i32 {s(S_T1)}, {s(S_W)}, 40"))
    o.append(salu(f"s_add_u32 {s(S_T0)}, {s(S_T0)}, {s(S_T1)}"))
    o.append(salu(f"s_mul_i32 {s(S_XST)}, {s(S_T0)}, 1280"))
    o.append(salu(f"s_add_u32 {s(S_XEND)}, {s(S_XST)}, 1280"))
    o.append(salu(f"s_lshl_b32 {s(S_T0)}, {s(S_ROT)}, 6"))
    o.append(salu(f"s_add_u32 {s(S_XOFF)}, {s(S_XST)}, {s(S_T0)}"))
    o.append(salu(f"s_lshl_b32 {s(S_T0)}, {s(S_HALF)}, 17"))
    o.append(salu(f"s_lshl_b32 {s(S_T1)}, {s(S_H)}, 8"))
    o.append(salu(f"s_add_u32 {s(S_WQST)}, {s(S_T0)}, {s(S_T1)}"))
    o.append(salu(f"s_add_u32 {s(S_WQEND)}, {s(S_WQST)}, {640*8192}"))
    o.append(salu(f"s_lshl_b32 {s(S_T0)}, {s(S_ROT)}, 18"))
    o.append(salu(f"s_add_u32 {s(S_WQOFF)}, {s(S_WQST)}, {s(S_T0)}"))
    if PF:
        o.append(salu(f"s_mul_i32 {s(S_T0)}, {s(S_BQ)}, 160"))
        o.append(salu(f"s_mul_i32 {s(S_T1)}, {s(S_PAIR)}, 40"))
        o.append(salu(f"s_add_u32 {s(S_T0)}, {s(S_T0)}, {s(S_T1)}"))
        o.append(salu(f"s_mul_i32 {s(S_T0)}, {s(S_T0)}, 1280"))
        o.append(salu(f"s_lshl_b32 {s(S_T1)}, {s(S_W)}, 14"))
        o.append(salu(f"s_add_u32 {s(S_PFX)}, {s(S_T0)}, {s(S_T1)}"))
        o.append(salu(f"s_mul_i32 {s(S_T0)}, {s(S_B0)}, 80"))
        o.append(salu(f"s_lshl_b32 {s(S_T1)}, {s(S_W)}, 4"))
        o.append(salu(f"s_add_u32 {s(S_T0)}, {s(S_T0)}, {s(S_T1)}"))
        o.append(salu(f"s_lshl_b32 {s(S_T0)}, {s(S_T0)}, 13"))
        o.append(salu(f"s_sub_u32 {s(S_T1)}, {s(S_H)}, {s(S_HSEL)}"))
        o.append(salu(f"s_lshl_b32 {s(S_T1)}, {s(S_T1)}, 8"))
        o.append(salu(f"s_add_u32 {s(S_PFW)}, {s(S_T0)}, {s(S_T1)}"))
    return o

def kv_stream(breg):
    o = []
    o.append(salu(f"s_lshl_b32 {s(S_T0)}, {s(breg)}, 5"))
    o.append(salu(f"s_add_u32 {s(S_T0)}, {s(S_T0)}, {s(S_H)}"))
    o.append(salu(f"s_lshl_b32 {s(S_HOFF)}, {s(S_T0)}, 18"))
    o.append(salu(f"s_add_u32 {s(sK+2)}, {s(S_HOFF)}, 262144"))
    o.append(salu(f"s_mov_b32 {s(sV+2)}, {s(sK+2)}"))
    o.append(salu(f"s_lshl_b32 {s(S_T0)}, {s(S_HALF)}, 12"))
    o.append(salu(f"s_add_u32 {s(S_KOFF)}, {s(S_HOFF)}, {s(S_T0)}"))
    o.append(salu(f"s_mov_b32 {s(S_VOFF)}, {s(S_KOFF)}"))
    return o

def kv_out(breg):
    o = []
    o.append(salu(f"s_lshl_b32 {s(S_T0)}, {s(S_T3)}, 4"))
    o.append(salu(f"s_add_u32 {s(S_T0)}, {s(S_T0)}, {s(breg)}"))
    o.append(salu(f"s_mul_i32 {s(S_T0)}, {s(S_T0)}, 10"))
    o.append(salu(f"s_mul_i32 {s(S_T1)}, {s(S_HALF)}, 5"))
    o.append(salu(f"s_add_u32 {s(S_T0)}, {s(S_T0)}, {s(S_T1)}"))
    o.append(salu(f"s_lshl_b32 {s(S_T0)}, {s(S_T0)}, 7"))
    o.append(salu(f"s_lshl_b32 {s(S_T1)}, {s(S_H)}, 2"))
    o.append(salu(f"s_add_u32 {s(S_T0)}, {s(S_T0)}, {s(S_T1)}"))
    o.append(salu(f"s_lshl_b32 {s(S_OOFF)}, {s(S_T0)}, 10"))
    return o

def q_stash(store):
    o = []
    o.append(salu(f"s_mov_b32 {s(S_T0)}, {s(S_QS)}"))
    for f in range(20):
        r = vQ + 4 * f
        off = f" offset:{1024 * (f % 4)}" if f % 4 else ""
        if store:
            o.append(I(f"buffer_store_dwordx4 v[{r}:{r+3}], v{vOst}, {srd(sO)}, {s(S_T0)} offen{off}", "vmem", regs("v", r, 4) + [f"v{vOst}"], [], tag=("qs", f)))
        else:
            o.append(I(f"buffer_load_dwordx4 v[{r}:{r+3}], v{vOst}, {srd(sO)}, {s(S_T0)} offen{off}", "vmem", [f"v{vOst}"], regs("v", r, 4), tag=("ql", f)))
        if f % 4 == 3 and f < 19:
            o.append(salu(f"s_add_u32 {s(S_T0)}, {s(S_T0)}, 4096"))
    return o


STAMP = False
def stamp(idx):
    if not STAMP: return []
    return ["    s_memtime s[74:75]", "    s_memrealtime s[76:77]", "    s_waitcnt lgkmcnt(0)",
            f"    s_lshl_b32 s78, {s(S_STK)}, 1",
            "    v_mbcnt_lo_u32_b32 v13, -1, 0", "    v_mbcnt_hi_u32_b32 v13, -1, v13",
            "    v_cmp_eq_u32 vcc, s78, v13", "    v_mov_b32 v14, s74", "    s_nop 1", "    v_cndmask_b32 v15, v15, v14, vcc",
            "    s_add_u32 s78, s78, 1",
            "    v_cmp_eq_u32 vcc, s78, v13", "    v_mov_b32 v14, s76", "    s_nop 1", "    v_cndmask_b32 v15, v15, v14, vcc",
            f"    v_cmp_eq_u32 vcc, {s(S_STK)}, v13", f"    v_mov_b32 v14, {idx}", "    s_nop 1", "    v_cndmask_b32 v11, v11, v14, vcc",
            f"    s_add_u32 {s(S_STK)}, {s(S_STK)}, 1"]

def same_text(a, b):
    return [x.text for x in a] == [x.text for x in b]


def process(named, name):
    tagged = []
    for nme, st in named:
        tagged.append(I(f"@@{nme}", "label"))
        tagged.extend(st)
    resolve_vm_waits(tagged, ignore=('pf', 'cv', 'next', 'qs', 'ql'))
    tagged = insert_lgkm_waits(tagged, lat=6)
    tagged, notes = check_hazards(tagged, name, fix=True)
    for e_ in notes[:40]:
        print("NOTE", e_, file=sys.stderr)
    errs = check_hazards(tagged, name)
    assert not errs, errs[:5]
    seg = {}
    cur = None
    for ins in tagged:
        if ins.kind == "label" and ins.text.startswith("@@"):
            cur = ins.text[2:]; seg[cur] = []
        else:
            seg[cur].append(ins)
    return seg

def with_nops(g):
    return g[:1] + [nop(0)] + g[1:]

def build_k1():
    import os
    lines = []
    lines += ["    " + x for x in k1_prologue()]
    hookY = [salu(f"s_mov_b32 {s(S_BQ)}, {s(S_B8)}")] + task_setup_q() + q_groups_initial()
    hookX = kv_stream(S_B8) + q_stash(False)
    for kind, idx in (("K", 0), ("V", 0), ("V", 1), ("K", 1), ("V", 2), ("K", 2), ("K", 3)):
        hookX += with_nops(k_tile_dma(idx) if kind == "K" else v_tile_dma(idx))
    nxt = [raw(f"s_cmp_eq_u32 {s(S_ADONE)}, 1"), raw("s_cbranch_scc1 L1_hlast", "branch"),
           raw(f"s_cmp_eq_u32 {s(S_TYPE)}, 1"), raw("s_cbranch_scc1 L1_hX", "branch")] + hookY + \
          [raw("s_branch L1_hend", "branch"), label("L1_hX")] + hookX + [raw("s_branch L1_hend", "branch"), label("L1_hlast")] + \
          wo_convert_load() + [label("L1_hend")]
    for x in nxt:
        if x.kind in ("dma", "vmem"): x.tag = ("next", x.tag)
    qpre, qch = q_phase(False)
    apre, aep = a_phase(nxt)
    mid = [lgkm0(), vmwait([("K", 0)]), barrier()] + with_nops(k_tile_dma(2)) + with_nops(k_tile_dma(3))
    named = [("setup_q", task_setup_q()), ("init", q_groups_initial(first=True)), ("qpre", qpre)]
    named += [(f"q{c}", qch[c]) for c in range(16)]
    named += [("kvset", kv_stream(S_BA) + kv_out(S_BA))]
    named += [(f"q{c}", qch[c]) for c in range(16, 20)]
    named += [("mid", mid), ("apre", apre), ("conv", [nop(7)] + q_convert())]
    named += [(f"e{e}", aep[e]) for e in range(33)]
    named += [("epi1", [nop(7)] + o_epilogue()), ("epi2", o_store())]
    seg = process(named, "k1")
    qpreS, qchS = q_phase(True)
    g0 = x_dma(0, set_m0(S_XW0, 2 * XSLOT), tg="x2")
    midS = [lgkm0(), barrier(), g0[0], nop(0)] + g0[1:6] + [nop(0), g0[6]] + \
           [salu(f"s_add_u32 {s(S_XOFF)}, {s(S_XOFF)}, 256"),
            salu(f"s_add_u32 {s(S_XWR)}, {s(S_XW0)}, {1*XSLOT}"), salu(f"s_mov_b32 {s(S_XRD)}, {2*XSLOT}")]
    namedS = [("setup_q", task_setup_q()), ("init", q_groups_initial(first=True)), ("qpre", qpreS)]
    namedS += [(f"q{c}", qchS[c]) for c in range(20)]
    namedS += [("midS", midS), ("convS", [nop(7)] + q_convert()), ("stash", q_stash(True))]
    segS = process(namedS, "k1S")
    for c in range(16):
        assert same_text(seg[f"q{c}"], segS[f"q{c}"]), f"stash flow differs in chunk {c}"
    DBG = os.environ.get("K1DBG", "")
    if DBG:
        def filt(st, pre):
            o = []
            for x in st:
                tg = x.tag[0] if isinstance(x.tag, tuple) else None
                if pre + 'l' in DBG and x.kind == 'lds': continue
                if pre + 'x' in DBG and x.kind == 'dma' and tg == 'x': continue
                if pre + 'w' in DBG and x.kind == 'dma' and tg == 'wq': continue
                if pre + 'k' in DBG and x.kind == 'dma' and tg in ('kq', 'K'): continue
                if pre + 'v' in DBG and x.kind == 'dma' and tg == 'V': continue
                if pre + 'b' in DBG and x.kind == 'barrier': continue
                if pre + 'm' in DBG and x.kind == 'mfma': continue
                if pre + 'e' in DBG and x.kind in ('valu', 'trans'): continue
                if pre + 'W' in DBG and x.kind == 'wait' and 'vmcnt' in x.text: continue
                o.append(x)
            return o
        for k in list(seg.keys()):
            if k[0] == 'q' and k[1:].isdigit(): seg[k] = filt(seg[k], 'q')
            if k[0] == 'e' and k[1:].isdigit(): seg[k] = filt(seg[k], 'a')
    def cat(names, sg=None): return [x for n in names for x in (sg or seg)[n]]
    qloop = cat([f"q{c}" for c in range(4, 8)])
    for it in range(2, 4):
        assert same_text(qloop, cat([f"q{c}" for c in range(4 * it, 4 * it + 4)])), f"Q loop iteration {it} differs"
    aloop = cat([f"e{e}" for e in range(2, 6)])
    for it in range(1, 7):
        other = cat([f"e{e}" for e in range(2 + 4 * it, 6 + 4 * it)])
        assert same_text(aloop, other), f"A loop iteration {it} differs"
    E = lambda st: emit(st)
    A_ = lambda *x: lines.extend(["    " + t for t in x])
    A_(f"s_mov_b32 {s(S_STK)}, 0")
    lines += stamp(6)
    lines += E(seg["setup_q"]) + E(seg["init"])
    lines.append("L1_q:")
    lines += stamp(0)
    lines += E(seg["qpre"])
    lines += E(cat(["q0", "q1", "q2", "q3"]))
    A_(f"s_mov_b32 {s(S_CNT)}, 3")
    lines.append(".p2align 6")
    lines.append("L1_qloop:")
    lines += E(qloop)
    A_(f"s_sub_u32 {s(S_CNT)}, {s(S_CNT)}, 1", f"s_cmp_lg_u32 {s(S_CNT)}, 0", "s_cbranch_scc1 L1_qloop")
    A_(f"s_cmp_eq_u32 {s(S_PASS)}, 1", "s_cbranch_scc1 L1_qS")
    lines += E(seg["kvset"])
    lines += E(cat(["q16", "q17", "q18", "q19"]))
    lines += stamp(1)
    lines += E(seg["mid"]) + E(seg["apre"]) + E(seg["conv"])
    lines.append("L1_a:")
    lines += stamp(2)
    lines += E(cat(["e0", "e1"]))
    A_(f"s_mov_b32 {s(S_CNT)}, 7")
    lines.append(".p2align 6")
    lines.append("L1_aloop:")
    lines += E(aloop)
    A_(f"s_sub_u32 {s(S_CNT)}, {s(S_CNT)}, 1", f"s_cmp_lg_u32 {s(S_CNT)}, 0", "s_cbranch_scc1 L1_aloop")
    lines += stamp(3)
    lines += E(cat(["e30", "e31", "e32"]))
    lines += stamp(4)
    lines += E(seg["epi1"]) + E(seg["epi2"])
    lines += stamp(5)
    A_(f"s_cmp_eq_u32 {s(S_ADONE)}, 1", "s_cbranch_scc1 L1_fin",
       f"s_mov_b32 {s(S_ADONE)}, 1", f"s_mov_b32 {s(S_BA)}, {s(S_B8)}",
       f"s_cmp_eq_u32 {s(S_TYPE)}, 0", "s_cbranch_scc1 L1_q")
    lines += E(kv_out(S_BA))
    A_("s_waitcnt vmcnt(44)", "s_barrier")
    lines += E(seg["apre"])
    A_("s_branch L1_a")
    lines.append("L1_qS:")
    lines += E(cat(["q16", "q17", "q18", "q19"], segS))
    lines += stamp(7)
    lines += E(segS["midS"]) + E(segS["convS"]) + E(segS["stash"])
    A_(f"s_mov_b32 {s(S_PASS)}, 0", "s_branch L1_q")
    lines.append("L1_fin:")
    lines += E(insert_lgkm_waits(wo_convert_store(20)))
    lines += stamp(8)
    if STAMP:
        lines += [f"    s_cmp_lg_u32 {s(S_W)}, 0", "    s_cbranch_scc1 L1_done",
                  f"    s_lshl_b32 s78, s2, 9", f"    s_add_u32 s78, s78, {STAMP_BASE}",
                  "    v_mbcnt_lo_u32_b32 v14, -1, 0", "    v_mbcnt_hi_u32_b32 v14, -1, v14", "    v_lshlrev_b32 v14, 2, v14",
                  f"    buffer_store_dword v15, v14, {srd(sO)}, s78 offen", f"    buffer_store_dword v11, v14, {srd(sO)}, s78 offen offset:256", "    s_waitcnt vmcnt(0)"]
    lines.append("L1_done:")
    lines.append("    s_endpgm")
    return lines


def kernel_desc(name, vgpr, accum, sgpr=102):
    return [f".amdhsa_kernel {name}",
            f"  .amdhsa_next_free_vgpr {vgpr}", f"  .amdhsa_next_free_sgpr {sgpr}", f"  .amdhsa_accum_offset {accum}",
            "  .amdhsa_group_segment_fixed_size 0", "  .amdhsa_kernarg_size 104",
            "  .amdhsa_user_sgpr_count 2", "  .amdhsa_user_sgpr_kernarg_segment_ptr 1",
            "  .amdhsa_system_sgpr_workgroup_id_x 1", "  .amdhsa_float_denorm_mode_32 3", ".end_amdhsa_kernel"]


HEADER = open("cdna_kernels/" + NAME + ".s.ref").read().split("; Override launch")[0]

def build(only=None):
    from gen_k2 import build_k2, LDS2
    out = [HEADER.rstrip("\n")]
    if only != "k2":
        out.append(f"; @launch kernel={K1} grid=(256,1,1) block=(256,1,1) lds={LDS1}")
    if only != "k1":
        out.append(f"; @launch kernel={K2} grid=(256,1,1) block=(256,1,1) lds={LDS2}")
    out.append('.amdgcn_target "amdgcn-amd-amdhsa--gfx950"')
    out.append(".text")
    for nm, body in ((K1, build_k1()), (K2, build_k2())):
        out += [f".globl {nm}", ".p2align 8", f".type {nm},@function", f"{nm}:"]
        out += body
    out += ['.section .rodata,"a"', ".p2align 6"]
    out += kernel_desc(K1, 512, 256)
    out += [".p2align 6"]
    out += kernel_desc(K2, 336, 232)
    return "\n".join(out) + "\n"

if __name__ == "__main__":
    if "--map2" in sys.argv:
        MAP2 = True; sys.argv.remove("--map2")
    if "--noxy" in sys.argv:
        XY = False; sys.argv.remove("--noxy")
    for o_ in ("odd", "even", "slot", "all"):
        if "--x" + o_ in sys.argv:
            XSEL = o_; sys.argv.remove("--x" + o_)
    if "--pf" in sys.argv:
        PF = True; sys.argv.remove("--pf")
    if "--norot" in sys.argv:
        ROT = False; sys.argv.remove("--norot")
    if "--stamp" in sys.argv:
        STAMP = True; sys.argv.remove("--stamp")
    only = None
    for o_ in ("k1", "k2"):
        if "--" + o_ in sys.argv:
            only = o_; sys.argv.remove("--" + o_)
    txt = build(only)
    path = sys.argv[1] if len(sys.argv) > 1 else "cdna_kernels/" + NAME + ".s"
    open(path, "w").write(txt)
    print("wrote", path, len(txt), "bytes")
```

```python
from asmlib import *
LDS2 = 81920
def s(n): return f"s{n}"
def srd(n): return f"s[{n}:{n+3}]"
sWO, sOi, sOut = 8, 12, 16
S_W, S_KP, S_QH, S_WOFF, S_OOFF, S_LW, S_CNT, S_T0, S_T1, S_OUTOFF = 20, 21, 22, 23, 24, 25, 26, 27, 28, 29
vWd = 8
vOd = 13
vAr = 18
vOut = 19
vRed = 20
vAr2 = 21
vB = 32
vA = 192
SLOT = 20480
def BF(buf, i2, q): return V(vB + ((buf * 2 + i2) * 5 + q) * 4, 4)
def AF(i2, t): return V(vA + (i2 * 5 + t) * 4, 4)
def acc(t, q): return A((t * 5 + q) * 4, 4)

class Timeline:
    def __init__(self):
        self.m = {}; self.n = {}; self.v = {}
    def mfma(self, t, ins): self.m[t] = ins
    def N(self, t, ins): self.n.setdefault(t, []).append(ins)
    def stream(self, t0, t1, fill_nop=True):
        out = []
        for t in range(t0, t1):
            if t in self.m: out.append(self.m[t])
            elif fill_nop: out.append(nop(0))
            out += self.n.get(t, [])
        return out

def wo_dma(st):
    out = []
    out.append(salu(f"s_add_u32 m0, {s(S_LW)}, {(st % 4) * SLOT}", [], ["m0"]) if st % 4 else salu(f"s_mov_b32 m0, {s(S_LW)}", [], ["m0"]))
    for j in range(4):
        t = f"buffer_load_dwordx4 v{vWd + j}, {srd(sOi)}, {s(S_WOFF)} offen" + (f" offset:{1024*j}" if j else "") + " lds"
        out.append(I(t, "dma", [f"v{vWd+j}", "m0"], [], tag=("wo", st)))
    out.append(salu(f"s_add_u32 m0, {s(S_LW)}, {(st % 4) * SLOT + 4096}", [], ["m0"]))
    out.append(I(f"buffer_load_dwordx4 v{vWd + 4}, {srd(sOi)}, {s(S_WOFF)} offen lds", "dma", [f"v{vWd+4}", "m0"], [], tag=("wo", st)))
    out.append(salu(f"s_add_u32 {s(S_WOFF)}, {s(S_WOFF)}, 4096"))
    return out

def o_loads(st):
    out = []
    for i2 in range(2):
        for q in range(5):
            d = BF(st % 4, i2, q)
            t = f"buffer_load_dwordx4 {d}, v{vOd + q}, {srd(sOi)}, {s(S_OOFF)} offen" + (f" offset:{2048*i2}" if i2 else "")
            out.append(I(t, "vmem", [f"v{vOd+q}"], d.regs(), tag=("O", st)))
    out.append(salu(f"s_add_u32 {s(S_OOFF)}, {s(S_OOFF)}, 4096"))
    return out

import os
DBG = os.environ.get('K2DBG', '')
def build_k2():
    L = []; a = L.append
    a("    s_cmp_ge_u32 s2, 256"); a("    s_cbranch_scc1 L2_done")
    P = []
    p = P.append
    p("s_load_dwordx2 s[30:31], s[0:1], 80")
    p("s_load_dwordx2 s[32:33], s[0:1], 96")
    p("v_lshrrev_b32 v1, 6, v0")
    p("v_and_b32 v2, 63, v0")
    p(f"v_readfirstlane_b32 {s(S_W)}, v1")
    p("s_and_b32 s3, s2, 7")
    p("s_lshr_b32 s34, s2, 3")
    p("s_and_b32 s35, s34, 7")
    p("s_lshr_b32 s34, s34, 3")
    p("s_lshl_b32 s36, s3, 2")
    p("s_add_u32 s36, s36, s34")
    p("s_lshr_b32 s37, s36, 4")
    p("s_and_b32 s38, s36, 15")
    p(f"s_lshr_b32 {s(S_KP)}, {s(S_W)}, 1")
    p(f"s_and_b32 {s(S_QH)}, {s(S_W)}, 1")
    p("s_waitcnt lgkmcnt(0)")
    def mk(n, lo, hi, size):
        p(f"s_mov_b32 s{n}, s{lo}"); p(f"s_and_b32 s{n+1}, s{hi}, 0xffff"); p(f"s_mov_b32 s{n+2}, {size}"); p(f"s_mov_b32 s{n+3}, 0x20000")
    mk(sOi, 32, 33, (42 << 20) + 2 * 40 * 128 * 1024)
    mk(sOut, 30, 31, 16 * 160 * 2560)
    p(f"s_mul_i32 {s(S_T0)}, s37, 40")
    p(f"s_mul_i32 {s(S_T1)}, s35, 5")
    p(f"s_add_u32 {s(S_T0)}, {s(S_T0)}, {s(S_T1)}")
    p(f"s_lshl_b32 {s(S_T0)}, {s(S_T0)}, 7")
    p(f"s_add_u32 {s(S_T0)}, {s(S_T0)}, {s(S_W)}")
    p(f"s_lshl_b32 {s(S_T0)}, {s(S_T0)}, 10")
    p(f"s_add_u32 {s(S_WOFF)}, {s(S_T0)}, {42 << 20}")
    p(f"s_mul_i32 {s(S_LW)}, {s(S_W)}, 5120")
    p(f"s_mul_i32 {s(S_T0)}, s36, 10")
    p(f"s_mul_i32 {s(S_T1)}, {s(S_QH)}, 5")
    p(f"s_add_u32 {s(S_T0)}, {s(S_T0)}, {s(S_T1)}")
    p(f"s_lshl_b32 {s(S_T0)}, {s(S_T0)}, 7")
    p(f"s_add_u32 {s(S_T0)}, {s(S_T0)}, {s(S_KP)}")
    p(f"s_lshl_b32 {s(S_OOFF)}, {s(S_T0)}, 10")
    p(f"s_mul_i32 {s(S_T0)}, s38, 160")
    p(f"s_mul_i32 {s(S_T1)}, {s(S_QH)}, 80")
    p(f"s_add_u32 {s(S_T0)}, {s(S_T0)}, {s(S_T1)}")
    p(f"s_mul_i32 {s(S_OUTOFF)}, {s(S_T0)}, 2560")
    p(f"s_mul_i32 {s(S_T0)}, s37, 1280")
    p(f"s_add_u32 {s(S_OUTOFF)}, {s(S_OUTOFF)}, {s(S_T0)}")
    p(f"s_mul_i32 {s(S_T0)}, s35, 160")
    p(f"s_add_u32 {s(S_OUTOFF)}, {s(S_OUTOFF)}, {s(S_T0)}")
    p("v_and_b32 v3, 15, v2"); p("v_lshrrev_b32 v4, 4, v2")
    p("v_lshlrev_b32 v5, 4, v2")
    for q in range(5):
        p(f"v_add_u32 v{vOd+q}, {q*131072}, v5")
        p(f"v_add_u32 v{vWd+q}, {q*131072 - (1024*q if q < 4 else 0)}, v5")
    p(f"s_mul_i32 {s(S_T0)}, {s(S_KP)}, 5120")
    p(f"v_add_u32 v{vAr}, {s(S_T0)}, v5")
    p(f"v_add_u32 v{vAr2}, {2*SLOT}, v{vAr}")
    p("v_mul_u32_u24 v6, 2560, v3"); p(f"v_lshl_add_u32 v{vOut}, v4, 3, v6")
    p(f"s_mul_i32 {s(S_T0)}, {s(S_QH)}, 25600")
    p(f"v_add_u32 v{vRed}, {s(S_T0)}, v5")
    L += ["    " + x for x in P]

    II = 50; NS = 32
    tl = Timeline()
    init = []
    for st in range(3):
        w_ = wo_dma(st)
        init += w_[:1] + [nop(0)] + w_[1:6] + [nop(0)] + w_[6:]
        init += o_loads(st)
        if st == 3: pass
    for st in range(-1, NS):
        T = st * II
        if st >= 0:
            for t in range(II):
                i2, tt, q = t // 25, (t % 25) // 5, t % 5
                first = (st == 0 and i2 == 0)
                tl.mfma(T + t, mfma16(acc(tt, q), AF(i2, tt), BF(st % 4, i2, q), 0 if first else acc(tt, q)))
        n = st + 1
        if n < NS:
            tl.N(T + 36, I("s_waitcnt lgkmcnt(0)", "wait", info="lgkm0"))
            tl.N(T + 37, I("s_waitcnt vmcnt(?)", "wait", info=("vm", [("wo", n), ("O", n)], None)))
            tl.N(T + 38, I("s_barrier", "barrier"))
            for i2 in range(2):
                for tt in range(5):
                    t = T + 39 + 2 * tt if i2 == 0 else T + 50 + 2 * tt
                    tl.N(t, ds_read("ds_read_b128", AF(i2, tt), V(vAr if n % 4 < 2 else vAr2), (n % 2) * SLOT + i2 * 10240 + 1024 * tt))
        if st >= 0 and st + 3 < NS:
            w = wo_dma(st + 3)
            ol = o_loads(st + 3)
            slots = [1, 5, 9, 12, 15, 18, 21, 24, 27, 30, 33, 40, 42, 44, 46]
            order = ["o", "o", "w", "o", "o", "w", "o", "o", "w", "o", "o", "w", "o", "o", "w"]
            tl.N(T + 0, w[0])
            io = iw = 0
            for t_, kind in zip(slots, order):
                if kind == "o":
                    tl.N(T + t_, ol[io]); io += 1
                else:
                    if iw == 4:
                        tl.N(T + t_ - 1, w[5])
                        tl.N(T + t_, w[6])
                    else:
                        tl.N(T + t_, w[1 + iw])
                    iw += 1
            tl.N(T + 48, w[7]); tl.N(T + 48, ol[10])
    pre = tl.stream(-II + 36, 0, fill_nop=False)
    stages = [tl.stream(st * II, (st + 1) * II) for st in range(NS)]
    flat = []
    def mark(n): flat.append(I(f"@@{n}", "label"))
    mark("init"); flat += init
    mark("pre"); flat += pre + [I("s_waitcnt lgkmcnt(0)", "wait", info="lgkm0")]
    for st in range(NS):
        mark(f"s{st}"); flat += stages[st]
    resolve_vm_waits(flat)
    flat = insert_lgkm_waits(flat, lat=6)
    errs = check_hazards(flat, "k2")
    assert not errs, errs[:5]
    seg = {}; cur = None
    for ins in flat:
        if ins.kind == "label" and ins.text.startswith("@@"):
            cur = ins.text[2:]; seg[cur] = []
        else: seg[cur].append(ins)
    cat = lambda names: [x for n in names for x in seg[n]]
    txt = lambda st: [x.text for x in st]
    body = cat([f"s{k}" for k in range(4, 8)])
    for it in range(1, 6):
        assert txt(body) == txt(cat([f"s{k}" for k in range(4 + 4 * it, 8 + 4 * it)])), f"k2 iteration {it}"
    if DBG:
        def filt(st):
            o = []
            for x in st:
                if 'm' in DBG and x.kind == 'mfma': continue
                if 'o' in DBG and x.kind == 'vmem': continue
                if 'w' in DBG and x.kind == 'dma': continue
                if 'l' in DBG and x.kind == 'lds': continue
                if 'b' in DBG and x.kind == 'barrier': continue
                o.append(x)
            return o
        for k in list(seg.keys()):
            if k.startswith('s'): seg[k] = filt(seg[k])
        body = cat([f"s{k}" for k in range(4, 8)])
    L += emit(seg["init"]) + emit(seg["pre"]) + emit(cat(["s0", "s1", "s2", "s3"]))
    L.append(f"    s_mov_b32 {s(S_CNT)}, 6")
    L.append(".p2align 6"); L.append("L2_loop:")
    L += emit(body)
    L += [f"    s_sub_u32 {s(S_CNT)}, {s(S_CNT)}, 1", f"    s_cmp_lg_u32 {s(S_CNT)}, 0", "    s_cbranch_scc1 L2_loop"]
    L += emit(cat(["s28", "s29", "s30", "s31"]))
    F = []; f = F.append
    f("s_waitcnt vmcnt(0) lgkmcnt(0)")
    f("s_nop 7")
    f("s_barrier")
    f(f"s_cmp_eq_u32 {s(S_KP)}, 0"); f("s_cbranch_scc1 L2_recv")
    for k in range(25):
        f(f"ds_write_b128 v{vRed}, a[{4*k}:{4*k+3}] offset:{k*1024}")
    f("s_waitcnt lgkmcnt(0)")
    f("s_barrier")
    f("s_branch L2_done")
    F.append("L2_recv:")
    f("s_barrier")
    for k in range(25):
        f(f"ds_read_b128 v[{vB+4*k}:{vB+4*k+3}], v{vRed} offset:{k*1024}")
        if k % 8 == 7 or k == 24:
            f("s_waitcnt lgkmcnt(0)")
    for tt in range(5):
        for q in range(5):
            k = tt * 5 + q
            r = vB + 4 * k
            for j in range(4):
                f(f"v_accvgpr_read_b32 v{vA + j}, a{4*k + j}")
            for j in range(4):
                f(f"v_add_f32 v{r + j}, v{r + j}, v{vA + j}")
            f(f"v_cvt_pk_bf16_f32 v{r}, v{r}, v{r+1}")
            f(f"v_cvt_pk_bf16_f32 v{r+1}, v{r+2}, v{r+3}")
            f(f"s_add_u32 {s(S_T0)}, {s(S_OUTOFF)}, {q*16*2560}")
            f(f"buffer_store_dwordx2 v[{r}:{r+1}], v{vOut}, {srd(sOut)}, {s(S_T0)} offen offset:{32*tt}")
    for x in F:
        L.append(x if x.endswith(":") else "    " + x)
    L.append("L2_done:"); L.append("    s_endpgm")
    return L
```

```python
import sys, math, struct
from asmlib import *

NAME = "concat_heads__mha_block_cached__mha_block_cached__near_ridge"
K1 = "mha_attn_kernel"
K2 = "mha_oproj_kernel"

def fbits(x):
    return struct.unpack("<I", struct.pack("<f", x))[0]

KR = 0
VR = 65536
XR = 131072
XSLOT = 20480
FLAGS = 61440
LDS1 = 163840
WF_BASE = 42 << 20
WS_USED = (64 << 20) + 256 * 81920
STAMP_BASE = 56 << 20

sX, sWQ, sK, sV, sO = 8, 12, 16, 20, 24
sWO = 88
S_W, S_HSEL, S_HALF, S_TASK, S_B, S_H = 28, 29, 30, 31, 32, 33
S_KOFF, S_VOFF, S_XOFF, S_WQOFF, S_XWR, S_XRD, S_CNT = 34, 35, 36, 37, 38, 39, 40
S_LK, S_LV, S_C, S_KQS, S_KQM, S_HOFF, S_OOFF = 41, 42, 44, 72, 46, 47, 48
S_KQSMAX, S_KQMMAX, S_B0, S_XW0 = 49, 50, 51, 43
S_T0, S_T1, S_T2, S_T3 = 68, 69, 70, 71
S_XWEND = 73
S_PFX, S_PFW, S_PAIR = 80, 81, 82
S_WQST, S_WQEND, S_XST, S_XEND, S_ROT = 92, 93, 94, 95, 96
PF = True
PF1 = False
ROT = False
MAP2 = False
S_TYPE, S_PASS, S_ADONE, S_BQ, S_BA, S_B8, S_QS, S_STK = 97, 98, 99, 100, 32, 83, 72, 79
QS_BASE = 64 << 20
XY = False
XSEL = "odd"
S_FOFF, S_FB = 46, 49
L_LO, L_HI = 2.0 ** -14, 2.0 ** 20
S_TASKI = 79
def s(n): return f"s{n}"
def srd(n): return f"s[{n}:{n+3}]"

vQ, vS, vP = 16, 96, 136
vKr, vVr, vWr, vXr, vXpat = 176, 180, 188, 192, 232
vKd, vVd, vWd, vXd = 194, 198, 200, 234
vL = 207
vOst = 212
vPfX, vPfW, vDum = 213, 214, 12
vT = 216
aO, aKF, aVF = 0, 160, 192

def Qf(qt, st): return V(vQ + (qt * 4 + st) * 4, 4)
def Sf(kt, qt): return V(vS + (kt * 5 + qt) * 4, 4)
def Pf(par, qt): return V(vP + (par * 5 + qt) * 4, 4)
def KF(kt, st): return A(aKF + (kt * 4 + st) * 4, 4)
def VF(dt): return A(aVF + dt * 4, 4)
def Of(dt, qt): return A(aO + (dt * 5 + qt) * 4, 4)

def dma(voff, srdn, soff, ioff, nt, tag):
    t = f"buffer_load_dwordx4 v{voff}, {srd(srdn)}, {soff} offen"
    if ioff: t += f" offset:{ioff}"
    if nt: t += " nt"
    t += " lds"
    return I(t, "dma", [f"v{voff}", "m0"], [], tag=tag)

def set_m0(base_s, const):
    if const == 0:
        return salu(f"s_mov_b32 m0, {s(base_s)}", [], ["m0"])
    return salu(f"s_add_u32 m0, {s(base_s)}, {const}", [], ["m0"])

def vmwait(tags, lgkm0=False, cap=None):
    t = "s_waitcnt vmcnt(?)" + (" lgkmcnt(0)" if lgkm0 else "")
    return I(t, "wait", info=("vm", tags, cap))

def lgkm0():
    return I("s_waitcnt lgkmcnt(0)", "wait", info="lgkm0")

def barrier():
    return I("s_barrier", "barrier")


class Timeline:
    def __init__(self):
        self.m = {}; self.n = {}; self.v = {}
    def mfma(self, t, ins):
        assert t not in self.m, t
        self.m[t] = ins
    def N(self, t, ins):
        self.n.setdefault(t, []).append(ins)
    def Vv(self, t, ins):
        self.v.setdefault(t, []).append(ins)
    def stream(self, t0, t1, fill_nop=True):
        out = []
        for t in range(t0, t1):
            if t in self.m:
                out.append(self.m[t])
            elif fill_nop:
                out.append(nop(0))
            out += self.n.get(t, [])
            out += self.v.get(t, [])
        return out


def lgkm0_mark(ins):
    return ins


def x_dma(sc, m0_ins, soff=None, tg="x"):
    soff = S_XOFF if soff is None else soff
    out = [m0_ins]
    for j in range(4):
        out.append(dma(vXd + j, sX, s(soff), 1024 * j, False, (tg, sc)))
    out.append(salu("s_add_u32 m0, m0, 4096", ["m0"], ["m0"]))
    out.append(dma(vXd + 4, sX, s(soff), 0, False, (tg, sc)))
    out.append(salu(f"s_add_u32 {s(S_XOFF)}, {s(S_XOFF)}, 128"))
    out.append(salu(f"s_cmp_lt_u32 {s(S_XOFF)}, {s(S_XEND)}"))
    out.append(salu(f"s_cselect_b32 {s(S_XOFF)}, {s(S_XOFF)}, {s(S_XST)}"))
    return out

def wq_advance():
    return [salu(f"s_add_u32 {s(S_WQOFF)}, {s(S_WQOFF)}, {32*8192}"),
            salu(f"s_cmp_lt_u32 {s(S_WQOFF)}, {s(S_WQEND)}"),
            salu(f"s_cselect_b32 {s(S_WQOFF)}, {s(S_WQOFF)}, {s(S_WQST)}")]

def pf_loads():
    out = []
    if PF:
        for j in range(2):
            out.append(I(f"buffer_load_dword v{vDum}, v{vPfX}, {srd(sX)}, {s(S_PFX)} offen", "vmem", [f"v{vPfX}"], [f"v{vDum}"], tag=("pf", 0)))
            out.append(salu(f"s_add_u32 {s(S_PFX)}, {s(S_PFX)}, 8192"))
        for j in range(2):
            out.append(I(f"buffer_load_dword v{vDum}, v{vPfW}, {srd(sWQ)}, {s(S_PFW)} offen", "vmem", [f"v{vPfW}"], [f"v{vDum}"], tag=("pf", 1)))
            out.append(salu(f"s_add_u32 {s(S_PFW)}, {s(S_PFW)}, {64*8192}"))
    return out

def wo_convert_load():
    out = []
    out.append(salu(f"s_and_b32 {s(S_T0)}, s2, 127"))
    out.append(salu(f"s_mul_i32 {s(S_T0)}, {s(S_T0)}, 40960"))
    out.append(salu(f"s_mul_i32 {s(S_T1)}, {s(S_W)}, 10240"))
    out.append(salu(f"s_add_u32 {s(S_T0)}, {s(S_T0)}, {s(S_T1)}"))
    for grp in range(3):
        out.append(salu(f"s_add_u32 m0, {s(S_T1)}, {grp*4096}", [], ["m0"]))
        out.append(nop(0))
        for j in range(4 if grp < 2 else 2):
            out.append(dma(vOst, sWO, s(S_T0), 1024 * j, False, ("cv", 0)))
        out.append(salu(f"s_add_u32 {s(S_T0)}, {s(S_T0)}, 4096"))
    return out

def wo_convert_store(nyounger):
    out = []
    out.append(I(f"s_waitcnt vmcnt({nyounger})", "wait", info="fixed"))
    out.append(barrier())
    t = vT
    out.append(valu(f"v_lshrrev_b32 v{t}, 6, v{vOst}", [], [f"v{t}"]))
    out.append(valu(f"v_mul_u32_u24 v{t}, 1280, v{t}", [f"v{t}"], [f"v{t}"]))
    out.append(valu(f"v_lshrrev_b32 v{t+1}, 4, v{vOst}", [], [f"v{t+1}"]))
    out.append(valu(f"v_and_b32 v{t+1}, 3, v{t+1}", [f"v{t+1}"], [f"v{t+1}"]))
    out.append(valu(f"v_lshl_add_u32 v{t}, v{t+1}, 3, v{t}", [f"v{t}", f"v{t+1}"], [f"v{t}"]))
    out.append(salu(f"s_mul_i32 {s(S_T0)}, {s(S_W)}, 320"))
    out.append(valu(f"v_add_u32 v{t}, {s(S_T0)}, v{t}", [f"v{t}"], [f"v{t}"]))
    for tt in range(10):
        for u in range(2):
            out.append(ds_read("ds_read_b64_tr_b16", V(vS + 4 * tt + 2 * u, 2), V(t), u * 20480 + 32 * tt))
        if tt == 4: out.append(lgkm0())
    out.append(lgkm0())
    out.append(salu(f"s_lshr_b32 {s(S_T0)}, s2, 7"))
    out.append(salu(f"s_mul_i32 {s(S_T0)}, {s(S_T0)}, 40"))
    out.append(salu(f"s_mul_i32 {s(S_T1)}, {s(S_W)}, 10"))
    out.append(salu(f"s_add_u32 {s(S_T0)}, {s(S_T0)}, {s(S_T1)}"))
    out.append(salu(f"s_lshl_b32 {s(S_T0)}, {s(S_T0)}, 7"))
    out.append(salu(f"s_and_b32 {s(S_T1)}, s2, 127"))
    out.append(salu(f"s_add_u32 {s(S_T0)}, {s(S_T0)}, {s(S_T1)}"))
    out.append(salu(f"s_lshl_b32 {s(S_T0)}, {s(S_T0)}, 10"))
    out.append(salu(f"s_add_u32 {s(S_T0)}, {s(S_T0)}, {WF_BASE}"))
    for tt in range(10):
        d = vS + 4 * tt
        out.append(I(f"buffer_store_dwordx4 v[{d}:{d+3}], v{vOst}, {srd(sO)}, {s(S_T0)} offen", "vmem", regs("v", d, 4) + [f"v{vOst}"], [], tag=("cv", 1)))
        out.append(salu(f"s_add_u32 {s(S_T0)}, {s(S_T0)}, 131072"))
    out.append(barrier())
    return out

def q_groups_initial(first=False):
    out = []
    def wq(c):
        out.append(set_m0(S_LV, (c % 4) * 16384))
        out.append(nop(0))
        for j in range(4):
            out.append(dma(vWd + j, sWQ, s(S_WQOFF), 1024 * j, False, ("wq", c)))
        out.extend(wq_advance())
    def x(sc):
        g = x_dma(sc, set_m0(S_XW0, ((sc + 2) % 3) * XSLOT))
        out.extend([g[0], nop(0)] + g[1:6] + [nop(0)] + g[6:])
    if first and PF1:
        out += pf_loads()
    wq(0); x(0); wq(1); wq(2)
    x(1)
    if not first:
        out += pf_loads()
    out.append(salu(f"s_add_u32 {s(S_XWR)}, {s(S_XW0)}, {1*XSLOT}"))
    out.append(salu(f"s_mov_b32 {s(S_XRD)}, {2*XSLOT}"))
    return out


def k_tile_dma(n):
    out = [set_m0(S_LK, (n % 4) * 16384)]
    for j in range(4):
        out.append(dma(vKd + j, sK, s(S_KOFF), 1024 * j, True, ("K", n)))
    out.append(salu(f"s_add_u32 {s(S_KOFF)}, {s(S_KOFF)}, 8192"))
    return out

def v_tile_dma(n):
    out = [set_m0(S_LV, (n % 4) * 16384)]
    for j in range(4):
        out.append(dma(vVd + (j & 1), sV, s(S_VOFF), 1024 * j, True, ("V", n)))
    out.append(salu(f"s_add_u32 {s(S_VOFF)}, {s(S_VOFF)}, 8192"))
    return out


def q_phase(stash=False):
    II = 40
    tl = Timeline()
    NCH = 20
    def AF(dt): return A(aKF + dt * 4, 4)
    def BF(par, qt): return V(vS + (par * 5 + qt) * 4, 4)
    def acc(dt, qt): return A(aO + (dt * 5 + qt) * 4, 4)
    for c in range(-1, NCH):
        T = c * II
        if c >= 0:
            for t in range(II):
                dt, qt = t // 5, t % 5
                tl.mfma(T + t, mfma16(acc(dt, qt), AF(dt), BF(c & 1, qt), 0 if c == 0 else acc(dt, qt)))
        n = c + 1
        if n < NCH:
            tl.N(T + 24, lgkm0())
            tl.N(T + 25, vmwait([("x", n >> 1), ("wq", n)]))
            tl.N(T + 26, barrier())
            tl.Vv(T + 26, valu(f"v_add_u32 v{vXr}, {s(S_XRD)}, v{vXpat + (n & 1)}", [f"v{vXpat + (n & 1)}"], [f"v{vXr}"]))
            slot = n % 4
            def rdB(t, qt):
                tl.N(T + t, ds_read("ds_read_b128", BF(n & 1, qt), V(vXr), qt * 2048))
            def rdA(t, dt, u):
                st, odd = dt // 2, dt % 2
                tl.N(T + t, ds_read("ds_read_b64_tr_b16", AF(dt).sub(2 * u, 2), V(vWr + st), slot * 16384 + u * 1024 + odd * 8))
            rdB(27, 0); rdA(28, 0, 0); rdA(29, 0, 1); rdB(30, 1); rdB(31, 2); rdB(32, 3); rdB(33, 4)
            rdA(35, 1, 0); rdA(36, 1, 1); rdA(39, 2, 0); rdA(40, 2, 1); rdA(44, 3, 0); rdA(45, 3, 1)
            rdA(49, 4, 0); rdA(50, 4, 1); rdA(54, 5, 0); rdA(55, 5, 1); rdA(58, 6, 0); rdA(59, 6, 1); rdA(61, 7, 0); rdA(62, 7, 1)
            if n & 1:
                tl.N(T + 58, salu(f"s_add_u32 {s(S_XRD)}, {s(S_XRD)}, {XSLOT}"))
                tl.N(T + 59, salu(f"s_cmp_eq_u32 {s(S_XRD)}, {3*XSLOT}"))
                tl.N(T + 59, salu(f"s_cselect_b32 {s(S_XRD)}, 0, {s(S_XRD)}"))
            has_w = n + 3 < NCH
            has_x = n % 2 == 0 and n // 2 + 2 < NCH // 2
            wm0 = lambda: set_m0(S_LV, ((n + 3) % 4) * 16384)
            wd = lambda j: dma(vWd + j, sWQ, s(S_WQOFF), 1024 * j, False, ("wq", n + 3))
            if has_x:
                g = x_dma(n // 2 + 2, salu(f"s_mov_b32 m0, {s(S_XWR)}", [], ["m0"]))
                xm0 = lambda: salu(f"s_mov_b32 m0, {s(S_XWR)}", [], ["m0"])
                tl.N(T + 41, xm0()); tl.N(T + 42, g[1]); tl.N(T + 46, g[2])
                if has_w:
                    tl.N(T + 47, wm0()); tl.N(T + 48, wd(0)); tl.N(T + 52, wd(1))
                tl.N(T + 55, xm0()); tl.N(T + 56, g[3]); tl.N(T + 60, g[4])
                if has_w:
                    tl.N(T + 62, wm0()); tl.N(T + 63, wd(2)); tl.N(T + 74, wd(3))
                tl.N(T + 76, salu(f"s_add_u32 m0, {s(S_XWR)}, 4096", [], ["m0"])); tl.N(T + 77, g[6])
                tl.N(T + 78, g[7]); tl.N(T + 79, g[8]); tl.N(T + 79, g[9])
                tl.N(T + 80, salu(f"s_add_u32 {s(S_XWR)}, {s(S_XWR)}, {XSLOT}"))
                tl.N(T + 80, salu(f"s_cmp_eq_u32 {s(S_XWR)}, {s(S_XWEND)}"))
                tl.N(T + 80, salu(f"s_cselect_b32 {s(S_XWR)}, {s(S_XW0)}, {s(S_XWR)}"))
            elif has_w:
                tl.N(T + 41, wm0()); tl.N(T + 42, wd(0)); tl.N(T + 52, wd(1)); tl.N(T + 63, wd(2)); tl.N(T + 74, wd(3))
            if has_w:
                wa = wq_advance()
                tl.N(T + 75, wa[0]); tl.N(T + 78, wa[1]); tl.N(T + 78, wa[2])
            early = {17: [("K", 0), ("V", 0)], 18: [("V", 1)], 19: [("K", 1), ("V", 2)]}
            if not stash and n in early:
                tt = T + 39
                for kind, idx in early[n]:
                    g = k_tile_dma(idx) if kind == "K" else v_tile_dma(idx)
                    tl.N(tt, g[0])
                    for j in range(4):
                        tl.N(tt + 1 + j, g[1 + j])
                    tl.N(tt + 4, g[5])
                    tt += 5
            if stash:
                def wq2(c, tt):
                    tl.N(tt, set_m0(S_LV, (c % 4) * 16384))
                    for j in range(4):
                        tl.N(tt + 1 + j, dma(vWd + j, sWQ, s(S_WQOFF), 1024 * j, False, ("wq2", c)))
                    wa = wq_advance()
                    tl.N(tt + 5, wa[0]); tl.N(tt + 6, wa[1]); tl.N(tt + 6, wa[2])
                if n == 16:
                    su = [salu(f"s_mov_b32 {s(S_BQ)}, {s(S_B0)}")] + task_setup_q()
                    for k_, ins in enumerate(su):
                        tl.N(T + 79, ins)
                if n == 17:
                    wq2(0, T + 39)
                    tl.N(T + 46, salu(f"s_add_u32 {s(S_T1)}, {s(S_XOFF)}, 128"))
                    g = x_dma(1, set_m0(S_XW0, 0), soff=S_T1, tg="x2")
                    tl.N(T + 47, g[0])
                    for j in range(4):
                        tl.N(T + 48 + j, g[1 + j])
                    tl.N(T + 51, g[5])
                    tl.N(T + 52, g[6])
                if n == 18: wq2(1, T + 39)
                if n == 19: wq2(2, T + 39)
    pre = tl.stream(-II + 24, 0, fill_nop=False)
    chunks = [tl.stream(c * II, (c + 1) * II) for c in range(NCH)]
    return pre, chunks


def q_convert():
    out = []
    for qt in range(5):
        for st in range(4):
            t0 = vT + ((qt * 4 + st) % 2) * 8
            for odd in range(2):
                src = Of(2 * st + odd, qt)
                for j in range(4):
                    out.append(valu(f"v_accvgpr_read_b32 v{t0 + odd*4 + j}, a{src.b + j}", [f"a{src.b+j}"], [f"v{t0+odd*4+j}"]))
            for p in range(4):
                r = t0 + 2 * p
                out.append(valu(f"v_pk_mul_f32 v[{r}:{r+1}], v[{r}:{r+1}], s[{S_C}:{S_C+1}]", [f"v{r}", f"v{r+1}"], [f"v{r}", f"v{r+1}"]))
            q = Qf(qt, st)
            for p in range(4):
                out.append(valu(f"v_cvt_pk_bf16_f32 v{q.b + p}, v{t0 + 2*p}, v{t0 + 2*p + 1}", [f"v{t0+2*p}", f"v{t0+2*p+1}"], [f"v{q.b+p}"]))
    return out


def a_phase(next_task_loads):
    II = 80
    tl = Timeline()
    NE = 32
    simple = [0,1,2,7,8,9] + list(range(10, 20)) + [24,25,26,31,32,33,38,39,40,45,46,47,52,53,54,59,60,61,66,67,68,73,74,75]
    kt0_reads = [66, 67, 68, 73]
    kt1_reads = [74, 75, 80, 81]
    dma_t = [82, 87, 88, 89, 90, 91, 92, 93]
    v_reads = [94,95,96,97,98,99,104,105,106,111,112,113,118,119,120,125]
    for e in range(-1, NE + 1):
        T = e * II
        if 0 <= e < NE:
            for t in range(40):
                kt, st, qt = t // 20, (t % 20) // 5, t % 5
                tl.mfma(T + t, mfma16(Sf(kt, qt), KF(kt, st), Qf(qt, st), 0 if st == 0 else Sf(kt, qt)))
        if 1 <= e <= NE:
            for t in range(40):
                dt, qt = t // 5, t % 5
                tl.mfma(T + 40 + t, mfma16(Of(dt, qt), VF(dt), Pf((e - 1) & 1, qt), 0 if e == 1 else Of(dt, qt)))
        if 0 <= e < NE:
            for kt in range(2):
                t = T + 20 + 35 * kt
                for qt in range(5):
                    S = Sf(kt, qt); P = Pf(e & 1, qt)
                    for j in range(4):
                        r = f"v{S.b + j}"
                        tl.Vv(t + j, valu(f"v_exp_f32 {r}, {r}", [r], [r], trans=True))
                    L = f"v{vL + qt}"
                    for j in range(4):
                        r = f"v{S.b + j}"
                        if e == 0 and kt == 0 and j == 0:
                            tl.Vv(t + 4, valu(f"v_mov_b32 {L}, {r}", [r], [L]))
                        else:
                            tl.Vv(t + 4 + j // 2, valu(f"v_add_f32 {L}, {L}, {r}", [L, r], [L]))
                    for jj in range(2):
                        d = f"v{P.b + 2*kt + jj}"
                        tl.Vv(t + 6, valu(f"v_cvt_pk_bf16_f32 {d}, v{S.b + 2*jj}, v{S.b + 2*jj + 1}", [f"v{S.b+2*jj}", f"v{S.b+2*jj+1}"], [d]))
                    t += 7
        n = e + 1
        if n <= NE:
            if e >= 0:
                tags = []
                if n < NE: tags.append(("K", n))
                tags.append(("V", e))
                tl.N(T + 63, lgkm0())
                tl.N(T + 64, vmwait(tags, cap=(0 if e == 31 else None)))
                tl.N(T + 65, barrier())
            if n < NE:
                slot = n % 4
                for st in range(4):
                    tl.N(T + kt0_reads[st], ds_read("ds_read_b128", KF(0, st), V(vKr + st), slot * 16384))
                    tl.N(T + kt1_reads[st], ds_read("ds_read_b128", KF(1, st), V(vKr + st), slot * 16384 + 4096))
            if 0 <= e < NE:
                slot = e % 4
                for dt in range(8):
                    for u in range(2):
                        tl.N(T + v_reads[2 * dt + u], ds_read("ds_read_b64_tr_b16", VF(dt).sub(2 * u, 2), V(vVr + dt), slot * 16384 + u * 4096))
            if 0 <= e <= 29:
                kn, vn = e + 4, e + 3
                tl.N(T + 79, set_m0(S_LK, (kn % 4) * 16384))
                for j in range(4):
                    tl.N(T + dma_t[j], dma(vKd + j, sK, s(S_KOFF), 1024 * j, True, ("K", kn)))
                tl.N(T + dma_t[3], set_m0(S_LV, (vn % 4) * 16384))
                for j in range(4):
                    tl.N(T + dma_t[4 + j], dma(vVd + (j & 1), sV, s(S_VOFF), 1024 * j, True, ("V", vn)))
                tl.N(T + 100, salu(f"s_add_u32 {s(S_KOFF)}, {s(S_KOFF)}, 8192"))
                tl.N(T + 101, salu(f"s_add_u32 {s(S_VOFF)}, {s(S_VOFF)}, 8192"))
            if e == 31:
                for k, ins in enumerate(next_task_loads):
                    tl.N(T + 66, ins)
    pre = tl.stream(-II + 63, 0, fill_nop=False)
    ep = [tl.stream(e * II, (e + 1) * II) for e in range(NE + 1)]
    return pre, ep


def o_epilogue():
    out = []
    t = vT
    for qt in range(5):
        L = vL + qt
        a_, b_ = t + 2 * qt, t + 2 * qt + 1
        out.append(valu(f"v_mov_b32 v{a_}, v{L}", [f"v{L}"], [f"v{a_}"]))
        out.append(valu(f"v_mov_b32 v{b_}, v{L}", [f"v{L}"], [f"v{b_}"]))
    out.append(nop(1))
    for qt in range(5):
        a_, b_ = t + 2 * qt, t + 2 * qt + 1
        out.append(valu(f"v_permlane32_swap_b32 v{a_}, v{b_}", [f"v{a_}", f"v{b_}"], [f"v{a_}", f"v{b_}"]))
    out.append(nop(1))
    for qt in range(5):
        a_, b_ = t + 2 * qt, t + 2 * qt + 1
        out.append(valu(f"v_add_f32 v{a_}, v{a_}, v{b_}", [f"v{a_}", f"v{b_}"], [f"v{a_}"]))
    for qt in range(5):
        a_, b_ = t + 2 * qt, t + 2 * qt + 1
        out.append(valu(f"v_mov_b32 v{b_}, v{a_}", [f"v{a_}"], [f"v{b_}"]))
    out.append(nop(1))
    for qt in range(5):
        a_, b_ = t + 2 * qt, t + 2 * qt + 1
        out.append(valu(f"v_permlane16_swap_b32 v{a_}, v{b_}", [f"v{a_}", f"v{b_}"], [f"v{a_}", f"v{b_}"]))
    out.append(nop(1))
    for qt in range(5):
        a_, b_ = t + 2 * qt, t + 2 * qt + 1
        L = vL + qt
        out.append(valu(f"v_add_f32 v{L}, v{a_}, v{b_}", [f"v{a_}", f"v{b_}"], [f"v{L}"]))
    return out

def o_store():
    out = []
    t = vT
    for qt in range(5):
        L = vL + qt
        r = t + 2 * qt
        out.append(valu(f"v_rcp_f32 v{r}, v{L}", [f"v{L}"], [f"v{r}"], trans=True))
    out.append(nop(0))
    for qt in range(5):
        r = t + 2 * qt
        out.append(valu(f"v_mov_b32 v{r+1}, v{r}", [f"v{r}"], [f"v{r+1}"]))
    base = t + 10
    k = 0
    for qt in range(5):
        inv = t + 2 * qt
        for vv in range(4):
            t0 = base + 2 + (k % 2) * 12
            t0 = vS + (k % 3) * 12
            for odd in range(2):
                src = Of(2 * vv + odd, qt)
                for j in range(4):
                    out.append(valu(f"v_accvgpr_read_b32 v{t0 + odd*4 + j}, a{src.b + j}", [f"a{src.b+j}"], [f"v{t0+odd*4+j}"]))
            for p in range(4):
                r = t0 + 2 * p
                out.append(valu(f"v_pk_mul_f32 v[{r}:{r+1}], v[{r}:{r+1}], v[{inv}:{inv+1}]", [f"v{r}", f"v{r+1}", f"v{inv}", f"v{inv+1}"], [f"v{r}", f"v{r+1}"]))
            d = t0 + 8
            for p in range(4):
                out.append(valu(f"v_cvt_pk_bf16_f32 v{d + p}, v{t0 + 2*p}, v{t0 + 2*p + 1}", [f"v{t0+2*p}", f"v{t0+2*p+1}"], [f"v{d+p}"]))
            out.append(salu(f"s_add_u32 {s(S_T0)}, {s(S_OOFF)}, {qt*131072 + vv*1024}"))
            out.append(I(f"buffer_store_dwordx4 v[{d}:{d+3}], v{vOst}, {srd(sO)}, {s(S_T0)} offen", "vmem", regs("v", d, 4) + [f"v{vOst}"], [], tag=("O", k)))
            k += 1
    return out


def xlane_reduce(regs5, op):
    out = []
    t = vT
    for qt in range(5):
        L = regs5 + qt
        a_, b_ = t + 2 * qt, t + 2 * qt + 1
        out.append(valu(f"v_mov_b32 v{a_}, v{L}", [f"v{L}"], [f"v{a_}"]))
        out.append(valu(f"v_mov_b32 v{b_}, v{L}", [f"v{L}"], [f"v{b_}"]))
    for qt in range(5):
        a_, b_ = t + 2 * qt, t + 2 * qt + 1
        out.append(valu(f"v_permlane32_swap_b32 v{a_}, v{b_}", [f"v{a_}", f"v{b_}"], [f"v{a_}", f"v{b_}"]))
    for qt in range(5):
        a_, b_ = t + 2 * qt, t + 2 * qt + 1
        out.append(valu(f"{op} v{a_}, v{a_}, v{b_}", [f"v{a_}", f"v{b_}"], [f"v{a_}"]))
    for qt in range(5):
        a_, b_ = t + 2 * qt, t + 2 * qt + 1
        out.append(valu(f"v_mov_b32 v{b_}, v{a_}", [f"v{a_}"], [f"v{b_}"]))
    for qt in range(5):
        a_, b_ = t + 2 * qt, t + 2 * qt + 1
        out.append(valu(f"v_permlane16_swap_b32 v{a_}, v{b_}", [f"v{a_}", f"v{b_}"], [f"v{a_}", f"v{b_}"]))
    for qt in range(5):
        a_, b_ = t + 2 * qt, t + 2 * qt + 1
        L = regs5 + qt
        out.append(valu(f"{op} v{L}, v{a_}, v{b_}", [f"v{a_}", f"v{b_}"], [f"v{L}"]))
    return out

def range_flag():
    o = []
    t = vS + 36
    o.append(salu(f"s_mov_b32 {s(S_T0)}, {fbits(L_LO):#x}"))
    o.append(salu(f"s_mov_b32 {s(S_T1)}, {fbits(L_HI):#x}"))
    o.append(valu(f"v_mov_b32 v{t+1}, {s(S_T1)}", [], [f"v{t+1}"]))
    o.append(salu("s_mov_b64 s[74:75], 0"))
    for qt in range(5):
        L = vL + qt
        o.append(valu(f"v_med3_f32 v{t}, v{L}, {s(S_T0)}, v{t+1}", [f"v{L}", f"v{t+1}"], [f"v{t}"]))
        o.append(valu(f"v_cmp_neq_f32 vcc, v{t}, v{L}", [f"v{t}", f"v{L}"], ["vcc"]))
        o.append(nop(1))
        o.append(salu("s_or_b64 s[74:75], s[74:75], vcc"))
    o.append(salu("s_cmp_lg_u64 s[74:75], 0"))
    o.append(salu(f"s_cselect_b32 {s(S_T0)}, 1, 0"))
    o.append(salu(f"s_lshl_b32 {s(S_T1)}, {s(S_W)}, 2"))
    o.append(salu(f"s_add_u32 {s(S_T1)}, {s(S_T1)}, {FLAGS}"))
    o.append(valu(f"v_mov_b32 v{t}, {s(S_T0)}", [], [f"v{t}"]))
    o.append(valu(f"v_mov_b32 v{t+1}, {s(S_T1)}", [], [f"v{t+1}"]))
    o.append(I(f"ds_write_b32 v{t+1}, v{t}", "lds", [f"v{t}", f"v{t+1}"], []))
    return o

def range_check():
    t = vS
    return [lgkm0(), barrier(),
            valu(f"v_mov_b32 v{t}, {FLAGS}", [], [f"v{t}"]),
            I(f"ds_read_b128 v[{t+2}:{t+5}], v{t}", "lds", [f"v{t}"], regs("v", t + 2, 4)),
            lgkm0(),
            valu(f"v_or3_b32 v{t}, v{t+2}, v{t+3}, v{t+4}", regs("v", t + 2, 3), [f"v{t}"]),
            valu(f"v_or_b32 v{t}, v{t}, v{t+5}", [f"v{t}", f"v{t+5}"], [f"v{t}"]),
            nop(0),
            valu(f"v_readfirstlane_b32 {s(S_T0)}, v{t}", [f"v{t}"], [s(S_T0)]),
            nop(3)]

def fallback():
    vFK, vFV, vM = vP + 20, vP + 24, vP + 32
    def kdma():
        o = [salu(f"s_add_u32 m0, {s(S_LK)}, {XR}", [], ["m0"]), nop(0)]
        for j in range(4): o.append(dma(vKd + j, sK, s(S_FOFF), 1024 * j, False, ("fb", 0)))
        return o
    def vdma():
        o = [salu(f"s_add_u32 m0, {s(S_LK)}, {XR + 16384}", [], ["m0"]), nop(0)]
        for j in range(4): o.append(dma(vVd + (j & 1), sV, s(S_FOFF), 1024 * j, False, ("fb", 1)))
        return o
    def foff_init():
        return [salu(f"s_lshl_b32 {s(S_T0)}, {s(S_HALF)}, 12"), salu(f"s_add_u32 {s(S_FOFF)}, {s(S_HOFF)}, {s(S_T0)}"),
                salu(f"s_mov_b32 {s(S_CNT)}, 32")]
    def qk():
        o = []
        for kt in range(2):
            for st in range(4):
                o.append(ds_read("ds_read_b128", KF(kt, st), V(vFK + st), kt * 4096))
        o.append(lgkm0())
        for t in range(40):
            kt, st, qt = t // 20, (t % 20) // 5, t % 5
            o.append(mfma16(Sf(kt, qt), KF(kt, st), Qf(qt, st), 0 if st == 0 else Sf(kt, qt)))
        return o
    wait0 = lambda: [I("s_waitcnt vmcnt(0)", "wait", info="fixed"), barrier()]
    pre = []
    for st in range(4): pre.append(valu(f"v_add_u32 v{vFK+st}, {XR}, v{vKr+st}", [f"v{vKr+st}"], [f"v{vFK+st}"]))
    for dt in range(8): pre.append(valu(f"v_add_u32 v{vFV+dt}, {XR + 16384 - VR}, v{vVr+dt}", [f"v{vVr+dt}"], [f"v{vFV+dt}"]))
    for qt in range(5): pre.append(valu(f"v_mov_b32 v{vM+qt}, 0xff800000", [], [f"v{vM+qt}"]))
    pre += foff_init()
    p1 = kdma() + wait0() + qk()
    for qt in range(5):
        for kt in range(2):
            S_ = Sf(kt, qt)
            for jj in range(2):
                m = f"v{vM+qt}"
                p1.append(valu(f"v_max3_f32 {m}, {m}, v{S_.b+2*jj}, v{S_.b+2*jj+1}", [m, f"v{S_.b+2*jj}", f"v{S_.b+2*jj+1}"], [m]))
    p1 += [barrier(), salu(f"s_add_u32 {s(S_FOFF)}, {s(S_FOFF)}, 8192")]
    mid = xlane_reduce(vM, "v_max_f32")
    for k in range(160): mid.append(valu(f"v_accvgpr_write_b32 a{aO+k}, 0", [], [f"a{aO+k}"]))
    for qt in range(5): mid.append(valu(f"v_mov_b32 v{vL+qt}, 0", [], [f"v{vL+qt}"]))
    mid += foff_init()
    p2 = kdma() + vdma() + wait0() + qk()
    for kt in range(2):
        for qt in range(5):
            S_ = Sf(kt, qt); P_ = Pf(0, qt); L = f"v{vL+qt}"; m = f"v{vM+qt}"
            for j in range(4):
                r = f"v{S_.b+j}"
                p2.append(valu(f"v_sub_f32 {r}, {r}, {m}", [r, m], [r]))
            for j in range(4):
                r = f"v{S_.b+j}"
                p2.append(valu(f"v_exp_f32 {r}, {r}", [r], [r], trans=True))
            for j in range(4):
                r = f"v{S_.b+j}"
                p2.append(valu(f"v_add_f32 {L}, {L}, {r}", [L, r], [L]))
            for jj in range(2):
                d = f"v{P_.b+2*kt+jj}"
                p2.append(valu(f"v_cvt_pk_bf16_f32 {d}, v{S_.b+2*jj}, v{S_.b+2*jj+1}", [f"v{S_.b+2*jj}", f"v{S_.b+2*jj+1}"], [d]))
    for dt in range(8):
        for u in range(2):
            p2.append(ds_read("ds_read_b64_tr_b16", VF(dt).sub(2 * u, 2), V(vFV + dt), u * 4096))
        if dt == 3: p2.append(lgkm0())
    p2.append(lgkm0())
    for t in range(40):
        dt, qt = t // 5, t % 5
        p2.append(mfma16(Of(dt, qt), VF(dt), Pf(0, qt), Of(dt, qt)))
    p2 += [barrier(), salu(f"s_add_u32 {s(S_FOFF)}, {s(S_FOFF)}, 8192")]
    return [("fb_pre", pre), ("fb_p1", p1), ("fb_mid", mid), ("fb_p2", p2)]


def k1_prologue():
    L = []
    a = L.append
    a("s_cmp_ge_u32 s2, 256")
    a("s_cbranch_scc1 L1_done")
    a("s_load_dwordx8 s[52:59], s[0:1], 0")
    a("s_load_dwordx8 s[60:67], s[0:1], 40")
    a("s_load_dwordx2 s[4:5], s[0:1], 96")
    a("s_load_dwordx2 s[84:85], s[0:1], 32")
    a("s_load_dwordx2 s[86:87], s[0:1], 72")
    a("v_lshrrev_b32 v1, 6, v0")
    a("v_and_b32 v2, 63, v0")
    a(f"v_readfirstlane_b32 {s(S_W)}, v1")
    a("s_and_b32 s3, s2, 7")
    a("s_lshr_b32 s6, s2, 3")
    a(f"s_lshr_b32 {s(S_HSEL)}, {s(S_W)}, 1")
    a(f"s_and_b32 {s(S_HALF)}, {s(S_W)}, 1")
    a(f"s_lshr_b32 {s(S_B0)}, s6, 2")
    a("s_and_b32 s6, s6, 3")
    a(f"s_mov_b32 {s(S_PAIR)}, s6")
    if ROT:
        a(f"s_lshr_b32 s7, {s(S_B0)}, 2"); a(f"s_add_u32 s7, s7, {s(S_B0)}"); a("s_lshl_b32 s7, s7, 1")
        a(f"s_mul_i32 {s(S_ROT)}, s6, 5"); a(f"s_add_u32 s7, s7, {s(S_ROT)}")
        a(f"s_and_b32 {s(S_ROT)}, s6, 1"); a(f"s_sub_u32 s7, s7, {s(S_ROT)}")
        a("s_sub_u32 s3, s7, 20"); a("s_cmp_ge_u32 s7, 20"); a(f"s_cselect_b32 {s(S_ROT)}, s3, s7")
        a("s_and_b32 s3, s2, 7")
    else:
        a(f"s_mov_b32 {s(S_ROT)}, 0")
    if MAP2:
        a("s_lshr_b32 s7, s3, 1")
    else:
        a("s_and_b32 s7, s3, 3")
    a("s_lshl_b32 s7, s7, 3")
    a("s_lshl_b32 s6, s6, 1")
    a("s_add_u32 s7, s7, s6")
    a(f"s_add_u32 {s(S_H)}, s7, {s(S_HSEL)}")
    if MAP2:
        a("s_and_b32 s3, s3, 1")
    else:
        a("s_lshr_b32 s3, s3, 2")
    a(f"s_mov_b32 {s(S_T3)}, s3")
    a("s_waitcnt lgkmcnt(0)")
    a("s_cmp_eq_u32 s3, 0")
    for k in range(8):
        a(f"s_cselect_b32 s{52+k}, s{52+k}, s{60+k}")
    def mk(n, lo, hi, size):
        a(f"s_mov_b32 s{n}, s{lo}")
        a(f"s_and_b32 s{n+1}, s{hi}, 0xffff")
        a(f"s_mov_b32 s{n+2}, {size}")
        a(f"s_mov_b32 s{n+3}, 0x20000")
    mk(sX, 52, 53, 16 * 160 * 1280)
    mk(sK, 54, 55, 0x8000000)
    mk(sV, 56, 57, 0x8000000)
    mk(sWQ, 58, 59, 640 * 8192)
    mk(sO, 4, 5, WS_USED)
    a("s_cmp_lt_u32 s2, 128")
    a("s_cselect_b32 s84, s84, s86")
    a("s_cselect_b32 s85, s85, s87")
    mk(sWO, 84, 85, 4096 * 1280)
    c = math.log2(math.e) / math.sqrt(128.0)
    a(f"s_mov_b32 s{S_C}, {fbits(c):#x}")
    a(f"s_mov_b32 s{S_C+1}, {fbits(c):#x}")
    a(f"s_lshl_b32 s6, {s(S_HSEL)}, 13")
    a(f"s_lshl_b32 s7, {s(S_HALF)}, 12")
    a(f"s_add_u32 {s(S_LK)}, s6, s7")
    a(f"s_add_u32 {s(S_LV)}, {s(S_LK)}, {VR}")
    a(f"s_mul_i32 {s(S_XW0)}, {s(S_W)}, 5120")
    a(f"s_add_u32 {s(S_XWEND)}, {s(S_XW0)}, {3*XSLOT}")
    a("v_and_b32 v3, 15, v2")
    a("v_lshrrev_b32 v4, 4, v2")
    a(f"s_lshl_b32 s6, {s(S_HSEL)}, 13")
    a("v_xor_b32 v5, v4, v3")
    a("v_lshlrev_b32 v5, 4, v5")
    a("v_lshlrev_b32 v6, 8, v3")
    a("v_add3_u32 v5, v5, v6, s6")
    for st in range(4):
        a(f"v_xor_b32 v{vKr+st}, {st << 6}, v5")
    a("v_lshrrev_b32 v6, 2, v3")
    a("v_and_b32 v7, 3, v3")
    a("v_lshl_add_u32 v8, v4, 2, v6")
    a("v_and_b32 v9, 7, v8")
    a("v_lshlrev_b32 v9, 1, v9")
    a("v_lshrrev_b32 v10, 1, v7")
    a("v_xor_b32 v9, v9, v10")
    a("v_lshlrev_b32 v9, 4, v9")
    a("v_and_b32 v10, 1, v7")
    a("v_lshlrev_b32 v10, 3, v10")
    a("v_lshlrev_b32 v8, 8, v8")
    a("v_add3_u32 v9, v9, v10, v8")
    a(f"s_add_u32 s7, s6, {VR}")
    a("v_add_u32 v9, s7, v9")
    for dt in range(8):
        a(f"v_xor_b32 v{vVr+dt}, {dt << 5}, v9")
    a("v_lshl_add_u32 v8, v4, 3, v6")
    a("v_lshlrev_b32 v8, 8, v8")
    a("v_lshlrev_b32 v9, 2, v6")
    a("v_xor_b32 v9, v9, v7")
    a("v_lshlrev_b32 v9, 4, v9")
    a("v_add3_u32 v9, v9, v8, s7")
    for st in range(4):
        a(f"v_xor_b32 v{vWr+st}, {st << 6}, v9")
    a("v_lshrrev_b32 v8, 1, v3")
    a("v_xor_b32 v8, v8, v4")
    a("v_lshlrev_b32 v8, 4, v8")
    a("v_lshlrev_b32 v9, 7, v3")
    a(f"s_mul_i32 s7, {s(S_HALF)}, {80*128}")
    a(f"v_add3_u32 v{vXpat}, v8, v9, s7")
    a(f"v_xor_b32 v{vXpat+1}, 64, v{vXpat}")
    a("v_xor_b32 v8, v3, v4")
    a("v_lshlrev_b32 v8, 4, v8")
    a("v_lshl_add_u32 v8, v4, 8, v8")
    for j in range(4):
        a(f"v_xor_b32 v{vKd+j}, {j << 6}, v8")
    a("v_lshlrev_b32 v8, 1, v4")
    a("v_xor_b32 v8, v8, v3")
    a("v_lshlrev_b32 v8, 4, v8")
    a("v_lshl_add_u32 v8, v4, 8, v8")
    a(f"v_mov_b32 v{vVd}, v8")
    a(f"v_xor_b32 v{vVd+1}, {8 << 4}, v8")
    a("v_lshlrev_b32 v8, 2, v4")
    a("v_xor_b32 v8, v8, v3")
    a("v_lshlrev_b32 v8, 4, v8")
    a("v_lshl_add_u32 v8, v4, 13, v8")
    for j in range(4):
        a(f"v_add_u32 v{vWd+j}, {j*31744}, v8")
    a("v_lshrrev_b32 v9, 3, v2")
    a("v_mul_u32_u24 v9, 1280, v9")
    a("v_and_b32 v10, 7, v2")
    for j in range(5):
        a(f"s_add_u32 s7, {s(S_W)}, {j}")
        a("s_and_b32 s7, s7, 1")
        a("s_lshl_b32 s7, s7, 2")
        a("v_add_u32 v8, s7, v4")
        a("v_xor_b32 v8, v8, v10")
        a("v_lshlrev_b32 v8, 4, v8")
        a(f"v_add3_u32 v{vXd+j}, v8, v9, {0}") if False else None
        a(f"s_mov_b32 s7, {8*j*1280 - (1024*j if j < 4 else 0)}")
        a(f"v_add3_u32 v{vXd+j}, v8, v9, s7")
    a(f"v_lshlrev_b32 v{vOst}, 4, v2")
    a(f"v_lshlrev_b32 v{vPfX}, 7, v2")
    a("v_lshrrev_b32 v8, 2, v2"); a("v_lshlrev_b32 v8, 13, v8"); a("v_and_b32 v9, 3, v2"); a("v_lshlrev_b32 v9, 7, v9")
    a(f"v_add_u32 v{vPfW}, v8, v9")
    if XY:
        a(f"s_getreg_b32 {s(S_TYPE)}, hwreg(HW_REG_XCC_ID)")
        a(f"s_and_b32 {s(S_TYPE)}, {s(S_TYPE)}, 1")
        if XSEL == "even":
            a(f"s_xor_b32 {s(S_TYPE)}, {s(S_TYPE)}, 1")
        elif XSEL == "slot":
            a(f"s_lshr_b32 {s(S_TYPE)}, s2, 5"); a(f"s_and_b32 {s(S_TYPE)}, {s(S_TYPE)}, 1")
        elif XSEL == "all":
            a(f"s_mov_b32 {s(S_TYPE)}, 1")
    else:
        a(f"s_mov_b32 {s(S_TYPE)}, 0")
    import os
    if os.environ.get("K1XEXIT"):
        a(f"s_cmp_eq_u32 {s(S_TYPE)}, 1"); a("s_cbranch_scc1 L1_done")
    if os.environ.get("K1BURN"):
        a(f"s_mov_b32 s6, {int(os.environ['K1BURN'])}")
        for i_ in range(64): a(f"v_mov_b32 v{96+i_}, v{176+i_%30}")
        L.append("L1_burn:")
        for i_ in range(64):
            c_ = 4 * (i_ % 32)
            a(f"v_mfma_f32_16x16x32_bf16 a[{c_}:{c_+3}], v[{96+4*(i_%8)}:{99+4*(i_%8)}], v[{128+4*(i_%7)}:{131+4*(i_%7)}], a[{c_}:{c_+3}]")
        a("s_sub_u32 s6, s6, 1"); a("s_cmp_lg_u32 s6, 0"); a("s_cbranch_scc1 L1_burn")
    if os.environ.get("K1DELAY"):
        n_ = int(os.environ["K1DELAY"])
        a("s_lshr_b32 s6, s2, 5"); a("s_and_b32 s6, s6, 1"); a("s_cmp_eq_u32 s6, 0"); a("s_cbranch_scc1 L1_nodelay")
        for _ in range(n_): a("s_sleep 127")
        L.append("L1_nodelay:")
    a(f"s_mov_b32 {s(S_PASS)}, {s(S_TYPE)}")
    a(f"s_mov_b32 {s(S_ADONE)}, 0")
    a(f"s_mov_b32 {s(S_BA)}, {s(S_B0)}")
    a(f"s_add_u32 {s(S_B8)}, {s(S_B0)}, 8")
    a(f"s_cmp_eq_u32 {s(S_TYPE)}, 1")
    a(f"s_cselect_b32 {s(S_BQ)}, {s(S_B8)}, {s(S_B0)}")
    a(f"s_mul_i32 s6, s2, 81920"); a(f"s_mul_i32 s7, {s(S_W)}, 20480"); a("s_add_u32 s6, s6, s7")
    a(f"s_add_u32 {s(S_QS)}, s6, {QS_BASE}")
    return L


def task_setup_q():
    o = []
    o.append(salu(f"s_mul_i32 {s(S_T0)}, {s(S_BQ)}, 160"))
    o.append(salu(f"s_mul_i32 {s(S_T1)}, {s(S_W)}, 40"))
    o.append(salu(f"s_add_u32 {s(S_T0)}, {s(S_T0)}, {s(S_T1)}"))
    o.append(salu(f"s_mul_i32 {s(S_XST)}, {s(S_T0)}, 1280"))
    o.append(salu(f"s_add_u32 {s(S_XEND)}, {s(S_XST)}, 1280"))
    o.append(salu(f"s_lshl_b32 {s(S_T0)}, {s(S_ROT)}, 6"))
    o.append(salu(f"s_add_u32 {s(S_XOFF)}, {s(S_XST)}, {s(S_T0)}"))
    o.append(salu(f"s_lshl_b32 {s(S_T0)}, {s(S_HALF)}, 17"))
    o.append(salu(f"s_lshl_b32 {s(S_T1)}, {s(S_H)}, 8"))
    o.append(salu(f"s_add_u32 {s(S_WQST)}, {s(S_T0)}, {s(S_T1)}"))
    o.append(salu(f"s_add_u32 {s(S_WQEND)}, {s(S_WQST)}, {640*8192}"))
    o.append(salu(f"s_lshl_b32 {s(S_T0)}, {s(S_ROT)}, 18"))
    o.append(salu(f"s_add_u32 {s(S_WQOFF)}, {s(S_WQST)}, {s(S_T0)}"))
    if PF:
        o.append(salu(f"s_mul_i32 {s(S_T0)}, {s(S_BQ)}, 160"))
        o.append(salu(f"s_mul_i32 {s(S_T1)}, {s(S_PAIR)}, 40"))
        o.append(salu(f"s_add_u32 {s(S_T0)}, {s(S_T0)}, {s(S_T1)}"))
        o.append(salu(f"s_mul_i32 {s(S_T0)}, {s(S_T0)}, 1280"))
        o.append(salu(f"s_lshl_b32 {s(S_T1)}, {s(S_W)}, 14"))
        o.append(salu(f"s_add_u32 {s(S_PFX)}, {s(S_T0)}, {s(S_T1)}"))
        o.append(salu(f"s_mul_i32 {s(S_T0)}, {s(S_B0)}, 80"))
        o.append(salu(f"s_lshl_b32 {s(S_T1)}, {s(S_W)}, 4"))
        o.append(salu(f"s_add_u32 {s(S_T0)}, {s(S_T0)}, {s(S_T1)}"))
        o.append(salu(f"s_lshl_b32 {s(S_T0)}, {s(S_T0)}, 13"))
        o.append(salu(f"s_sub_u32 {s(S_T1)}, {s(S_H)}, {s(S_HSEL)}"))
        o.append(salu(f"s_lshl_b32 {s(S_T1)}, {s(S_T1)}, 8"))
        o.append(salu(f"s_add_u32 {s(S_PFW)}, {s(S_T0)}, {s(S_T1)}"))
    return o

def kv_stream(breg):
    o = []
    o.append(salu(f"s_lshl_b32 {s(S_T0)}, {s(breg)}, 5"))
    o.append(salu(f"s_add_u32 {s(S_T0)}, {s(S_T0)}, {s(S_H)}"))
    o.append(salu(f"s_lshl_b32 {s(S_HOFF)}, {s(S_T0)}, 18"))
    o.append(salu(f"s_add_u32 {s(sK+2)}, {s(S_HOFF)}, 262144"))
    o.append(salu(f"s_mov_b32 {s(sV+2)}, {s(sK+2)}"))
    o.append(salu(f"s_lshl_b32 {s(S_T0)}, {s(S_HALF)}, 12"))
    o.append(salu(f"s_add_u32 {s(S_KOFF)}, {s(S_HOFF)}, {s(S_T0)}"))
    o.append(salu(f"s_mov_b32 {s(S_VOFF)}, {s(S_KOFF)}"))
    return o

def kv_out(breg):
    o = []
    o.append(salu(f"s_lshl_b32 {s(S_T0)}, {s(S_T3)}, 4"))
    o.append(salu(f"s_add_u32 {s(S_T0)}, {s(S_T0)}, {s(breg)}"))
    o.append(salu(f"s_mul_i32 {s(S_T0)}, {s(S_T0)}, 10"))
    o.append(salu(f"s_mul_i32 {s(S_T1)}, {s(S_HALF)}, 5"))
    o.append(salu(f"s_add_u32 {s(S_T0)}, {s(S_T0)}, {s(S_T1)}"))
    o.append(salu(f"s_lshl_b32 {s(S_T0)}, {s(S_T0)}, 7"))
    o.append(salu(f"s_lshl_b32 {s(S_T1)}, {s(S_H)}, 2"))
    o.append(salu(f"s_add_u32 {s(S_T0)}, {s(S_T0)}, {s(S_T1)}"))
    o.append(salu(f"s_lshl_b32 {s(S_OOFF)}, {s(S_T0)}, 10"))
    return o

def q_stash(store):
    o = []
    o.append(salu(f"s_mov_b32 {s(S_T0)}, {s(S_QS)}"))
    for f in range(20):
        r = vQ + 4 * f
        off = f" offset:{1024 * (f % 4)}" if f % 4 else ""
        if store:
            o.append(I(f"buffer_store_dwordx4 v[{r}:{r+3}], v{vOst}, {srd(sO)}, {s(S_T0)} offen{off}", "vmem", regs("v", r, 4) + [f"v{vOst}"], [], tag=("qs", f)))
        else:
            o.append(I(f"buffer_load_dwordx4 v[{r}:{r+3}], v{vOst}, {srd(sO)}, {s(S_T0)} offen{off}", "vmem", [f"v{vOst}"], regs("v", r, 4), tag=("ql", f)))
        if f % 4 == 3 and f < 19:
            o.append(salu(f"s_add_u32 {s(S_T0)}, {s(S_T0)}, 4096"))
    return o


STAMP = False
def stamp(idx):
    if not STAMP: return []
    return ["    s_memtime s[74:75]", "    s_memrealtime s[76:77]", "    s_waitcnt lgkmcnt(0)",
            f"    s_lshl_b32 s78, {s(S_STK)}, 1",
            "    v_mbcnt_lo_u32_b32 v13, -1, 0", "    v_mbcnt_hi_u32_b32 v13, -1, v13",
            "    v_cmp_eq_u32 vcc, s78, v13", "    v_mov_b32 v14, s74", "    s_nop 1", "    v_cndmask_b32 v15, v15, v14, vcc",
            "    s_add_u32 s78, s78, 1",
            "    v_cmp_eq_u32 vcc, s78, v13", "    v_mov_b32 v14, s76", "    s_nop 1", "    v_cndmask_b32 v15, v15, v14, vcc",
            f"    v_cmp_eq_u32 vcc, {s(S_STK)}, v13", f"    v_mov_b32 v14, {idx}", "    s_nop 1", "    v_cndmask_b32 v11, v11, v14, vcc",
            f"    s_add_u32 {s(S_STK)}, {s(S_STK)}, 1"]

def same_text(a, b):
    return [x.text for x in a] == [x.text for x in b]


def process(named, name):
    tagged = []
    for nme, st in named:
        tagged.append(I(f"@@{nme}", "label"))
        tagged.extend(st)
    resolve_vm_waits(tagged, ignore=('pf', 'cv', 'next', 'qs', 'ql'))
    tagged = insert_lgkm_waits(tagged, lat=6)
    tagged, notes = check_hazards(tagged, name, fix=True)
    for e_ in notes[:40]:
        print("NOTE", e_, file=sys.stderr)
    errs = check_hazards(tagged, name)
    assert not errs, errs[:5]
    seg = {}
    cur = None
    for ins in tagged:
        if ins.kind == "label" and ins.text.startswith("@@"):
            cur = ins.text[2:]; seg[cur] = []
        else:
            seg[cur].append(ins)
    return seg

def with_nops(g):
    return g[:1] + [nop(0)] + g[1:]

def build_k1():
    import os
    lines = []
    lines += ["    " + x for x in k1_prologue()]
    hookY = [salu(f"s_mov_b32 {s(S_BQ)}, {s(S_B8)}")] + task_setup_q() + q_groups_initial()
    hookX = kv_stream(S_B8) + q_stash(False)
    for kind, idx in (("K", 0), ("V", 0), ("V", 1), ("K", 1), ("V", 2), ("K", 2), ("K", 3)):
        hookX += with_nops(k_tile_dma(idx) if kind == "K" else v_tile_dma(idx))
    nxt = [raw(f"s_cmp_eq_u32 {s(S_ADONE)}, 1"), raw("s_cbranch_scc1 L1_hlast", "branch"),
           raw(f"s_cmp_eq_u32 {s(S_TYPE)}, 1"), raw("s_cbranch_scc1 L1_hX", "branch")] + hookY + \
          [raw("s_branch L1_hend", "branch"), label("L1_hX")] + hookX + [raw("s_branch L1_hend", "branch"), label("L1_hlast")] + \
          wo_convert_load() + [label("L1_hend")]
    for x in nxt:
        if x.kind in ("dma", "vmem"): x.tag = ("next", x.tag)
    qpre, qch = q_phase(False)
    apre, aep = a_phase(nxt)
    mid = [lgkm0(), vmwait([("K", 0)]), barrier()] + with_nops(k_tile_dma(2)) + with_nops(k_tile_dma(3))
    named = [("setup_q", task_setup_q()), ("init", q_groups_initial(first=True)), ("qpre", qpre)]
    named += [(f"q{c}", qch[c]) for c in range(16)]
    named += [("kvset", kv_stream(S_BA) + kv_out(S_BA))]
    named += [(f"q{c}", qch[c]) for c in range(16, 20)]
    named += [("mid", mid), ("apre", apre), ("conv", [nop(7)] + q_convert())]
    named += [(f"e{e}", aep[e]) for e in range(33)]
    named += [("epi1", [nop(7)] + o_epilogue() + range_flag()), ("epi2", o_store()), ("chk", range_check())]
    seg = process(named, "k1")
    segF = process([("fb0", [nop(7)])] + fallback() + [("fb_end", [nop(7)])], "k1F")
    qpreS, qchS = q_phase(True)
    g0 = x_dma(0, set_m0(S_XW0, 2 * XSLOT), tg="x2")
    midS = [lgkm0(), barrier(), g0[0], nop(0)] + g0[1:6] + [nop(0), g0[6]] + \
           [salu(f"s_add_u32 {s(S_XOFF)}, {s(S_XOFF)}, 256"),
            salu(f"s_add_u32 {s(S_XWR)}, {s(S_XW0)}, {1*XSLOT}"), salu(f"s_mov_b32 {s(S_XRD)}, {2*XSLOT}")]
    namedS = [("setup_q", task_setup_q()), ("init", q_groups_initial(first=True)), ("qpre", qpreS)]
    namedS += [(f"q{c}", qchS[c]) for c in range(20)]
    namedS += [("midS", midS), ("convS", [nop(7)] + q_convert()), ("stash", q_stash(True))]
    segS = process(namedS, "k1S")
    for c in range(16):
        assert same_text(seg[f"q{c}"], segS[f"q{c}"]), f"stash flow differs in chunk {c}"
    DBG = os.environ.get("K1DBG", "")
    if DBG:
        def filt(st, pre):
            o = []
            for x in st:
                tg = x.tag[0] if isinstance(x.tag, tuple) else None
                if pre + 'l' in DBG and x.kind == 'lds': continue
                if pre + 'x' in DBG and x.kind == 'dma' and tg == 'x': continue
                if pre + 'w' in DBG and x.kind == 'dma' and tg == 'wq': continue
                if pre + 'k' in DBG and x.kind == 'dma' and tg in ('kq', 'K'): continue
                if pre + 'v' in DBG and x.kind == 'dma' and tg == 'V': continue
                if pre + 'b' in DBG and x.kind == 'barrier': continue
                if pre + 'm' in DBG and x.kind == 'mfma': continue
                if pre + 'e' in DBG and x.kind in ('valu', 'trans'): continue
                if pre + 'W' in DBG and x.kind == 'wait' and 'vmcnt' in x.text: continue
                o.append(x)
            return o
        for k in list(seg.keys()):
            if k[0] == 'q' and k[1:].isdigit(): seg[k] = filt(seg[k], 'q')
            if k[0] == 'e' and k[1:].isdigit(): seg[k] = filt(seg[k], 'a')
    def cat(names, sg=None): return [x for n in names for x in (sg or seg)[n]]
    qloop = cat([f"q{c}" for c in range(4, 8)])
    for it in range(2, 4):
        assert same_text(qloop, cat([f"q{c}" for c in range(4 * it, 4 * it + 4)])), f"Q loop iteration {it} differs"
    aloop = cat([f"e{e}" for e in range(2, 6)])
    for it in range(1, 7):
        other = cat([f"e{e}" for e in range(2 + 4 * it, 6 + 4 * it)])
        assert same_text(aloop, other), f"A loop iteration {it} differs"
    E = lambda st: emit(st)
    A_ = lambda *x: lines.extend(["    " + t for t in x])
    A_(f"s_mov_b32 {s(S_STK)}, 0")
    lines += stamp(6)
    lines += E(seg["setup_q"]) + E(seg["init"])
    lines.append("L1_q:")
    lines += stamp(0)
    lines += E(seg["qpre"])
    lines += E(cat(["q0", "q1", "q2", "q3"]))
    A_(f"s_mov_b32 {s(S_CNT)}, 3")
    lines.append(".p2align 6")
    lines.append("L1_qloop:")
    lines += E(qloop)
    A_(f"s_sub_u32 {s(S_CNT)}, {s(S_CNT)}, 1", f"s_cmp_lg_u32 {s(S_CNT)}, 0", "s_cbranch_scc1 L1_qloop")
    A_(f"s_cmp_eq_u32 {s(S_PASS)}, 1", "s_cbranch_scc1 L1_qS")
    lines += E(seg["kvset"])
    lines += E(cat(["q16", "q17", "q18", "q19"]))
    lines += stamp(1)
    lines += E(seg["mid"]) + E(seg["apre"]) + E(seg["conv"])
    lines.append("L1_a:")
    lines += stamp(2)
    lines += E(cat(["e0", "e1"]))
    A_(f"s_mov_b32 {s(S_CNT)}, 7")
    lines.append(".p2align 6")
    lines.append("L1_aloop:")
    lines += E(aloop)
    A_(f"s_sub_u32 {s(S_CNT)}, {s(S_CNT)}, 1", f"s_cmp_lg_u32 {s(S_CNT)}, 0", "s_cbranch_scc1 L1_aloop")
    lines += stamp(3)
    lines += E(cat(["e30", "e31", "e32"]))
    lines += stamp(4)
    A_(f"s_mov_b32 {s(S_FB)}, 0")
    lines.append("L1_epi:")
    lines += E(seg["epi1"]) + E(seg["epi2"]) + E(seg["chk"])
    A_(f"s_cmp_eq_u32 {s(S_T0)}, 0", "s_cbranch_scc1 L1_ok", f"s_cmp_eq_u32 {s(S_FB)}, 0", "s_cbranch_scc1 L1_fallback")
    lines.append("L1_ok:")
    lines += stamp(5)
    A_(f"s_cmp_eq_u32 {s(S_ADONE)}, 1", "s_cbranch_scc1 L1_fin",
       f"s_mov_b32 {s(S_ADONE)}, 1", f"s_mov_b32 {s(S_BA)}, {s(S_B8)}",
       f"s_cmp_eq_u32 {s(S_TYPE)}, 0", "s_cbranch_scc1 L1_q")
    lines += E(kv_out(S_BA))
    A_("s_waitcnt vmcnt(44)", "s_barrier")
    lines += E(seg["apre"])
    A_("s_branch L1_a")
    lines.append("L1_qS:")
    lines += E(cat(["q16", "q17", "q18", "q19"], segS))
    lines += stamp(7)
    lines += E(segS["midS"]) + E(segS["convS"]) + E(segS["stash"])
    A_(f"s_mov_b32 {s(S_PASS)}, 0", "s_branch L1_q")
    lines.append("L1_fallback:")
    A_(f"s_mov_b32 {s(S_FB)}, 1")
    lines += E(segF["fb0"]) + E(segF["fb_pre"])
    lines.append("L1_fb1:")
    lines += E(segF["fb_p1"])
    A_(f"s_sub_u32 {s(S_CNT)}, {s(S_CNT)}, 1", f"s_cmp_lg_u32 {s(S_CNT)}, 0", "s_cbranch_scc1 L1_fb1")
    lines += E(segF["fb_mid"])
    lines.append("L1_fb2:")
    lines += E(segF["fb_p2"])
    A_(f"s_sub_u32 {s(S_CNT)}, {s(S_CNT)}, 1", f"s_cmp_lg_u32 {s(S_CNT)}, 0", "s_cbranch_scc1 L1_fb2")
    lines += E(segF["fb_end"])
    A_("s_branch L1_epi")
    lines.append("L1_fin:")
    lines += E(insert_lgkm_waits(wo_convert_store(20)))
    lines += stamp(8)
    if STAMP:
        lines += [f"    s_cmp_lg_u32 {s(S_W)}, 0", "    s_cbranch_scc1 L1_done",
                  f"    s_lshl_b32 s78, s2, 9", f"    s_add_u32 s78, s78, {STAMP_BASE}",
                  "    v_mbcnt_lo_u32_b32 v14, -1, 0", "    v_mbcnt_hi_u32_b32 v14, -1, v14", "    v_lshlrev_b32 v14, 2, v14",
                  f"    buffer_store_dword v15, v14, {srd(sO)}, s78 offen", f"    buffer_store_dword v11, v14, {srd(sO)}, s78 offen offset:256", "    s_waitcnt vmcnt(0)"]
    lines.append("L1_done:")
    lines.append("    s_endpgm")
    return lines


def kernel_desc(name, vgpr, accum, sgpr=102):
    return [f".amdhsa_kernel {name}",
            f"  .amdhsa_next_free_vgpr {vgpr}", f"  .amdhsa_next_free_sgpr {sgpr}", f"  .amdhsa_accum_offset {accum}",
            "  .amdhsa_group_segment_fixed_size 0", "  .amdhsa_kernarg_size 104",
            "  .amdhsa_user_sgpr_count 2", "  .amdhsa_user_sgpr_kernarg_segment_ptr 1",
            "  .amdhsa_system_sgpr_workgroup_id_x 1", "  .amdhsa_float_denorm_mode_32 3", ".end_amdhsa_kernel"]


HEADER = open("cdna_kernels/" + NAME + ".s.ref").read().split("; Override launch")[0]

def build(only=None):
    from gen_k2 import build_k2, LDS2
    out = [HEADER.rstrip("\n")]
    if only != "k2":
        out.append(f"; @launch kernel={K1} grid=(256,1,1) block=(256,1,1) lds={LDS1}")
    if only != "k1":
        out.append(f"; @launch kernel={K2} grid=(256,1,1) block=(256,1,1) lds={LDS2}")
    out.append('.amdgcn_target "amdgcn-amd-amdhsa--gfx950"')
    out.append(".text")
    for nm, body in ((K1, build_k1()), (K2, build_k2())):
        out += [f".globl {nm}", ".p2align 8", f".type {nm},@function", f"{nm}:"]
        out += body
    out += ['.section .rodata,"a"', ".p2align 6"]
    out += kernel_desc(K1, 512, 256)
    out += [".p2align 6"]
    out += kernel_desc(K2, 336, 232)
    return "\n".join(out) + "\n"

if __name__ == "__main__":
    if "--map2" in sys.argv:
        MAP2 = True; sys.argv.remove("--map2")
    if "--noxy" in sys.argv:
        XY = False; sys.argv.remove("--noxy")
    if "--xy" in sys.argv:
        XY = True; sys.argv.remove("--xy")
    if "--nopf" in sys.argv:
        PF = False; sys.argv.remove("--nopf")
    for o_ in ("odd", "even", "slot", "all"):
        if "--x" + o_ in sys.argv:
            XSEL = o_; sys.argv.remove("--x" + o_)
    if "--pf" in sys.argv:
        PF = True; sys.argv.remove("--pf")
    if "--norot" in sys.argv:
        ROT = False; sys.argv.remove("--norot")
    if "--stamp" in sys.argv:
        STAMP = True; sys.argv.remove("--stamp")
    only = None
    for o_ in ("k1", "k2"):
        if "--" + o_ in sys.argv:
            only = o_; sys.argv.remove("--" + o_)
    txt = build(only)
    path = sys.argv[1] if len(sys.argv) > 1 else "cdna_kernels/" + NAME + ".s"
    open(path, "w").write(txt)
    print("wrote", path, len(txt), "bytes")
```

```python
from asmlib import *
LDS2 = 81920
def s(n): return f"s{n}"
def srd(n): return f"s[{n}:{n+3}]"
sWO, sOi, sOut = 8, 12, 16
S_W, S_KP, S_QH, S_WOFF, S_OOFF, S_LW, S_CNT, S_T0, S_T1, S_OUTOFF = 20, 21, 22, 23, 24, 25, 26, 27, 28, 29
vWd = 8
vOd = 13
vAr = 18
vOut = 19
vRed = 20
vAr2 = 21
vB = 32
vA = 192
SLOT = 20480
def BF(buf, i2, q): return V(vB + ((buf * 2 + i2) * 5 + q) * 4, 4)
def AF(i2, t): return V(vA + (i2 * 5 + t) * 4, 4)
def acc(t, q): return A((t * 5 + q) * 4, 4)

class Timeline:
    def __init__(self):
        self.m = {}; self.n = {}; self.v = {}
    def mfma(self, t, ins): self.m[t] = ins
    def N(self, t, ins): self.n.setdefault(t, []).append(ins)
    def stream(self, t0, t1, fill_nop=True):
        out = []
        for t in range(t0, t1):
            if t in self.m: out.append(self.m[t])
            elif fill_nop: out.append(nop(0))
            out += self.n.get(t, [])
        return out

def wo_dma(st):
    out = []
    out.append(salu(f"s_add_u32 m0, {s(S_LW)}, {(st % 4) * SLOT}", [], ["m0"]) if st % 4 else salu(f"s_mov_b32 m0, {s(S_LW)}", [], ["m0"]))
    for j in range(4):
        t = f"buffer_load_dwordx4 v{vWd + j}, {srd(sOi)}, {s(S_WOFF)} offen" + (f" offset:{1024*j}" if j else "") + " lds"
        out.append(I(t, "dma", [f"v{vWd+j}", "m0"], [], tag=("wo", st)))
    out.append(salu(f"s_add_u32 m0, {s(S_LW)}, {(st % 4) * SLOT + 4096}", [], ["m0"]))
    out.append(I(f"buffer_load_dwordx4 v{vWd + 4}, {srd(sOi)}, {s(S_WOFF)} offen lds", "dma", [f"v{vWd+4}", "m0"], [], tag=("wo", st)))
    out.append(salu(f"s_add_u32 {s(S_WOFF)}, {s(S_WOFF)}, 4096"))
    return out

def o_loads(st):
    out = []
    for i2 in range(2):
        for q in range(5):
            d = BF(st % 4, i2, q)
            t = f"buffer_load_dwordx4 {d}, v{vOd + q}, {srd(sOi)}, {s(S_OOFF)} offen" + (f" offset:{2048*i2}" if i2 else "")
            out.append(I(t, "vmem", [f"v{vOd+q}"], d.regs(), tag=("O", st)))
    out.append(salu(f"s_add_u32 {s(S_OOFF)}, {s(S_OOFF)}, 4096"))
    return out

import os
LA = int(os.environ.get('K2LA', '3'))
DBG = os.environ.get('K2DBG', '')
ST = bool(os.environ.get('K2STAMP'))
def st2(k):
    if not ST: return []
    return [f'    s_memtime s[{40+4*k}:{41+4*k}]', f'    s_memrealtime s[{42+4*k}:{43+4*k}]', '    s_waitcnt lgkmcnt(0)']
def build_k2():
    L = []; a = L.append
    a("    s_cmp_ge_u32 s2, 256"); a("    s_cbranch_scc1 L2_done")
    P = []
    p = P.append
    p("s_load_dwordx2 s[30:31], s[0:1], 80")
    p("s_load_dwordx2 s[32:33], s[0:1], 96")
    p("v_lshrrev_b32 v1, 6, v0")
    p("v_and_b32 v2, 63, v0")
    p(f"v_readfirstlane_b32 {s(S_W)}, v1")
    p("s_and_b32 s3, s2, 7")
    p("s_lshr_b32 s34, s2, 3")
    p("s_and_b32 s35, s34, 7")
    p("s_lshr_b32 s34, s34, 3")
    p("s_lshl_b32 s36, s3, 2")
    p("s_add_u32 s36, s36, s34")
    p("s_lshr_b32 s37, s36, 4")
    p("s_and_b32 s38, s36, 15")
    p(f"s_lshr_b32 {s(S_KP)}, {s(S_W)}, 1")
    p(f"s_and_b32 {s(S_QH)}, {s(S_W)}, 1")
    p("s_waitcnt lgkmcnt(0)")
    def mk(n, lo, hi, size):
        p(f"s_mov_b32 s{n}, s{lo}"); p(f"s_and_b32 s{n+1}, s{hi}, 0xffff"); p(f"s_mov_b32 s{n+2}, {size}"); p(f"s_mov_b32 s{n+3}, 0x20000")
    mk(sOi, 32, 33, (42 << 20) + 2 * 40 * 128 * 1024)
    mk(sOut, 30, 31, 16 * 160 * 2560)
    p(f"s_mul_i32 {s(S_T0)}, s37, 40")
    p(f"s_mul_i32 {s(S_T1)}, s35, 5")
    p(f"s_add_u32 {s(S_T0)}, {s(S_T0)}, {s(S_T1)}")
    p(f"s_lshl_b32 {s(S_T0)}, {s(S_T0)}, 7")
    p(f"s_add_u32 {s(S_T0)}, {s(S_T0)}, {s(S_W)}")
    p(f"s_lshl_b32 {s(S_T0)}, {s(S_T0)}, 10")
    p(f"s_add_u32 {s(S_WOFF)}, {s(S_T0)}, {42 << 20}")
    p(f"s_mul_i32 {s(S_LW)}, {s(S_W)}, 5120")
    p(f"s_mul_i32 {s(S_T0)}, s36, 10")
    p(f"s_mul_i32 {s(S_T1)}, {s(S_QH)}, 5")
    p(f"s_add_u32 {s(S_T0)}, {s(S_T0)}, {s(S_T1)}")
    p(f"s_lshl_b32 {s(S_T0)}, {s(S_T0)}, 7")
    p(f"s_add_u32 {s(S_T0)}, {s(S_T0)}, {s(S_KP)}")
    p(f"s_lshl_b32 {s(S_OOFF)}, {s(S_T0)}, 10")
    p(f"s_mul_i32 {s(S_T0)}, s38, 160")
    p(f"s_mul_i32 {s(S_T1)}, {s(S_QH)}, 80")
    p(f"s_add_u32 {s(S_T0)}, {s(S_T0)}, {s(S_T1)}")
    p(f"s_mul_i32 {s(S_OUTOFF)}, {s(S_T0)}, 2560")
    p(f"s_mul_i32 {s(S_T0)}, s37, 1280")
    p(f"s_add_u32 {s(S_OUTOFF)}, {s(S_OUTOFF)}, {s(S_T0)}")
    p(f"s_mul_i32 {s(S_T0)}, s35, 160")
    p(f"s_add_u32 {s(S_OUTOFF)}, {s(S_OUTOFF)}, {s(S_T0)}")
    p("v_and_b32 v3, 15, v2"); p("v_lshrrev_b32 v4, 4, v2")
    p("v_lshlrev_b32 v5, 4, v2")
    for q in range(5):
        p(f"v_add_u32 v{vOd+q}, {q*131072}, v5")
        p(f"v_add_u32 v{vWd+q}, {q*131072 - (1024*q if q < 4 else 0)}, v5")
    p(f"s_mul_i32 {s(S_T0)}, {s(S_KP)}, 5120")
    p(f"v_add_u32 v{vAr}, {s(S_T0)}, v5")
    p(f"v_add_u32 v{vAr2}, {2*SLOT}, v{vAr}")
    p("v_mul_u32_u24 v6, 2560, v3"); p(f"v_lshl_add_u32 v{vOut}, v4, 3, v6")
    p(f"s_mul_i32 {s(S_T0)}, {s(S_QH)}, 26624")
    p(f"v_add_u32 v{vRed}, {s(S_T0)}, v5")
    L += st2(0)
    L += ["    " + x for x in P]

    II = 50; NS = 32
    tl = Timeline()
    init = []
    for st in range(LA):
        w_ = wo_dma(st)
        init += w_[:1] + [nop(0)] + w_[1:6] + [nop(0)] + w_[6:]
        init += o_loads(st)
        if st == 3: pass
    for st in range(-1, NS):
        T = st * II
        if st >= 0:
            for t in range(II):
                i2, tt, q = t // 25, (t % 25) // 5, t % 5
                first = (st == 0 and i2 == 0)
                tl.mfma(T + t, mfma16(acc(tt, q), AF(i2, tt), BF(st % 4, i2, q), 0 if first else acc(tt, q)))
        n = st + 1
        if n < NS:
            tl.N(T + 36, I("s_waitcnt lgkmcnt(0)", "wait", info="lgkm0"))
            tl.N(T + 37, I("s_waitcnt vmcnt(?)", "wait", info=("vm", [("wo", n), ("O", n)], None)))
            tl.N(T + 38, I("s_barrier", "barrier"))
            for i2 in range(2):
                for tt in range(5):
                    t = T + 39 + 2 * tt if i2 == 0 else T + 50 + 2 * tt
                    tl.N(t, ds_read("ds_read_b128", AF(i2, tt), V(vAr if n % 4 < 2 else vAr2), (n % 2) * SLOT + i2 * 10240 + 1024 * tt))
        if st >= 0 and st + LA < NS:
            w = wo_dma(st + LA)
            ol = o_loads(st + LA)
            slots = [1, 5, 9, 12, 15, 18, 21, 24, 27, 30, 33, 40, 42, 44, 46]
            order = ["o", "o", "w", "o", "o", "w", "o", "o", "w", "o", "o", "w", "o", "o", "w"]
            tl.N(T + 0, w[0])
            io = iw = 0
            for t_, kind in zip(slots, order):
                if kind == "o":
                    tl.N(T + t_, ol[io]); io += 1
                else:
                    if iw == 4:
                        tl.N(T + t_ - 1, w[5])
                        tl.N(T + t_, w[6])
                    else:
                        tl.N(T + t_, w[1 + iw])
                    iw += 1
            tl.N(T + 48, w[7]); tl.N(T + 48, ol[10])
    pre = tl.stream(-II + 36, 0, fill_nop=False)
    stages = [tl.stream(st * II, (st + 1) * II) for st in range(NS)]
    flat = []
    def mark(n): flat.append(I(f"@@{n}", "label"))
    mark("init"); flat += init
    mark("pre"); flat += pre + [I("s_waitcnt lgkmcnt(0)", "wait", info="lgkm0")]
    for st in range(NS):
        mark(f"s{st}"); flat += stages[st]
    resolve_vm_waits(flat)
    flat = insert_lgkm_waits(flat, lat=6)
    errs = check_hazards(flat, "k2")
    assert not errs, errs[:5]
    seg = {}; cur = None
    for ins in flat:
        if ins.kind == "label" and ins.text.startswith("@@"):
            cur = ins.text[2:]; seg[cur] = []
        else: seg[cur].append(ins)
    cat = lambda names: [x for n in names for x in seg[n]]
    txt = lambda st: [x.text for x in st]
    body = cat([f"s{k}" for k in range(4, 8)])
    for it in range(1, 6):
        assert txt(body) == txt(cat([f"s{k}" for k in range(4 + 4 * it, 8 + 4 * it)])), f"k2 iteration {it}"
    if DBG:
        def filt(st):
            o = []
            for x in st:
                if 'm' in DBG and x.kind == 'mfma': continue
                if 'o' in DBG and x.kind == 'vmem': continue
                if 'w' in DBG and x.kind == 'dma': continue
                if 'l' in DBG and x.kind == 'lds': continue
                if 'b' in DBG and x.kind == 'barrier': continue
                o.append(x)
            return o
        for k in list(seg.keys()):
            if k.startswith('s'): seg[k] = filt(seg[k])
        body = cat([f"s{k}" for k in range(4, 8)])
    L += st2(1) + emit(seg["init"]) + st2(2) + emit(seg["pre"]) + st2(3) + emit(cat(["s0", "s1", "s2", "s3"])) + st2(4)
    L.append(f"    s_mov_b32 {s(S_CNT)}, 6")
    L.append(".p2align 6"); L.append("L2_loop:")
    L += emit(body)
    L += [f"    s_sub_u32 {s(S_CNT)}, {s(S_CNT)}, 1", f"    s_cmp_lg_u32 {s(S_CNT)}, 0", "    s_cbranch_scc1 L2_loop"]
    L += st2(5) + emit(cat(["s28", "s29", "s30", "s31"])) + st2(6)
    F = []; f = F.append
    f("s_waitcnt vmcnt(0) lgkmcnt(0)")
    f("s_nop 7")
    f("s_barrier")
    f(f"s_cmp_eq_u32 {s(S_KP)}, 0"); f("s_cbranch_scc0 L2_fin1")
    for kp in range(2):
        keep = list(range(0, 13)) if kp == 0 else list(range(13, 25))
        send = list(range(13, 25)) if kp == 0 else list(range(0, 13))
        if kp == 1: F.append("L2_fin1:")
        for i, k in enumerate(send):
            f(f"ds_write_b128 v{vRed}, a[{4*k}:{4*k+3}] offset:{kp*13312 + i*1024}")
        f("s_waitcnt lgkmcnt(0)")
        f("s_barrier")
        for i, k in enumerate(keep):
            f(f"ds_read_b128 v[{vB+4*i}:{vB+4*i+3}], v{vRed} offset:{(1-kp)*13312 + i*1024}")
        for i, k in enumerate(keep):
            tt, q = k // 5, k % 5
            r = vB + 4 * i
            t = vA + 4 * (i % 4)
            for j in range(4):
                f(f"v_accvgpr_read_b32 v{t + j}, a{4*k + j}")
            f(f"s_waitcnt lgkmcnt({len(keep) - 1 - i})")
            f(f"v_pk_add_f32 v[{r}:{r+1}], v[{r}:{r+1}], v[{t}:{t+1}]")
            f(f"v_pk_add_f32 v[{r+2}:{r+3}], v[{r+2}:{r+3}], v[{t+2}:{t+3}]")
            f(f"s_add_u32 {s(S_T0)}, {s(S_OUTOFF)}, {q*16*2560}")
            f(f"v_cvt_pk_bf16_f32 v{r}, v{r}, v{r+1}")
            f(f"v_cvt_pk_bf16_f32 v{r+1}, v{r+2}, v{r+3}")
            f(f"buffer_store_dwordx2 v[{r}:{r+1}], v{vOut}, {srd(sOut)}, {s(S_T0)} offen offset:{32*tt}")
        if kp == 0: f("s_branch L2_fin" if not ST else "s_branch L2_st")
    if not ST: F.append("L2_fin:")
    for x in F:
        L.append(x if x.endswith(":") else "    " + x)
    if ST:
        L.append("L2_st:")
        L += ["    s_waitcnt vmcnt(0)"] + st2(7)
        L += [f"    s_cmp_lg_u32 {s(S_W)}, 0", "    s_cbranch_scc1 L2_done", "    s_mov_b32 s14, 0x4000000", "    s_lshl_b32 s80, s2, 8", f"    s_add_u32 s80, s80, {57<<20}"]
        for k in range(8):
            L += [f"    v_mov_b32 v2, s{40+4*k}", f"    v_mov_b32 v3, s{42+4*k}", f"    v_mov_b32 v4, {8*k}", f"    buffer_store_dwordx2 v[2:3], v4, s[12:15], s80 offen"]
        L += ["    s_waitcnt vmcnt(0)"]
    L.append("L2_done:"); L.append("    s_endpgm")
    return L
```

```python
import sys, math, struct, os
from asmlib import *

NAME = "concat_heads__mha_block_cached__mha_block_cached__near_ridge"
K1 = "mha_attn_kernel"
K2 = "mha_oproj_kernel"

def fbits(x):
    return struct.unpack("<I", struct.pack("<f", x))[0]

KR = 0
VR = 65536
XR = 131072
XSLOT = 20480
FLAGS = 61440
LDS1 = 163840
WF_BASE = 42 << 20
WS_USED = (64 << 20) + 256 * 81920
STAMP_BASE = 56 << 20

sX, sWQ, sK, sV, sO = 8, 12, 16, 20, 24
sWO = 88
S_W, S_HSEL, S_HALF, S_TASK, S_B, S_H = 28, 29, 30, 31, 32, 33
S_KOFF, S_VOFF, S_XOFF, S_WQOFF, S_XWR, S_XRD, S_CNT = 34, 35, 36, 37, 38, 39, 40
S_LK, S_LV, S_C, S_KQS, S_KQM, S_HOFF, S_OOFF = 41, 42, 44, 72, 46, 47, 48
S_KQSMAX, S_KQMMAX, S_B0, S_XW0 = 49, 50, 51, 43
S_T0, S_T1, S_T2, S_T3 = 68, 69, 70, 71
S_XWEND = 73
S_PFX, S_PFW, S_PAIR = 80, 81, 82
S_WQST, S_WQEND, S_XST, S_XEND, S_ROT = 92, 93, 94, 95, 96
PF = True
PF1 = False
ROT = False
MAP2 = False
S_TYPE, S_PASS, S_ADONE, S_BQ, S_BA, S_B8, S_QS, S_STK = 97, 98, 99, 100, 32, 83, 72, 79
QS_BASE = 64 << 20
XY = False
XSEL = "odd"
S_FOFF, S_FB = 46, 49
sDBG = 52
S_XCC, S_PT0, S_PT1, S_PN = 56, 57, 58, 59
PACE = False
WIN = 3
OST = os.environ.get('OST', 'sc1')
PACE_DELTA, PACE_SPINS = 96, 6
L_LO, L_HI = 2.0 ** -14, 2.0 ** 20
S_TASKI = 79
def s(n): return f"s{n}"
def srd(n): return f"s[{n}:{n+3}]"

vQ, vS, vP = 16, 96, 136
vKr, vVr, vWr, vXr, vXpat = 176, 180, 188, 192, 232
vKd, vVd, vWd, vXd = 194, 198, 200, 234
vL = 207
vOst = 212
vPfX, vPfW, vDum = 213, 214, 12
vT = 216
aO, aKF, aVF = 0, 160, 192

def Qf(qt, st): return V(vQ + (qt * 4 + st) * 4, 4)
def Sf(kt, qt): return V(vS + (kt * 5 + qt) * 4, 4)
def Pf(par, qt): return V(vP + (par * 5 + qt) * 4, 4)
def KF(kt, st): return A(aKF + (kt * 4 + st) * 4, 4)
def VF(dt): return A(aVF + dt * 4, 4)
def Of(dt, qt): return A(aO + (dt * 5 + qt) * 4, 4)

def dma(voff, srdn, soff, ioff, nt, tag):
    t = f"buffer_load_dwordx4 v{voff}, {srd(srdn)}, {soff} offen"
    if ioff: t += f" offset:{ioff}"
    if nt: t += " nt"
    t += " lds"
    return I(t, "dma", [f"v{voff}", "m0"], [], tag=tag)

def set_m0(base_s, const):
    if const == 0:
        return salu(f"s_mov_b32 m0, {s(base_s)}", [], ["m0"])
    return salu(f"s_add_u32 m0, {s(base_s)}, {const}", [], ["m0"])

def vmwait(tags, lgkm0=False, cap=None):
    t = "s_waitcnt vmcnt(?)" + (" lgkmcnt(0)" if lgkm0 else "")
    return I(t, "wait", info=("vm", tags, cap))

def lgkm0():
    return I("s_waitcnt lgkmcnt(0)", "wait", info="lgkm0")

def barrier():
    return I("s_barrier", "barrier")


class Timeline:
    def __init__(self):
        self.m = {}; self.n = {}; self.v = {}
    def mfma(self, t, ins):
        assert t not in self.m, t
        self.m[t] = ins
    def N(self, t, ins):
        self.n.setdefault(t, []).append(ins)
    def Vv(self, t, ins):
        self.v.setdefault(t, []).append(ins)
    def stream(self, t0, t1, fill_nop=True):
        out = []
        for t in range(t0, t1):
            if t in self.m:
                out.append(self.m[t])
            elif fill_nop:
                out.append(nop(0))
            out += self.n.get(t, [])
            out += self.v.get(t, [])
        return out


def lgkm0_mark(ins):
    return ins


def x_dma(sc, m0_ins, soff=None, tg="x"):
    soff = S_XOFF if soff is None else soff
    out = [m0_ins]
    for j in range(4):
        out.append(dma(vXd + j, sX, s(soff), 1024 * j, False, (tg, sc)))
    out.append(salu("s_add_u32 m0, m0, 4096", ["m0"], ["m0"]))
    out.append(dma(vXd + 4, sX, s(soff), 0, False, (tg, sc)))
    out.append(salu(f"s_add_u32 {s(S_XOFF)}, {s(S_XOFF)}, 128"))
    out.append(salu(f"s_cmp_lt_u32 {s(S_XOFF)}, {s(S_XEND)}"))
    out.append(salu(f"s_cselect_b32 {s(S_XOFF)}, {s(S_XOFF)}, {s(S_XST)}"))
    return out

def wq_advance():
    return [salu(f"s_add_u32 {s(S_WQOFF)}, {s(S_WQOFF)}, {32*8192}"),
            salu(f"s_cmp_lt_u32 {s(S_WQOFF)}, {s(S_WQEND)}"),
            salu(f"s_cselect_b32 {s(S_WQOFF)}, {s(S_WQOFF)}, {s(S_WQST)}")]

def pf_loads():
    out = []
    if PF:
        for j in range(2):
            out.append(I(f"buffer_load_dword v{vDum}, v{vPfX}, {srd(sX)}, {s(S_PFX)} offen", "vmem", [f"v{vPfX}"], [f"v{vDum}"], tag=("pf", 0)))
            out.append(salu(f"s_add_u32 {s(S_PFX)}, {s(S_PFX)}, 8192"))
        for j in range(2):
            out.append(I(f"buffer_load_dword v{vDum}, v{vPfW}, {srd(sWQ)}, {s(S_PFW)} offen", "vmem", [f"v{vPfW}"], [f"v{vDum}"], tag=("pf", 1)))
            out.append(salu(f"s_add_u32 {s(S_PFW)}, {s(S_PFW)}, {64*8192}"))
    return out

def wo_convert_load():
    out = []
    out.append(salu(f"s_and_b32 {s(S_T0)}, s2, 127"))
    out.append(salu(f"s_mul_i32 {s(S_T0)}, {s(S_T0)}, 40960"))
    out.append(salu(f"s_mul_i32 {s(S_T1)}, {s(S_W)}, 10240"))
    out.append(salu(f"s_add_u32 {s(S_T0)}, {s(S_T0)}, {s(S_T1)}"))
    for grp in range(3):
        out.append(salu(f"s_add_u32 m0, {s(S_T1)}, {grp*4096}", [], ["m0"]))
        out.append(nop(0))
        for j in range(4 if grp < 2 else 2):
            out.append(dma(vOst, sWO, s(S_T0), 1024 * j, False, ("cv", 0)))
        out.append(salu(f"s_add_u32 {s(S_T0)}, {s(S_T0)}, 4096"))
    return out

def wo_convert_store(nyounger):
    out = []
    out.append(I(f"s_waitcnt vmcnt({nyounger})", "wait", info="fixed"))
    out.append(barrier())
    t = vT
    out.append(valu(f"v_lshrrev_b32 v{t}, 6, v{vOst}", [], [f"v{t}"]))
    out.append(valu(f"v_mul_u32_u24 v{t}, 1280, v{t}", [f"v{t}"], [f"v{t}"]))
    out.append(valu(f"v_lshrrev_b32 v{t+1}, 4, v{vOst}", [], [f"v{t+1}"]))
    out.append(valu(f"v_and_b32 v{t+1}, 3, v{t+1}", [f"v{t+1}"], [f"v{t+1}"]))
    out.append(valu(f"v_lshl_add_u32 v{t}, v{t+1}, 3, v{t}", [f"v{t}", f"v{t+1}"], [f"v{t}"]))
    out.append(salu(f"s_mul_i32 {s(S_T0)}, {s(S_W)}, 320"))
    out.append(valu(f"v_add_u32 v{t}, {s(S_T0)}, v{t}", [f"v{t}"], [f"v{t}"]))
    for tt in range(10):
        for u in range(2):
            out.append(ds_read("ds_read_b64_tr_b16", V(vS + 4 * tt + 2 * u, 2), V(t), u * 20480 + 32 * tt))
        if tt == 4: out.append(lgkm0())
    out.append(lgkm0())
    out.append(salu(f"s_lshr_b32 {s(S_T0)}, s2, 7"))
    out.append(salu(f"s_mul_i32 {s(S_T0)}, {s(S_T0)}, 40"))
    out.append(salu(f"s_mul_i32 {s(S_T1)}, {s(S_W)}, 10"))
    out.append(salu(f"s_add_u32 {s(S_T0)}, {s(S_T0)}, {s(S_T1)}"))
    out.append(salu(f"s_lshl_b32 {s(S_T0)}, {s(S_T0)}, 7"))
    out.append(salu(f"s_and_b32 {s(S_T1)}, s2, 127"))
    out.append(salu(f"s_add_u32 {s(S_T0)}, {s(S_T0)}, {s(S_T1)}"))
    out.append(salu(f"s_lshl_b32 {s(S_T0)}, {s(S_T0)}, 10"))
    out.append(salu(f"s_add_u32 {s(S_T0)}, {s(S_T0)}, {WF_BASE}"))
    for tt in range(10):
        d = vS + 4 * tt
        out.append(I(f"buffer_store_dwordx4 v[{d}:{d+3}], v{vOst}, {srd(sO)}, {s(S_T0)} offen{' ' + OST if OST else ''}", "vmem", regs("v", d, 4) + [f"v{vOst}"], [], tag=("cv", 1)))
        out.append(salu(f"s_add_u32 {s(S_T0)}, {s(S_T0)}, 131072"))
    out.append(barrier())
    return out

def q_groups_initial(first=False):
    out = []
    def wq(c):
        out.append(set_m0(S_LV, (c % 4) * 16384))
        out.append(nop(0))
        for j in range(4):
            out.append(dma(vWd + j, sWQ, s(S_WQOFF), 1024 * j, False, ("wq", c)))
        out.extend(wq_advance())
    def x(sc):
        g = x_dma(sc, set_m0(S_XW0, ((sc + 2) % 3) * XSLOT))
        out.extend([g[0], nop(0)] + g[1:6] + [nop(0)] + g[6:])
    if first and PF1:
        out += pf_loads()
    wq(0); x(0); wq(1); wq(2)
    x(1)
    if not first:
        out += pf_loads()
    out.append(salu(f"s_add_u32 {s(S_XWR)}, {s(S_XW0)}, {1*XSLOT}"))
    out.append(salu(f"s_mov_b32 {s(S_XRD)}, {2*XSLOT}"))
    return out


def k_tile_dma(n):
    out = [set_m0(S_LK, (n % 4) * 16384)]
    for j in range(4):
        out.append(dma(vKd + j, sK, s(S_KOFF), 1024 * j, True, ("K", n)))
    out.append(salu(f"s_add_u32 {s(S_KOFF)}, {s(S_KOFF)}, 8192"))
    return out

def v_tile_dma(n):
    out = [set_m0(S_LV, (n % 4) * 16384)]
    for j in range(4):
        out.append(dma(vVd + (j & 1), sV, s(S_VOFF), 1024 * j, True, ("V", n)))
    out.append(salu(f"s_add_u32 {s(S_VOFF)}, {s(S_VOFF)}, 8192"))
    return out


def q_phase(stash=False):
    II = 40
    tl = Timeline()
    NCH = 20
    def AF(dt): return A(aKF + dt * 4, 4)
    def BF(par, qt): return V(vS + (par * 5 + qt) * 4, 4)
    def acc(dt, qt): return A(aO + (dt * 5 + qt) * 4, 4)
    for c in range(-1, NCH):
        T = c * II
        if c >= 0:
            for t in range(II):
                dt, qt = t // 5, t % 5
                tl.mfma(T + t, mfma16(acc(dt, qt), AF(dt), BF(c & 1, qt), 0 if c == 0 else acc(dt, qt)))
        n = c + 1
        if n < NCH:
            tl.N(T + 24, lgkm0())
            tl.N(T + 25, vmwait([("x", n >> 1), ("wq", n)]))
            tl.N(T + 26, barrier())
            tl.Vv(T + 26, valu(f"v_add_u32 v{vXr}, {s(S_XRD)}, v{vXpat + (n & 1)}", [f"v{vXpat + (n & 1)}"], [f"v{vXr}"]))
            slot = n % 4
            def rdB(t, qt):
                tl.N(T + t, ds_read("ds_read_b128", BF(n & 1, qt), V(vXr), qt * 2048))
            def rdA(t, dt, u):
                st, odd = dt // 2, dt % 2
                tl.N(T + t, ds_read("ds_read_b64_tr_b16", AF(dt).sub(2 * u, 2), V(vWr + st), slot * 16384 + u * 1024 + odd * 8))
            rdB(27, 0); rdA(28, 0, 0); rdA(29, 0, 1); rdB(30, 1); rdB(31, 2); rdB(32, 3); rdB(33, 4)
            rdA(35, 1, 0); rdA(36, 1, 1); rdA(39, 2, 0); rdA(40, 2, 1); rdA(44, 3, 0); rdA(45, 3, 1)
            rdA(49, 4, 0); rdA(50, 4, 1); rdA(54, 5, 0); rdA(55, 5, 1); rdA(58, 6, 0); rdA(59, 6, 1); rdA(61, 7, 0); rdA(62, 7, 1)
            if n & 1:
                tl.N(T + 58, salu(f"s_add_u32 {s(S_XRD)}, {s(S_XRD)}, {XSLOT}"))
                tl.N(T + 59, salu(f"s_cmp_eq_u32 {s(S_XRD)}, {3*XSLOT}"))
                tl.N(T + 59, salu(f"s_cselect_b32 {s(S_XRD)}, 0, {s(S_XRD)}"))
            has_w = n + 3 < NCH
            has_x = n % 2 == 0 and n // 2 + 2 < NCH // 2
            wm0 = lambda: set_m0(S_LV, ((n + 3) % 4) * 16384)
            wd = lambda j: dma(vWd + j, sWQ, s(S_WQOFF), 1024 * j, False, ("wq", n + 3))
            if has_x:
                g = x_dma(n // 2 + 2, salu(f"s_mov_b32 m0, {s(S_XWR)}", [], ["m0"]))
                xm0 = lambda: salu(f"s_mov_b32 m0, {s(S_XWR)}", [], ["m0"])
                tl.N(T + 41, xm0()); tl.N(T + 42, g[1]); tl.N(T + 46, g[2])
                if has_w:
                    tl.N(T + 47, wm0()); tl.N(T + 48, wd(0)); tl.N(T + 52, wd(1))
                tl.N(T + 55, xm0()); tl.N(T + 56, g[3]); tl.N(T + 60, g[4])
                if has_w:
                    tl.N(T + 62, wm0()); tl.N(T + 63, wd(2)); tl.N(T + 74, wd(3))
                tl.N(T + 76, salu(f"s_add_u32 m0, {s(S_XWR)}, 4096", [], ["m0"])); tl.N(T + 77, g[6])
                tl.N(T + 78, g[7]); tl.N(T + 79, g[8]); tl.N(T + 79, g[9])
                tl.N(T + 80, salu(f"s_add_u32 {s(S_XWR)}, {s(S_XWR)}, {XSLOT}"))
                tl.N(T + 80, salu(f"s_cmp_eq_u32 {s(S_XWR)}, {s(S_XWEND)}"))
                tl.N(T + 80, salu(f"s_cselect_b32 {s(S_XWR)}, {s(S_XW0)}, {s(S_XWR)}"))
            elif has_w:
                tl.N(T + 41, wm0()); tl.N(T + 42, wd(0)); tl.N(T + 52, wd(1)); tl.N(T + 63, wd(2)); tl.N(T + 74, wd(3))
            if has_w:
                wa = wq_advance()
                tl.N(T + 75, wa[0]); tl.N(T + 78, wa[1]); tl.N(T + 78, wa[2])
            early = {17: [("K", 0), ("V", 0)], 18: [("V", 1)], 19: [("K", 1), ("V", 2)]}
            if not stash and n in early:
                tt = T + 39
                for kind, idx in early[n]:
                    g = k_tile_dma(idx) if kind == "K" else v_tile_dma(idx)
                    tl.N(tt, g[0])
                    for j in range(4):
                        tl.N(tt + 1 + j, g[1 + j])
                    tl.N(tt + 4, g[5])
                    tt += 5
            if stash:
                def wq2(c, tt):
                    tl.N(tt, set_m0(S_LV, (c % 4) * 16384))
                    for j in range(4):
                        tl.N(tt + 1 + j, dma(vWd + j, sWQ, s(S_WQOFF), 1024 * j, False, ("wq2", c)))
                    wa = wq_advance()
                    tl.N(tt + 5, wa[0]); tl.N(tt + 6, wa[1]); tl.N(tt + 6, wa[2])
                if n == 16:
                    su = [salu(f"s_mov_b32 {s(S_BQ)}, {s(S_B0)}")] + task_setup_q()
                    for k_, ins in enumerate(su):
                        tl.N(T + 79, ins)
                if n == 17:
                    wq2(0, T + 39)
                    tl.N(T + 46, salu(f"s_add_u32 {s(S_T1)}, {s(S_XOFF)}, 128"))
                    g = x_dma(1, set_m0(S_XW0, 0), soff=S_T1, tg="x2")
                    tl.N(T + 47, g[0])
                    for j in range(4):
                        tl.N(T + 48 + j, g[1 + j])
                    tl.N(T + 51, g[5])
                    tl.N(T + 52, g[6])
                if n == 18: wq2(1, T + 39)
                if n == 19: wq2(2, T + 39)
    pre = tl.stream(-II + 24, 0, fill_nop=False)
    chunks = [tl.stream(c * II, (c + 1) * II) for c in range(NCH)]
    return pre, chunks


def q_convert():
    out = []
    for qt in range(5):
        for st in range(4):
            t0 = vT + ((qt * 4 + st) % 2) * 8
            for odd in range(2):
                src = Of(2 * st + odd, qt)
                for j in range(4):
                    out.append(valu(f"v_accvgpr_read_b32 v{t0 + odd*4 + j}, a{src.b + j}", [f"a{src.b+j}"], [f"v{t0+odd*4+j}"]))
            for p in range(4):
                r = t0 + 2 * p
                out.append(valu(f"v_pk_mul_f32 v[{r}:{r+1}], v[{r}:{r+1}], s[{S_C}:{S_C+1}]", [f"v{r}", f"v{r+1}"], [f"v{r}", f"v{r+1}"]))
            q = Qf(qt, st)
            for p in range(4):
                out.append(valu(f"v_cvt_pk_bf16_f32 v{q.b + p}, v{t0 + 2*p}, v{t0 + 2*p + 1}", [f"v{t0+2*p}", f"v{t0+2*p+1}"], [f"v{q.b+p}"]))
    return out


WINPAR = 0
WIN2 = 63
def win_wait(e, k):
    n_ = WIN if (k == 0 or WIN2 is None) else WIN2
    if n_ >= 63: return []
    w = I(f"s_waitcnt vmcnt({n_})", "wait", info="fixed")
    if WINPAR is None: return [w]
    return [I("s_cbranch_vccz 1", "branch"), w]

def a_phase(next_task_loads):
    II = 80
    tl = Timeline()
    NE = 32
    simple = [0,1,2,7,8,9] + list(range(10, 20)) + [24,25,26,31,32,33,38,39,40,45,46,47,52,53,54,59,60,61,66,67,68,73,74,75]
    kt0_reads = [66, 67, 68, 73]
    kt1_reads = [74, 75, 80, 81]
    dma_t = [82, 87, 88, 89, 90, 91, 92, 93]
    v_reads = [94,95,96,97,98,99,104,105,106,111,112,113,118,119,120,125]
    for e in range(-1, NE + 1):
        T = e * II
        if 0 <= e < NE:
            for t in range(40):
                kt, st, qt = t // 20, (t % 20) // 5, t % 5
                tl.mfma(T + t, mfma16(Sf(kt, qt), KF(kt, st), Qf(qt, st), 0 if st == 0 else Sf(kt, qt)))
        if 1 <= e <= NE:
            for t in range(40):
                dt, qt = t // 5, t % 5
                tl.mfma(T + 40 + t, mfma16(Of(dt, qt), VF(dt), Pf((e - 1) & 1, qt), 0 if e == 1 else Of(dt, qt)))
        if 0 <= e < NE:
            for kt in range(2):
                t = T + 20 + 35 * kt
                for qt in range(5):
                    S = Sf(kt, qt); P = Pf(e & 1, qt)
                    for j in range(4):
                        r = f"v{S.b + j}"
                        tl.Vv(t + j, valu(f"v_exp_f32 {r}, {r}", [r], [r], trans=True))
                    L = f"v{vL + qt}"
                    for j in range(4):
                        r = f"v{S.b + j}"
                        if e == 0 and kt == 0 and j == 0:
                            tl.Vv(t + 4, valu(f"v_mov_b32 {L}, {r}", [r], [L]))
                        else:
                            tl.Vv(t + 4 + j // 2, valu(f"v_add_f32 {L}, {L}, {r}", [L, r], [L]))
                    for jj in range(2):
                        d = f"v{P.b + 2*kt + jj}"
                        tl.Vv(t + 6, valu(f"v_cvt_pk_bf16_f32 {d}, v{S.b + 2*jj}, v{S.b + 2*jj + 1}", [f"v{S.b+2*jj}", f"v{S.b+2*jj+1}"], [d]))
                    t += 7
        n = e + 1
        if n <= NE:
            if e >= 0:
                tags = []
                if n < NE: tags.append(("K", n))
                tags.append(("V", e))
                tl.N(T + 63, lgkm0())
                tl.N(T + 64, vmwait(tags, cap=(0 if e == 31 else None)))
                tl.N(T + 65, barrier())
            if n < NE:
                slot = n % 4
                for st in range(4):
                    tl.N(T + kt0_reads[st], ds_read("ds_read_b128", KF(0, st), V(vKr + st), slot * 16384))
                    tl.N(T + kt1_reads[st], ds_read("ds_read_b128", KF(1, st), V(vKr + st), slot * 16384 + 4096))
            if 0 <= e < NE:
                slot = e % 4
                for dt in range(8):
                    for u in range(2):
                        tl.N(T + v_reads[2 * dt + u], ds_read("ds_read_b64_tr_b16", VF(dt).sub(2 * u, 2), V(vVr + dt), slot * 16384 + u * 4096))
            if 0 <= e <= 29:
                kn, vn = e + 4, e + 3
                if WIN is not None:
                    for x_ in win_wait(e, 0): tl.N(T + 79, x_)
                tl.N(T + 79, set_m0(S_LK, (kn % 4) * 16384))
                for j in range(4):
                    tl.N(T + dma_t[j], dma(vKd + j, sK, s(S_KOFF), 1024 * j, True, ("K", kn)))
                tl.N(T + dma_t[3], set_m0(S_LV, (vn % 4) * 16384))
                if WIN is not None:
                    for x_ in win_wait(e, 1): tl.N(T + dma_t[3], x_)
                for j in range(4):
                    tl.N(T + dma_t[4 + j], dma(vVd + (j & 1), sV, s(S_VOFF), 1024 * j, True, ("V", vn)))
                tl.N(T + 100, salu(f"s_add_u32 {s(S_KOFF)}, {s(S_KOFF)}, 8192"))
                tl.N(T + 101, salu(f"s_add_u32 {s(S_VOFF)}, {s(S_VOFF)}, 8192"))
            if e == 31:
                for k, ins in enumerate(next_task_loads):
                    tl.N(T + 66, ins)
    pre = tl.stream(-II + 63, 0, fill_nop=False)
    ep = [tl.stream(e * II, (e + 1) * II) for e in range(NE + 1)]
    return pre, ep


def o_epilogue():
    out = []
    t = vT
    for qt in range(5):
        L = vL + qt
        a_, b_ = t + 2 * qt, t + 2 * qt + 1
        out.append(valu(f"v_mov_b32 v{a_}, v{L}", [f"v{L}"], [f"v{a_}"]))
        out.append(valu(f"v_mov_b32 v{b_}, v{L}", [f"v{L}"], [f"v{b_}"]))
    out.append(nop(1))
    for qt in range(5):
        a_, b_ = t + 2 * qt, t + 2 * qt + 1
        out.append(valu(f"v_permlane32_swap_b32 v{a_}, v{b_}", [f"v{a_}", f"v{b_}"], [f"v{a_}", f"v{b_}"]))
    out.append(nop(1))
    for qt in range(5):
        a_, b_ = t + 2 * qt, t + 2 * qt + 1
        out.append(valu(f"v_add_f32 v{a_}, v{a_}, v{b_}", [f"v{a_}", f"v{b_}"], [f"v{a_}"]))
    for qt in range(5):
        a_, b_ = t + 2 * qt, t + 2 * qt + 1
        out.append(valu(f"v_mov_b32 v{b_}, v{a_}", [f"v{a_}"], [f"v{b_}"]))
    out.append(nop(1))
    for qt in range(5):
        a_, b_ = t + 2 * qt, t + 2 * qt + 1
        out.append(valu(f"v_permlane16_swap_b32 v{a_}, v{b_}", [f"v{a_}", f"v{b_}"], [f"v{a_}", f"v{b_}"]))
    out.append(nop(1))
    for qt in range(5):
        a_, b_ = t + 2 * qt, t + 2 * qt + 1
        L = vL + qt
        out.append(valu(f"v_add_f32 v{L}, v{a_}, v{b_}", [f"v{a_}", f"v{b_}"], [f"v{L}"]))
    return out

def o_store():
    out = []
    t = vT
    for qt in range(5):
        L = vL + qt
        r = t + 2 * qt
        out.append(valu(f"v_rcp_f32 v{r}, v{L}", [f"v{L}"], [f"v{r}"], trans=True))
    out.append(nop(0))
    for qt in range(5):
        r = t + 2 * qt
        out.append(valu(f"v_mov_b32 v{r+1}, v{r}", [f"v{r}"], [f"v{r+1}"]))
    base = t + 10
    k = 0
    for qt in range(5):
        inv = t + 2 * qt
        for vv in range(4):
            t0 = base + 2 + (k % 2) * 12
            t0 = vS + (k % 3) * 12
            for odd in range(2):
                src = Of(2 * vv + odd, qt)
                for j in range(4):
                    out.append(valu(f"v_accvgpr_read_b32 v{t0 + odd*4 + j}, a{src.b + j}", [f"a{src.b+j}"], [f"v{t0+odd*4+j}"]))
            for p in range(4):
                r = t0 + 2 * p
                out.append(valu(f"v_pk_mul_f32 v[{r}:{r+1}], v[{r}:{r+1}], v[{inv}:{inv+1}]", [f"v{r}", f"v{r+1}", f"v{inv}", f"v{inv+1}"], [f"v{r}", f"v{r+1}"]))
            d = t0 + 8
            for p in range(4):
                out.append(valu(f"v_cvt_pk_bf16_f32 v{d + p}, v{t0 + 2*p}, v{t0 + 2*p + 1}", [f"v{t0+2*p}", f"v{t0+2*p+1}"], [f"v{d+p}"]))
            out.append(salu(f"s_add_u32 {s(S_T0)}, {s(S_OOFF)}, {qt*131072 + vv*1024}"))
            out.append(I(f"buffer_store_dwordx4 v[{d}:{d+3}], v{vOst}, {srd(sO)}, {s(S_T0)} offen{' ' + OST if OST else ''}", "vmem", regs("v", d, 4) + [f"v{vOst}"], [], tag=("O", k)))
            k += 1
    return out


def xlane_reduce(regs5, op):
    out = []
    t = vT
    for qt in range(5):
        L = regs5 + qt
        a_, b_ = t + 2 * qt, t + 2 * qt + 1
        out.append(valu(f"v_mov_b32 v{a_}, v{L}", [f"v{L}"], [f"v{a_}"]))
        out.append(valu(f"v_mov_b32 v{b_}, v{L}", [f"v{L}"], [f"v{b_}"]))
    for qt in range(5):
        a_, b_ = t + 2 * qt, t + 2 * qt + 1
        out.append(valu(f"v_permlane32_swap_b32 v{a_}, v{b_}", [f"v{a_}", f"v{b_}"], [f"v{a_}", f"v{b_}"]))
    for qt in range(5):
        a_, b_ = t + 2 * qt, t + 2 * qt + 1
        out.append(valu(f"{op} v{a_}, v{a_}, v{b_}", [f"v{a_}", f"v{b_}"], [f"v{a_}"]))
    for qt in range(5):
        a_, b_ = t + 2 * qt, t + 2 * qt + 1
        out.append(valu(f"v_mov_b32 v{b_}, v{a_}", [f"v{a_}"], [f"v{b_}"]))
    for qt in range(5):
        a_, b_ = t + 2 * qt, t + 2 * qt + 1
        out.append(valu(f"v_permlane16_swap_b32 v{a_}, v{b_}", [f"v{a_}", f"v{b_}"], [f"v{a_}", f"v{b_}"]))
    for qt in range(5):
        a_, b_ = t + 2 * qt, t + 2 * qt + 1
        L = regs5 + qt
        out.append(valu(f"{op} v{L}, v{a_}, v{b_}", [f"v{a_}", f"v{b_}"], [f"v{L}"]))
    return out

def range_flag():
    o = []
    t = vS + 36
    o.append(salu(f"s_mov_b32 {s(S_T0)}, {fbits(L_LO):#x}"))
    o.append(salu(f"s_mov_b32 {s(S_T1)}, {fbits(L_HI):#x}"))
    o.append(valu(f"v_mov_b32 v{t+1}, {s(S_T1)}", [], [f"v{t+1}"]))
    o.append(salu("s_mov_b64 s[74:75], 0"))
    for qt in range(5):
        L = vL + qt
        o.append(valu(f"v_med3_f32 v{t}, v{L}, {s(S_T0)}, v{t+1}", [f"v{L}", f"v{t+1}"], [f"v{t}"]))
        o.append(valu(f"v_cmp_neq_f32 vcc, v{t}, v{L}", [f"v{t}", f"v{L}"], ["vcc"]))
        o.append(nop(1))
        o.append(salu("s_or_b64 s[74:75], s[74:75], vcc"))
    o.append(salu("s_cmp_lg_u64 s[74:75], 0"))
    o.append(salu(f"s_cselect_b32 {s(S_T0)}, 1, 0"))
    o.append(salu(f"s_lshl_b32 {s(S_T1)}, {s(S_W)}, 2"))
    o.append(salu(f"s_add_u32 {s(S_T1)}, {s(S_T1)}, {FLAGS}"))
    o.append(valu(f"v_mov_b32 v{t}, {s(S_T0)}", [], [f"v{t}"]))
    o.append(valu(f"v_mov_b32 v{t+1}, {s(S_T1)}", [], [f"v{t+1}"]))
    o.append(I(f"ds_write_b32 v{t+1}, v{t}", "lds", [f"v{t}", f"v{t+1}"], []))
    return o

def range_check():
    t = vS
    return [lgkm0(), barrier(),
            valu(f"v_mov_b32 v{t}, {FLAGS}", [], [f"v{t}"]),
            I(f"ds_read_b128 v[{t+2}:{t+5}], v{t}", "lds", [f"v{t}"], regs("v", t + 2, 4)),
            lgkm0(),
            valu(f"v_or3_b32 v{t}, v{t+2}, v{t+3}, v{t+4}", regs("v", t + 2, 3), [f"v{t}"]),
            valu(f"v_or_b32 v{t}, v{t}, v{t+5}", [f"v{t}", f"v{t+5}"], [f"v{t}"]),
            nop(0),
            valu(f"v_readfirstlane_b32 {s(S_T0)}, v{t}", [f"v{t}"], [s(S_T0)]),
            nop(3)]

def fallback():
    vFK, vFV, vM = vP + 20, vP + 24, vP + 32
    def kdma():
        o = [salu(f"s_add_u32 m0, {s(S_LK)}, {XR}", [], ["m0"]), nop(0)]
        for j in range(4): o.append(dma(vKd + j, sK, s(S_FOFF), 1024 * j, False, ("fb", 0)))
        return o
    def vdma():
        o = [salu(f"s_add_u32 m0, {s(S_LK)}, {XR + 16384}", [], ["m0"]), nop(0)]
        for j in range(4): o.append(dma(vVd + (j & 1), sV, s(S_FOFF), 1024 * j, False, ("fb", 1)))
        return o
    def foff_init():
        return [salu(f"s_lshl_b32 {s(S_T0)}, {s(S_HALF)}, 12"), salu(f"s_add_u32 {s(S_FOFF)}, {s(S_HOFF)}, {s(S_T0)}"),
                salu(f"s_mov_b32 {s(S_CNT)}, 32")]
    def qk():
        o = []
        for kt in range(2):
            for st in range(4):
                o.append(ds_read("ds_read_b128", KF(kt, st), V(vFK + st), kt * 4096))
        o.append(lgkm0())
        for t in range(40):
            kt, st, qt = t // 20, (t % 20) // 5, t % 5
            o.append(mfma16(Sf(kt, qt), KF(kt, st), Qf(qt, st), 0 if st == 0 else Sf(kt, qt)))
        return o
    wait0 = lambda: [I("s_waitcnt vmcnt(0)", "wait", info="fixed"), barrier()]
    pre = []
    for st in range(4): pre.append(valu(f"v_add_u32 v{vFK+st}, {XR}, v{vKr+st}", [f"v{vKr+st}"], [f"v{vFK+st}"]))
    for dt in range(8): pre.append(valu(f"v_add_u32 v{vFV+dt}, {XR + 16384 - VR}, v{vVr+dt}", [f"v{vVr+dt}"], [f"v{vFV+dt}"]))
    for qt in range(5): pre.append(valu(f"v_mov_b32 v{vM+qt}, 0xff800000", [], [f"v{vM+qt}"]))
    pre += foff_init()
    p1 = kdma() + wait0() + qk()
    for qt in range(5):
        for kt in range(2):
            S_ = Sf(kt, qt)
            for jj in range(2):
                m = f"v{vM+qt}"
                p1.append(valu(f"v_max3_f32 {m}, {m}, v{S_.b+2*jj}, v{S_.b+2*jj+1}", [m, f"v{S_.b+2*jj}", f"v{S_.b+2*jj+1}"], [m]))
    p1 += [barrier(), salu(f"s_add_u32 {s(S_FOFF)}, {s(S_FOFF)}, 8192")]
    mid = xlane_reduce(vM, "v_max_f32")
    for k in range(160): mid.append(valu(f"v_accvgpr_write_b32 a{aO+k}, 0", [], [f"a{aO+k}"]))
    for qt in range(5): mid.append(valu(f"v_mov_b32 v{vL+qt}, 0", [], [f"v{vL+qt}"]))
    mid += foff_init()
    p2 = kdma() + vdma() + wait0() + qk()
    for kt in range(2):
        for qt in range(5):
            S_ = Sf(kt, qt); P_ = Pf(0, qt); L = f"v{vL+qt}"; m = f"v{vM+qt}"
            for j in range(4):
                r = f"v{S_.b+j}"
                p2.append(valu(f"v_sub_f32 {r}, {r}, {m}", [r, m], [r]))
            for j in range(4):
                r = f"v{S_.b+j}"
                p2.append(valu(f"v_exp_f32 {r}, {r}", [r], [r], trans=True))
            for j in range(4):
                r = f"v{S_.b+j}"
                p2.append(valu(f"v_add_f32 {L}, {L}, {r}", [L, r], [L]))
            for jj in range(2):
                d = f"v{P_.b+2*kt+jj}"
                p2.append(valu(f"v_cvt_pk_bf16_f32 {d}, v{S_.b+2*jj}, v{S_.b+2*jj+1}", [f"v{S_.b+2*jj}", f"v{S_.b+2*jj+1}"], [d]))
    for dt in range(8):
        for u in range(2):
            p2.append(ds_read("ds_read_b64_tr_b16", VF(dt).sub(2 * u, 2), V(vFV + dt), u * 4096))
        if dt == 3: p2.append(lgkm0())
    p2.append(lgkm0())
    for t in range(40):
        dt, qt = t // 5, t % 5
        p2.append(mfma16(Of(dt, qt), VF(dt), Pf(0, qt), Of(dt, qt)))
    p2 += [barrier(), salu(f"s_add_u32 {s(S_FOFF)}, {s(S_FOFF)}, 8192")]
    return [("fb_pre", pre), ("fb_p1", p1), ("fb_mid", mid), ("fb_p2", p2)]


def pace_code():
    if not PACE: return []
    L = []
    a = lambda t: L.append("    " + t)
    a(f"s_cmp_lg_u32 {s(S_W)}, 0"); a("s_cbranch_scc1 L1_pace_end")
    a(f"s_mov_b32 {s(S_PN)}, {PACE_SPINS}")
    L.append("L1_pace:")
    for x in range(8):
        a(f"v_readlane_b32 s{60+x}, v5, {x}")
    a(f"v_readlane_b32 {s(S_PT0)}, v5, {s(S_XCC)}")
    a("s_nop 2")
    a("s_add_u32 s60, s60, s61"); a("s_add_u32 s62, s62, s63"); a("s_add_u32 s64, s64, s65"); a("s_add_u32 s66, s66, s67")
    a("s_add_u32 s60, s60, s62"); a("s_add_u32 s64, s64, s66"); a("s_add_u32 s60, s60, s64")
    a(f"s_lshl_b32 {s(S_PT0)}, {s(S_PT0)}, 3")
    a(f"s_add_u32 s60, s60, {PACE_DELTA}")
    a(f"s_cmp_le_u32 {s(S_PT0)}, s60"); a("s_cbranch_scc1 L1_pace_go")
    a(f"s_sub_u32 {s(S_PN)}, {s(S_PN)}, 1"); a(f"s_cmp_eq_u32 {s(S_PN)}, 0"); a("s_cbranch_scc1 L1_pace_go")
    a(f"buffer_load_dword v5, v6, {srd(sDBG)}, 0 offen sc1")
    a("s_waitcnt vmcnt(0)")
    a("s_branch L1_pace")
    L.append("L1_pace_go:")
    a(f"buffer_atomic_add v8, v7, {srd(sDBG)}, 0 offen sc1")
    a(f"buffer_load_dword v5, v6, {srd(sDBG)}, 0 offen sc1")
    L.append("L1_pace_end:")
    return L


def k1_prologue():
    L = []
    a = L.append
    a("s_cmp_ge_u32 s2, 256")
    a("s_cbranch_scc1 L1_done")
    a("s_load_dwordx8 s[52:59], s[0:1], 0")
    a("s_load_dwordx8 s[60:67], s[0:1], 40")
    a("s_load_dwordx2 s[4:5], s[0:1], 96")
    a("s_load_dwordx2 s[92:93], s[0:1], 88")
    a("s_load_dwordx2 s[84:85], s[0:1], 32")
    a("s_load_dwordx2 s[86:87], s[0:1], 72")
    a("v_lshrrev_b32 v1, 6, v0")
    a("v_and_b32 v2, 63, v0")
    a(f"v_readfirstlane_b32 {s(S_W)}, v1")
    a("s_and_b32 s3, s2, 7")
    a("s_lshr_b32 s6, s2, 3")
    a(f"s_lshr_b32 {s(S_HSEL)}, {s(S_W)}, 1")
    a(f"s_and_b32 {s(S_HALF)}, {s(S_W)}, 1")
    a(f"s_lshr_b32 {s(S_B0)}, s6, 2")
    a("s_and_b32 s6, s6, 3")
    a(f"s_mov_b32 {s(S_PAIR)}, s6")
    if ROT:
        a(f"s_lshr_b32 s7, {s(S_B0)}, 2"); a(f"s_add_u32 s7, s7, {s(S_B0)}"); a("s_lshl_b32 s7, s7, 1")
        a(f"s_mul_i32 {s(S_ROT)}, s6, 5"); a(f"s_add_u32 s7, s7, {s(S_ROT)}")
        a(f"s_and_b32 {s(S_ROT)}, s6, 1"); a(f"s_sub_u32 s7, s7, {s(S_ROT)}")
        a("s_sub_u32 s3, s7, 20"); a("s_cmp_ge_u32 s7, 20"); a(f"s_cselect_b32 {s(S_ROT)}, s3, s7")
        a("s_and_b32 s3, s2, 7")
    else:
        a(f"s_mov_b32 {s(S_ROT)}, 0")
    if MAP2:
        a("s_lshr_b32 s7, s3, 1")
    else:
        a("s_and_b32 s7, s3, 3")
    a("s_lshl_b32 s7, s7, 3")
    a("s_lshl_b32 s6, s6, 1")
    a("s_add_u32 s7, s7, s6")
    a(f"s_add_u32 {s(S_H)}, s7, {s(S_HSEL)}")
    if MAP2:
        a("s_and_b32 s3, s3, 1")
    else:
        a("s_lshr_b32 s3, s3, 2")
    a(f"s_mov_b32 {s(S_T3)}, s3")
    a("s_waitcnt lgkmcnt(0)")
    a("s_cmp_eq_u32 s3, 0")
    for k in range(8):
        a(f"s_cselect_b32 s{52+k}, s{52+k}, s{60+k}")
    def mk(n, lo, hi, size):
        a(f"s_mov_b32 s{n}, s{lo}")
        a(f"s_and_b32 s{n+1}, s{hi}, 0xffff")
        a(f"s_mov_b32 s{n+2}, {size}")
        a(f"s_mov_b32 s{n+3}, 0x20000")
    mk(sX, 52, 53, 16 * 160 * 1280)
    mk(sK, 54, 55, 0x8000000)
    mk(sV, 56, 57, 0x8000000)
    mk(sWQ, 58, 59, 640 * 8192)
    mk(sO, 4, 5, WS_USED)
    a("s_cmp_lt_u32 s2, 128")
    a("s_cselect_b32 s84, s84, s86")
    a("s_cselect_b32 s85, s85, s87")
    mk(sWO, 84, 85, 4096 * 1280)
    mk(sDBG, 92, 93, 256)
    c = math.log2(math.e) / math.sqrt(128.0)
    a(f"s_mov_b32 s{S_C}, {fbits(c):#x}")
    a(f"s_mov_b32 s{S_C+1}, {fbits(c):#x}")
    a(f"s_lshl_b32 s6, {s(S_HSEL)}, 13")
    a(f"s_lshl_b32 s7, {s(S_HALF)}, 12")
    a(f"s_add_u32 {s(S_LK)}, s6, s7")
    a(f"s_add_u32 {s(S_LV)}, {s(S_LK)}, {VR}")
    a(f"s_mul_i32 {s(S_XW0)}, {s(S_W)}, 5120")
    a(f"s_add_u32 {s(S_XWEND)}, {s(S_XW0)}, {3*XSLOT}")
    a("v_and_b32 v3, 15, v2")
    a("v_lshrrev_b32 v4, 4, v2")
    a(f"s_lshl_b32 s6, {s(S_HSEL)}, 13")
    a("v_xor_b32 v5, v4, v3")
    a("v_lshlrev_b32 v5, 4, v5")
    a("v_lshlrev_b32 v6, 8, v3")
    a("v_add3_u32 v5, v5, v6, s6")
    for st in range(4):
        a(f"v_xor_b32 v{vKr+st}, {st << 6}, v5")
    a("v_lshrrev_b32 v6, 2, v3")
    a("v_and_b32 v7, 3, v3")
    a("v_lshl_add_u32 v8, v4, 2, v6")
    a("v_and_b32 v9, 7, v8")
    a("v_lshlrev_b32 v9, 1, v9")
    a("v_lshrrev_b32 v10, 1, v7")
    a("v_xor_b32 v9, v9, v10")
    a("v_lshlrev_b32 v9, 4, v9")
    a("v_and_b32 v10, 1, v7")
    a("v_lshlrev_b32 v10, 3, v10")
    a("v_lshlrev_b32 v8, 8, v8")
    a("v_add3_u32 v9, v9, v10, v8")
    a(f"s_add_u32 s7, s6, {VR}")
    a("v_add_u32 v9, s7, v9")
    for dt in range(8):
        a(f"v_xor_b32 v{vVr+dt}, {dt << 5}, v9")
    a("v_lshl_add_u32 v8, v4, 3, v6")
    a("v_lshlrev_b32 v8, 8, v8")
    a("v_lshlrev_b32 v9, 2, v6")
    a("v_xor_b32 v9, v9, v7")
    a("v_lshlrev_b32 v9, 4, v9")
    a("v_add3_u32 v9, v9, v8, s7")
    for st in range(4):
        a(f"v_xor_b32 v{vWr+st}, {st << 6}, v9")
    a("v_lshrrev_b32 v8, 1, v3")
    a("v_xor_b32 v8, v8, v4")
    a("v_lshlrev_b32 v8, 4, v8")
    a("v_lshlrev_b32 v9, 7, v3")
    a(f"s_mul_i32 s7, {s(S_HALF)}, {80*128}")
    a(f"v_add3_u32 v{vXpat}, v8, v9, s7")
    a(f"v_xor_b32 v{vXpat+1}, 64, v{vXpat}")
    a("v_xor_b32 v8, v3, v4")
    a("v_lshlrev_b32 v8, 4, v8")
    a("v_lshl_add_u32 v8, v4, 8, v8")
    for j in range(4):
        a(f"v_xor_b32 v{vKd+j}, {j << 6}, v8")
    a("v_lshlrev_b32 v8, 1, v4")
    a("v_xor_b32 v8, v8, v3")
    a("v_lshlrev_b32 v8, 4, v8")
    a("v_lshl_add_u32 v8, v4, 8, v8")
    a(f"v_mov_b32 v{vVd}, v8")
    a(f"v_xor_b32 v{vVd+1}, {8 << 4}, v8")
    a("v_lshlrev_b32 v8, 2, v4")
    a("v_xor_b32 v8, v8, v3")
    a("v_lshlrev_b32 v8, 4, v8")
    a("v_lshl_add_u32 v8, v4, 13, v8")
    for j in range(4):
        a(f"v_add_u32 v{vWd+j}, {j*31744}, v8")
    a("v_lshrrev_b32 v9, 3, v2")
    a("v_mul_u32_u24 v9, 1280, v9")
    a("v_and_b32 v10, 7, v2")
    for j in range(5):
        a(f"s_add_u32 s7, {s(S_W)}, {j}")
        a("s_and_b32 s7, s7, 1")
        a("s_lshl_b32 s7, s7, 2")
        a("v_add_u32 v8, s7, v4")
        a("v_xor_b32 v8, v8, v10")
        a("v_lshlrev_b32 v8, 4, v8")
        a(f"v_add3_u32 v{vXd+j}, v8, v9, {0}") if False else None
        a(f"s_mov_b32 s7, {8*j*1280 - (1024*j if j < 4 else 0)}")
        a(f"v_add3_u32 v{vXd+j}, v8, v9, s7")
    a(f"v_lshlrev_b32 v{vOst}, 4, v2")
    a(f"v_lshlrev_b32 v{vPfX}, 7, v2")
    a("v_lshrrev_b32 v8, 2, v2"); a("v_lshlrev_b32 v8, 13, v8"); a("v_and_b32 v9, 3, v2"); a("v_lshlrev_b32 v9, 7, v9")
    a(f"v_add_u32 v{vPfW}, v8, v9")
    a(f"s_getreg_b32 {s(S_XCC)}, hwreg(HW_REG_XCC_ID)")
    a(f"s_and_b32 {s(S_XCC)}, {s(S_XCC)}, 7")
    a("v_mov_b32 v5, 0"); a("v_mov_b32 v8, 1")
    a("v_lshlrev_b32 v6, 5, v2"); a("v_mov_b32 v9, 0x1000")
    a("v_cmp_gt_u32 vcc, 8, v2"); a("s_nop 1"); a("v_cndmask_b32 v6, v9, v6, vcc")
    a(f"s_lshl_b32 s6, {s(S_XCC)}, 5"); a("v_mov_b32 v7, s6")
    a("v_cmp_eq_u32 vcc, 0, v2"); a("s_nop 1"); a("v_cndmask_b32 v7, v9, v7, vcc")
    if XY:
        a(f"s_getreg_b32 {s(S_TYPE)}, hwreg(HW_REG_XCC_ID)")
        a(f"s_and_b32 {s(S_TYPE)}, {s(S_TYPE)}, 1")
        if XSEL == "even":
            a(f"s_xor_b32 {s(S_TYPE)}, {s(S_TYPE)}, 1")
        elif XSEL == "slot":
            a(f"s_lshr_b32 {s(S_TYPE)}, s2, 5"); a(f"s_and_b32 {s(S_TYPE)}, {s(S_TYPE)}, 1")
        elif XSEL == "all":
            a(f"s_mov_b32 {s(S_TYPE)}, 1")
    else:
        a(f"s_mov_b32 {s(S_TYPE)}, 0")
    import os
    if os.environ.get("K1XEXIT"):
        a(f"s_cmp_eq_u32 {s(S_TYPE)}, 1"); a("s_cbranch_scc1 L1_done")
    if os.environ.get("K1BURN"):
        a(f"s_mov_b32 s6, {int(os.environ['K1BURN'])}")
        for i_ in range(64): a(f"v_mov_b32 v{96+i_}, v{176+i_%30}")
        L.append("L1_burn:")
        for i_ in range(64):
            c_ = 4 * (i_ % 32)
            a(f"v_mfma_f32_16x16x32_bf16 a[{c_}:{c_+3}], v[{96+4*(i_%8)}:{99+4*(i_%8)}], v[{128+4*(i_%7)}:{131+4*(i_%7)}], a[{c_}:{c_+3}]")
        a("s_sub_u32 s6, s6, 1"); a("s_cmp_lg_u32 s6, 0"); a("s_cbranch_scc1 L1_burn")
    if os.environ.get("K1DELAY"):
        n_ = int(os.environ["K1DELAY"])
        a("s_lshr_b32 s6, s2, 5"); a("s_and_b32 s6, s6, 1"); a("s_cmp_eq_u32 s6, 0"); a("s_cbranch_scc1 L1_nodelay")
        for _ in range(n_): a("s_sleep 127")
        L.append("L1_nodelay:")
    a(f"s_mov_b32 {s(S_PASS)}, {s(S_TYPE)}")
    a(f"s_mov_b32 {s(S_ADONE)}, 0")
    a(f"s_mov_b32 {s(S_BA)}, {s(S_B0)}")
    a(f"s_add_u32 {s(S_B8)}, {s(S_B0)}, 8")
    a(f"s_cmp_eq_u32 {s(S_TYPE)}, 1")
    a(f"s_cselect_b32 {s(S_BQ)}, {s(S_B8)}, {s(S_B0)}")
    a(f"s_mul_i32 s6, s2, 81920"); a(f"s_mul_i32 s7, {s(S_W)}, 20480"); a("s_add_u32 s6, s6, s7")
    a(f"s_add_u32 {s(S_QS)}, s6, {QS_BASE}")
    return L


def task_setup_q():
    o = []
    o.append(salu(f"s_mul_i32 {s(S_T0)}, {s(S_BQ)}, 160"))
    o.append(salu(f"s_mul_i32 {s(S_T1)}, {s(S_W)}, 40"))
    o.append(salu(f"s_add_u32 {s(S_T0)}, {s(S_T0)}, {s(S_T1)}"))
    o.append(salu(f"s_mul_i32 {s(S_XST)}, {s(S_T0)}, 1280"))
    o.append(salu(f"s_add_u32 {s(S_XEND)}, {s(S_XST)}, 1280"))
    o.append(salu(f"s_lshl_b32 {s(S_T0)}, {s(S_ROT)}, 6"))
    o.append(salu(f"s_add_u32 {s(S_XOFF)}, {s(S_XST)}, {s(S_T0)}"))
    o.append(salu(f"s_lshl_b32 {s(S_T0)}, {s(S_HALF)}, 17"))
    o.append(salu(f"s_lshl_b32 {s(S_T1)}, {s(S_H)}, 8"))
    o.append(salu(f"s_add_u32 {s(S_WQST)}, {s(S_T0)}, {s(S_T1)}"))
    o.append(salu(f"s_add_u32 {s(S_WQEND)}, {s(S_WQST)}, {640*8192}"))
    o.append(salu(f"s_lshl_b32 {s(S_T0)}, {s(S_ROT)}, 18"))
    o.append(salu(f"s_add_u32 {s(S_WQOFF)}, {s(S_WQST)}, {s(S_T0)}"))
    if PF:
        o.append(salu(f"s_mul_i32 {s(S_T0)}, {s(S_BQ)}, 160"))
        o.append(salu(f"s_mul_i32 {s(S_T1)}, {s(S_PAIR)}, 40"))
        o.append(salu(f"s_add_u32 {s(S_T0)}, {s(S_T0)}, {s(S_T1)}"))
        o.append(salu(f"s_mul_i32 {s(S_T0)}, {s(S_T0)}, 1280"))
        o.append(salu(f"s_lshl_b32 {s(S_T1)}, {s(S_W)}, 14"))
        o.append(salu(f"s_add_u32 {s(S_PFX)}, {s(S_T0)}, {s(S_T1)}"))
        o.append(salu(f"s_mul_i32 {s(S_T0)}, {s(S_B0)}, 80"))
        o.append(salu(f"s_lshl_b32 {s(S_T1)}, {s(S_W)}, 4"))
        o.append(salu(f"s_add_u32 {s(S_T0)}, {s(S_T0)}, {s(S_T1)}"))
        o.append(salu(f"s_lshl_b32 {s(S_T0)}, {s(S_T0)}, 13"))
        o.append(salu(f"s_sub_u32 {s(S_T1)}, {s(S_H)}, {s(S_HSEL)}"))
        o.append(salu(f"s_lshl_b32 {s(S_T1)}, {s(S_T1)}, 8"))
        o.append(salu(f"s_add_u32 {s(S_PFW)}, {s(S_T0)}, {s(S_T1)}"))
    return o

def kv_stream(breg):
    o = []
    o.append(salu(f"s_lshl_b32 {s(S_T0)}, {s(breg)}, 5"))
    o.append(salu(f"s_add_u32 {s(S_T0)}, {s(S_T0)}, {s(S_H)}"))
    o.append(salu(f"s_lshl_b32 {s(S_HOFF)}, {s(S_T0)}, 18"))
    o.append(salu(f"s_add_u32 {s(sK+2)}, {s(S_HOFF)}, 262144"))
    o.append(salu(f"s_mov_b32 {s(sV+2)}, {s(sK+2)}"))
    o.append(salu(f"s_lshl_b32 {s(S_T0)}, {s(S_HALF)}, 12"))
    o.append(salu(f"s_add_u32 {s(S_KOFF)}, {s(S_HOFF)}, {s(S_T0)}"))
    o.append(salu(f"s_mov_b32 {s(S_VOFF)}, {s(S_KOFF)}"))
    return o

def kv_out(breg):
    o = []
    o.append(salu(f"s_lshl_b32 {s(S_T0)}, {s(S_T3)}, 4"))
    o.append(salu(f"s_add_u32 {s(S_T0)}, {s(S_T0)}, {s(breg)}"))
    o.append(salu(f"s_mul_i32 {s(S_T0)}, {s(S_T0)}, 10"))
    o.append(salu(f"s_mul_i32 {s(S_T1)}, {s(S_HALF)}, 5"))
    o.append(salu(f"s_add_u32 {s(S_T0)}, {s(S_T0)}, {s(S_T1)}"))
    o.append(salu(f"s_lshl_b32 {s(S_T0)}, {s(S_T0)}, 7"))
    o.append(salu(f"s_lshl_b32 {s(S_T1)}, {s(S_H)}, 2"))
    o.append(salu(f"s_add_u32 {s(S_T0)}, {s(S_T0)}, {s(S_T1)}"))
    o.append(salu(f"s_lshl_b32 {s(S_OOFF)}, {s(S_T0)}, 10"))
    return o

def q_stash(store):
    o = []
    o.append(salu(f"s_mov_b32 {s(S_T0)}, {s(S_QS)}"))
    for f in range(20):
        r = vQ + 4 * f
        off = f" offset:{1024 * (f % 4)}" if f % 4 else ""
        if store:
            o.append(I(f"buffer_store_dwordx4 v[{r}:{r+3}], v{vOst}, {srd(sO)}, {s(S_T0)} offen{off}", "vmem", regs("v", r, 4) + [f"v{vOst}"], [], tag=("qs", f)))
        else:
            o.append(I(f"buffer_load_dwordx4 v[{r}:{r+3}], v{vOst}, {srd(sO)}, {s(S_T0)} offen{off}", "vmem", [f"v{vOst}"], regs("v", r, 4), tag=("ql", f)))
        if f % 4 == 3 and f < 19:
            o.append(salu(f"s_add_u32 {s(S_T0)}, {s(S_T0)}, 4096"))
    return o


STAMP = False
def stamp(idx):
    if not STAMP: return []
    return ["    s_memtime s[74:75]", "    s_memrealtime s[76:77]", "    s_waitcnt lgkmcnt(0)",
            f"    s_lshl_b32 s78, {s(S_STK)}, 1",
            "    v_mbcnt_lo_u32_b32 v13, -1, 0", "    v_mbcnt_hi_u32_b32 v13, -1, v13",
            "    v_cmp_eq_u32 vcc, s78, v13", "    v_mov_b32 v14, s74", "    s_nop 1", "    v_cndmask_b32 v15, v15, v14, vcc",
            "    s_add_u32 s78, s78, 1",
            "    v_cmp_eq_u32 vcc, s78, v13", "    v_mov_b32 v14, s76", "    s_nop 1", "    v_cndmask_b32 v15, v15, v14, vcc",
            f"    v_cmp_eq_u32 vcc, {s(S_STK)}, v13", f"    v_mov_b32 v14, {idx}", "    s_nop 1", "    v_cndmask_b32 v11, v11, v14, vcc",
            f"    s_add_u32 {s(S_STK)}, {s(S_STK)}, 1"]

def same_text(a, b):
    return [x.text for x in a] == [x.text for x in b]


def process(named, name):
    tagged = []
    for nme, st in named:
        tagged.append(I(f"@@{nme}", "label"))
        tagged.extend(st)
    resolve_vm_waits(tagged, ignore=('pf', 'cv', 'next', 'qs', 'ql'))
    tagged = insert_lgkm_waits(tagged, lat=6)
    tagged, notes = check_hazards(tagged, name, fix=True)
    for e_ in notes[:40]:
        print("NOTE", e_, file=sys.stderr)
    errs = check_hazards(tagged, name)
    assert not errs, errs[:5]
    seg = {}
    cur = None
    for ins in tagged:
        if ins.kind == "label" and ins.text.startswith("@@"):
            cur = ins.text[2:]; seg[cur] = []
        else:
            seg[cur].append(ins)
    return seg

def with_nops(g):
    return g[:1] + [nop(0)] + g[1:]

def build_k1():
    import os
    lines = []
    lines += ["    " + x for x in k1_prologue()]
    hookY = [salu(f"s_mov_b32 {s(S_BQ)}, {s(S_B8)}")] + task_setup_q() + q_groups_initial()
    hookX = kv_stream(S_B8) + q_stash(False)
    for kind, idx in (("K", 0), ("V", 0), ("V", 1), ("K", 1), ("V", 2), ("K", 2), ("K", 3)):
        hookX += with_nops(k_tile_dma(idx) if kind == "K" else v_tile_dma(idx))
    nxt = [raw(f"s_cmp_eq_u32 {s(S_ADONE)}, 1"), raw("s_cbranch_scc1 L1_hlast", "branch"),
           raw(f"s_cmp_eq_u32 {s(S_TYPE)}, 1"), raw("s_cbranch_scc1 L1_hX", "branch")] + hookY + \
          [raw("s_branch L1_hend", "branch"), label("L1_hX")] + hookX + [raw("s_branch L1_hend", "branch"), label("L1_hlast")] + \
          wo_convert_load() + [label("L1_hend")]
    for x in nxt:
        if x.kind in ("dma", "vmem"): x.tag = ("next", x.tag)
    qpre, qch = q_phase(False)
    apre, aep = a_phase(nxt)
    mid = [lgkm0(), vmwait([("K", 0)]), barrier()] + with_nops(k_tile_dma(2)) + with_nops(k_tile_dma(3))
    named = [("setup_q", task_setup_q()), ("init", q_groups_initial(first=True)), ("qpre", qpre)]
    named += [(f"q{c}", qch[c]) for c in range(16)]
    named += [("kvset", kv_stream(S_BA) + kv_out(S_BA))]
    named += [(f"q{c}", qch[c]) for c in range(16, 20)]
    named += [("mid", mid), ("apre", apre), ("conv", [nop(7)] + q_convert())]
    named += [(f"e{e}", aep[e]) for e in range(33)]
    named += [("epi1", [nop(7)] + o_epilogue() + range_flag()), ("epi2", o_store()), ("chk", range_check())]
    seg = process(named, "k1")
    segF = process([("fb0", [nop(7)])] + fallback() + [("fb_end", [nop(7)])], "k1F")
    qpreS, qchS = q_phase(True)
    g0 = x_dma(0, set_m0(S_XW0, 2 * XSLOT), tg="x2")
    midS = [lgkm0(), barrier(), g0[0], nop(0)] + g0[1:6] + [nop(0), g0[6]] + \
           [salu(f"s_add_u32 {s(S_XOFF)}, {s(S_XOFF)}, 256"),
            salu(f"s_add_u32 {s(S_XWR)}, {s(S_XW0)}, {1*XSLOT}"), salu(f"s_mov_b32 {s(S_XRD)}, {2*XSLOT}")]
    namedS = [("setup_q", task_setup_q()), ("init", q_groups_initial(first=True)), ("qpre", qpreS)]
    namedS += [(f"q{c}", qchS[c]) for c in range(20)]
    namedS += [("midS", midS), ("convS", [nop(7)] + q_convert()), ("stash", q_stash(True))]
    segS = process(namedS, "k1S")
    for c in range(16):
        assert same_text(seg[f"q{c}"], segS[f"q{c}"]), f"stash flow differs in chunk {c}"
    DBG = os.environ.get("K1DBG", "")
    if DBG:
        def filt(st, pre):
            o = []
            for x in st:
                tg = x.tag[0] if isinstance(x.tag, tuple) else None
                if pre + 'l' in DBG and x.kind == 'lds': continue
                if pre + 'x' in DBG and x.kind == 'dma' and tg == 'x': continue
                if pre + 'w' in DBG and x.kind == 'dma' and tg == 'wq': continue
                if pre + 'k' in DBG and x.kind == 'dma' and tg in ('kq', 'K'): continue
                if pre + 'v' in DBG and x.kind == 'dma' and tg == 'V': continue
                if pre + 'b' in DBG and x.kind == 'barrier': continue
                if pre + 'm' in DBG and x.kind == 'mfma': continue
                if pre + 'e' in DBG and x.kind in ('valu', 'trans'): continue
                if pre + 'W' in DBG and x.kind == 'wait' and 'vmcnt' in x.text: continue
                o.append(x)
            return o
        for k in list(seg.keys()):
            if k[0] == 'q' and k[1:].isdigit(): seg[k] = filt(seg[k], 'q')
            if k[0] == 'e' and k[1:].isdigit(): seg[k] = filt(seg[k], 'a')
    def cat(names, sg=None): return [x for n in names for x in (sg or seg)[n]]
    qloop = cat([f"q{c}" for c in range(4, 8)])
    for it in range(2, 4):
        assert same_text(qloop, cat([f"q{c}" for c in range(4 * it, 4 * it + 4)])), f"Q loop iteration {it} differs"
    aloop = cat([f"e{e}" for e in range(2, 6)])
    for it in range(1, 7):
        other = cat([f"e{e}" for e in range(2 + 4 * it, 6 + 4 * it)])
        assert same_text(aloop, other), f"A loop iteration {it} differs"
    E = lambda st: emit(st)
    A_ = lambda *x: lines.extend(["    " + t for t in x])
    A_(f"s_mov_b32 {s(S_STK)}, 0")
    lines += stamp(6)
    lines += E(seg["setup_q"]) + E(seg["init"])
    lines.append("L1_q:")
    lines += stamp(0)
    lines += E(seg["qpre"])
    lines += E(cat(["q0", "q1", "q2", "q3"]))
    A_(f"s_mov_b32 {s(S_CNT)}, 3")
    lines.append(".p2align 6")
    lines.append("L1_qloop:")
    lines += E(qloop)
    A_(f"s_sub_u32 {s(S_CNT)}, {s(S_CNT)}, 1", f"s_cmp_lg_u32 {s(S_CNT)}, 0", "s_cbranch_scc1 L1_qloop")
    A_(f"s_cmp_eq_u32 {s(S_PASS)}, 1", "s_cbranch_scc1 L1_qS")
    lines += E(seg["kvset"])
    lines += E(cat(["q16", "q17", "q18", "q19"]))
    lines += stamp(1)
    lines += E(seg["mid"]) + E(seg["apre"]) + E(seg["conv"])
    lines.append("L1_a:")
    lines += stamp(2)
    if WIN is not None and WINPAR is not None:
        A_(f"s_and_b32 {s(S_PT0)}, {s(S_XCC)}, 1", f"s_cmp_eq_u32 {s(S_PT0)}, {WINPAR}", "s_cselect_b64 vcc, -1, 0")
    lines += E(cat(["e0", "e1"]))
    A_(f"s_mov_b32 {s(S_CNT)}, 7")
    lines.append(".p2align 6")
    lines.append("L1_aloop:")
    lines += E(aloop)
    lines += pace_code()
    A_(f"s_sub_u32 {s(S_CNT)}, {s(S_CNT)}, 1", f"s_cmp_lg_u32 {s(S_CNT)}, 0", "s_cbranch_scc1 L1_aloop")
    lines += stamp(3)
    lines += E(cat(["e30", "e31", "e32"]))
    lines += stamp(4)
    A_(f"s_mov_b32 {s(S_FB)}, 0")
    lines.append("L1_epi:")
    lines += E(seg["epi1"]) + E(seg["epi2"]) + E(seg["chk"])
    A_(f"s_cmp_eq_u32 {s(S_T0)}, 0", "s_cbranch_scc1 L1_ok", f"s_cmp_eq_u32 {s(S_FB)}, 0", "s_cbranch_scc1 L1_fallback")
    lines.append("L1_ok:")
    lines += stamp(5)
    A_(f"s_cmp_eq_u32 {s(S_ADONE)}, 1", "s_cbranch_scc1 L1_fin",
       f"s_mov_b32 {s(S_ADONE)}, 1", f"s_mov_b32 {s(S_BA)}, {s(S_B8)}",
       f"s_cmp_eq_u32 {s(S_TYPE)}, 0", "s_cbranch_scc1 L1_q")
    lines += E(kv_out(S_BA))
    A_("s_waitcnt vmcnt(44)", "s_barrier")
    lines += E(seg["apre"])
    A_("s_branch L1_a")
    lines.append("L1_qS:")
    lines += E(cat(["q16", "q17", "q18", "q19"], segS))
    lines += stamp(7)
    lines += E(segS["midS"]) + E(segS["convS"]) + E(segS["stash"])
    A_(f"s_mov_b32 {s(S_PASS)}, 0", "s_branch L1_q")
    lines.append("L1_fallback:")
    A_(f"s_mov_b32 {s(S_FB)}, 1")
    lines += E(segF["fb0"]) + E(segF["fb_pre"])
    lines.append("L1_fb1:")
    lines += E(segF["fb_p1"])
    A_(f"s_sub_u32 {s(S_CNT)}, {s(S_CNT)}, 1", f"s_cmp_lg_u32 {s(S_CNT)}, 0", "s_cbranch_scc1 L1_fb1")
    lines += E(segF["fb_mid"])
    lines.append("L1_fb2:")
    lines += E(segF["fb_p2"])
    A_(f"s_sub_u32 {s(S_CNT)}, {s(S_CNT)}, 1", f"s_cmp_lg_u32 {s(S_CNT)}, 0", "s_cbranch_scc1 L1_fb2")
    lines += E(segF["fb_end"])
    A_("s_branch L1_epi")
    lines.append("L1_fin:")
    lines += E(insert_lgkm_waits(wo_convert_store(20)))
    lines += stamp(8)
    if STAMP:
        lines += [f"    s_cmp_lg_u32 {s(S_W)}, 0", "    s_cbranch_scc1 L1_done",
                  f"    s_lshl_b32 s78, s2, 9", f"    s_add_u32 s78, s78, {STAMP_BASE}",
                  "    v_mbcnt_lo_u32_b32 v14, -1, 0", "    v_mbcnt_hi_u32_b32 v14, -1, v14", "    v_lshlrev_b32 v14, 2, v14",
                  f"    buffer_store_dword v15, v14, {srd(sO)}, s78 offen", f"    buffer_store_dword v11, v14, {srd(sO)}, s78 offen offset:256", "    s_waitcnt vmcnt(0)"]
    lines.append("L1_done:")
    lines.append("    s_endpgm")
    return lines


def kernel_desc(name, vgpr, accum, sgpr=102):
    return [f".amdhsa_kernel {name}",
            f"  .amdhsa_next_free_vgpr {vgpr}", f"  .amdhsa_next_free_sgpr {sgpr}", f"  .amdhsa_accum_offset {accum}",
            "  .amdhsa_group_segment_fixed_size 0", "  .amdhsa_kernarg_size 104",
            "  .amdhsa_user_sgpr_count 2", "  .amdhsa_user_sgpr_kernarg_segment_ptr 1",
            "  .amdhsa_system_sgpr_workgroup_id_x 1", "  .amdhsa_float_denorm_mode_32 3", ".end_amdhsa_kernel"]


HEADER = open("cdna_kernels/" + NAME + ".s.ref").read().split("; Override launch")[0]

def build(only=None):
    from gen_k2 import build_k2, LDS2
    out = [HEADER.rstrip("\n")]
    if only != "k2":
        out.append(f"; @launch kernel={K1} grid=(256,1,1) block=(256,1,1) lds={LDS1}")
    if only != "k1":
        out.append(f"; @launch kernel={K2} grid=(256,1,1) block=(256,1,1) lds={LDS2}")
    out.append('.amdgcn_target "amdgcn-amd-amdhsa--gfx950"')
    out.append(".text")
    for nm, body in ((K1, build_k1()), (K2, build_k2())):
        out += [f".globl {nm}", ".p2align 8", f".type {nm},@function", f"{nm}:"]
        out += body
    out += ['.section .rodata,"a"', ".p2align 6"]
    out += kernel_desc(K1, 512, 256)
    out += [".p2align 6"]
    out += kernel_desc(K2, 336, 232)
    return "\n".join(out) + "\n"

if __name__ == "__main__":
    if "--map2" in sys.argv:
        MAP2 = True; sys.argv.remove("--map2")
    if "--noxy" in sys.argv:
        XY = False; sys.argv.remove("--noxy")
    if "--xy" in sys.argv:
        XY = True; sys.argv.remove("--xy")
    if "--nowin" in sys.argv:
        WIN = None; sys.argv.remove("--nowin")
    if "--pace" in sys.argv:
        PACE = True; sys.argv.remove("--pace")
    for a_ in list(sys.argv):
        if a_.startswith("--winpar="):
            WINPAR = int(a_.split("=")[1]); sys.argv.remove(a_); continue
        if a_.startswith("--win2="):
            WIN2 = int(a_.split("=")[1]); sys.argv.remove(a_); continue
        if a_.startswith("--win="):
            WIN = int(a_.split("=")[1]); sys.argv.remove(a_)
    if "--nopace" in sys.argv:
        PACE = False; sys.argv.remove("--nopace")
    for a_ in list(sys.argv):
        if a_.startswith("--delta="):
            PACE_DELTA = int(a_.split("=")[1]); sys.argv.remove(a_)
        if a_.startswith("--spins="):
            PACE_SPINS = int(a_.split("=")[1]); sys.argv.remove(a_)
    if "--nopf" in sys.argv:
        PF = False; sys.argv.remove("--nopf")
    for o_ in ("odd", "even", "slot", "all"):
        if "--x" + o_ in sys.argv:
            XSEL = o_; sys.argv.remove("--x" + o_)
    if "--pf" in sys.argv:
        PF = True; sys.argv.remove("--pf")
    if "--norot" in sys.argv:
        ROT = False; sys.argv.remove("--norot")
    if "--stamp" in sys.argv:
        STAMP = True; sys.argv.remove("--stamp")
    only = None
    for o_ in ("k1", "k2"):
        if "--" + o_ in sys.argv:
            only = o_; sys.argv.remove("--" + o_)
    txt = build(only)
    path = sys.argv[1] if len(sys.argv) > 1 else "cdna_kernels/" + NAME + ".s"
    open(path, "w").write(txt)
    print("wrote", path, len(txt), "bytes")
```

```python
from asmlib import *
import os
LDS3 = 163840
def s(n): return f"s{n}"
def srd(n): return f"s[{n}:{n+3}]"
sWS, sOut, sDbg = 12, 16, 8
S_W, S_NH, S_QH, S_WOFF, S_OOFF, S_LW, S_CNT, S_T0, S_T1, S_OUTOFF, S_KH, S_XS, S_XR = 20, 21, 22, 23, 24, 25, 26, 27, 28, 29, 34, 35, 36
vD = 8
vRO = 13
vRW = 17
vOut = 21
vL16 = 22
vFl = 23
vB = 32
vA = 72
vX = 112
SLOT = 40960
WF_BASE = 42 << 20
XB_BASE = 96 << 20
WS_SIZE = XB_BASE + 256 * 4 * 13 * 1024
ST = bool(os.environ.get('K2STAMP'))
def st2(k):
    if not ST: return []
    return [f'    s_memtime s[{40+4*k}:{41+4*k}]', f'    s_memrealtime s[{42+4*k}:{43+4*k}]', '    s_waitcnt lgkmcnt(0)']
def BF(i2, q): return V(vB + (i2 * 5 + q) * 4, 4)
def AF(i2, t): return V(vA + (i2 * 5 + t) * 4, 4)
def acc(t, q): return A((t * 5 + q) * 4, 4)

class Timeline:
    def __init__(self):
        self.m = {}; self.n = {}
    def mfma(self, t, ins): self.m[t] = ins
    def N(self, t, ins): self.n.setdefault(t, []).append(ins)
    def stream(self, t0, t1, fill_nop=True):
        out = []
        for t in range(t0, t1):
            if t in self.m: out.append(self.m[t])
            elif fill_nop: out.append(nop(0))
            out += self.n.get(t, [])
        return out

def grp(st, which):
    off = (st % 4) * SLOT + (20480 if which == "W" else 0)
    so = S_WOFF if which == "W" else S_OOFF
    out = [salu(f"s_add_u32 m0, {s(S_LW)}, {off}", [], ["m0"])]
    for j in range(4):
        t = f"buffer_load_dwordx4 v{vD + j}, {srd(sWS)}, {s(so)} offen" + (f" offset:{1024*j}" if j else "") + " lds"
        out.append(I(t, "dma", [f"v{vD+j}", "m0"], [], tag=(which, st)))
    out.append(salu(f"s_add_u32 m0, {s(S_LW)}, {off + 4096}", [], ["m0"]))
    out.append(I(f"buffer_load_dwordx4 v{vD + 4}, {srd(sWS)}, {s(so)} offen lds", "dma", [f"v{vD+4}", "m0"], [], tag=(which, st)))
    out.append(salu(f"s_add_u32 {s(so)}, {s(so)}, 2048"))
    return out

def build_k3():
    LA = 3
    L = []
    L.append("    s_cmp_ge_u32 s2, 256"); L.append("    s_cbranch_scc1 L2_done")
    L += st2(0)
    P = []; p = P.append
    p("s_load_dwordx2 s[30:31], s[0:1], 80")
    p("s_load_dwordx2 s[32:33], s[0:1], 96")
    p("s_load_dwordx2 s[4:5], s[0:1], 88")
    p("v_lshrrev_b32 v1, 6, v0")
    p("v_and_b32 v2, 63, v0")
    p(f"v_readfirstlane_b32 {s(S_W)}, v1")
    p("s_and_b32 s3, s2, 7")
    p("s_lshr_b32 s37, s2, 3")
    p(f"s_and_b32 {s(S_KH)}, s37, 1")
    p("s_bfe_u32 s38, s37, 0x20001")
    p("s_lshr_b32 s37, s37, 3")
    p("s_lshl_b32 s39, s3, 2")
    p("s_add_u32 s39, s39, s37")
    p("s_lshr_b32 s37, s39, 4")
    p("s_and_b32 s3, s39, 15")
    p(f"s_lshr_b32 {s(S_NH)}, {s(S_W)}, 1")
    p(f"s_and_b32 {s(S_QH)}, {s(S_W)}, 1")
    p("s_waitcnt lgkmcnt(0)")
    def mk(n, lo, hi, size):
        p(f"s_mov_b32 s{n}, s{lo}"); p(f"s_and_b32 s{n+1}, s{hi}, 0xffff"); p(f"s_mov_b32 s{n+2}, {size}"); p(f"s_mov_b32 s{n+3}, 0x20000")
    mk(sWS, 32, 33, WS_SIZE)
    mk(sOut, 30, 31, 16 * 160 * 2560)
    mk(sDbg, 4, 5, 256)
    p(f"s_mul_i32 {s(S_T0)}, s39, 10"); p(f"s_mul_i32 {s(S_T1)}, {s(S_QH)}, 5"); p(f"s_add_u32 {s(S_T0)}, {s(S_T0)}, {s(S_T1)}")
    p(f"s_lshl_b32 {s(S_T0)}, {s(S_T0)}, 7"); p(f"s_lshl_b32 {s(S_T1)}, {s(S_KH)}, 6"); p(f"s_add_u32 {s(S_T1)}, {s(S_T1)}, {s(S_NH)}")
    p(f"s_add_u32 {s(S_T0)}, {s(S_T0)}, {s(S_T1)}"); p(f"s_lshl_b32 {s(S_OOFF)}, {s(S_T0)}, 10")
    p(f"s_mul_i32 {s(S_T0)}, s37, 40"); p("s_mul_i32 s4, s38, 10"); p(f"s_add_u32 {s(S_T0)}, {s(S_T0)}, s4")
    p(f"s_mul_i32 s4, {s(S_QH)}, 5"); p(f"s_add_u32 {s(S_T0)}, {s(S_T0)}, s4"); p(f"s_lshl_b32 {s(S_T0)}, {s(S_T0)}, 7")
    p(f"s_add_u32 {s(S_T0)}, {s(S_T0)}, {s(S_T1)}"); p(f"s_lshl_b32 {s(S_T0)}, {s(S_T0)}, 10"); p(f"s_add_u32 {s(S_WOFF)}, {s(S_T0)}, {WF_BASE}")
    p(f"s_mul_i32 {s(S_T0)}, {s(S_NH)}, 10240"); p(f"s_mul_i32 {s(S_T1)}, {s(S_QH)}, 5120"); p(f"s_add_u32 {s(S_LW)}, {s(S_T0)}, {s(S_T1)}")
    p(f"s_mul_i32 {s(S_T0)}, s3, 160"); p(f"s_mul_i32 {s(S_T1)}, {s(S_QH)}, 80"); p(f"s_add_u32 {s(S_T0)}, {s(S_T0)}, {s(S_T1)}")
    p(f"s_mul_i32 {s(S_OUTOFF)}, {s(S_T0)}, 2560"); p(f"s_mul_i32 {s(S_T0)}, s37, 1280"); p(f"s_add_u32 {s(S_OUTOFF)}, {s(S_OUTOFF)}, {s(S_T0)}")
    p(f"s_mul_i32 {s(S_T0)}, s38, 320"); p(f"s_add_u32 {s(S_OUTOFF)}, {s(S_OUTOFF)}, {s(S_T0)}")
    p(f"s_mul_i32 {s(S_T0)}, {s(S_NH)}, 160"); p(f"s_add_u32 {s(S_OUTOFF)}, {s(S_OUTOFF)}, {s(S_T0)}")
    p(f"s_lshl_b32 {s(S_T0)}, s2, 2"); p(f"s_add_u32 {s(S_T0)}, {s(S_T0)}, {s(S_W)}"); p(f"s_mul_i32 {s(S_T0)}, {s(S_T0)}, 13312"); p(f"s_add_u32 {s(S_XS)}, {s(S_T0)}, {XB_BASE}")
    p(f"s_xor_b32 {s(S_T0)}, s2, 8"); p(f"s_lshl_b32 {s(S_T0)}, {s(S_T0)}, 2"); p(f"s_add_u32 {s(S_T0)}, {s(S_T0)}, {s(S_W)}"); p(f"s_mul_i32 {s(S_T0)}, {s(S_T0)}, 13312"); p(f"s_add_u32 {s(S_XR)}, {s(S_T0)}, {XB_BASE}")
    p("v_and_b32 v3, 15, v2"); p("v_lshrrev_b32 v4, 4, v2"); p(f"v_lshlrev_b32 v{vL16}, 4, v2")
    for j in range(5):
        p(f"v_add_u32 v{vD+j}, {j*131072 - (1024*j if j < 4 else 0)}, v{vL16}")
    p(f"s_mul_i32 {s(S_T0)}, {s(S_QH)}, 5120"); p(f"s_mul_i32 {s(S_T1)}, {s(S_NH)}, 5120"); p(f"s_add_u32 {s(S_T1)}, {s(S_T1)}, 20480")
    for k in range(4):
        p(f"s_add_u32 s4, {s(S_T0)}, {k*SLOT}"); p(f"v_add_u32 v{vRO+k}, s4, v{vL16}")
        p(f"s_add_u32 s4, {s(S_T1)}, {k*SLOT}"); p(f"v_add_u32 v{vRW+k}, s4, v{vL16}")
    p("v_mul_u32_u24 v6, 2560, v3"); p(f"v_lshl_add_u32 v{vOut}, v4, 3, v6")
    L += ["    " + x for x in P]

    II = 50; NS = 32
    tl = Timeline()
    init = []
    for st in range(LA):
        for which in ("O", "W"):
            g = grp(st, which)
            init += g[:1] + [nop(0)] + g[1:6] + [nop(0)] + g[6:]
    for st in range(-1, NS):
        T = st * II
        if st >= 0:
            for t in range(II):
                i2, tt, q = t // 25, (t % 25) // 5, t % 5
                first = (st == 0 and i2 == 0)
                tl.mfma(T + t, mfma16(acc(tt, q), AF(i2, tt), BF(i2, q), 0 if first else acc(tt, q)))
        n = st + 1
        if n < NS:
            tl.N(T + 30, I("s_waitcnt lgkmcnt(0)", "wait", info="lgkm0"))
            tl.N(T + 31, I("s_waitcnt vmcnt(?)", "wait", info=("vm", [("O", n), ("W", n)], None)))
            tl.N(T + 32, I("s_barrier", "barrier"))
            order0 = [("B", 0), ("A", 0), ("B", 1), ("B", 2), ("B", 3), ("B", 4), ("A", 1), ("A", 2), ("A", 3), ("A", 4)]
            for k, (kind, x) in enumerate(order0):
                t = T + 33 + (k * 3) // 2
                if kind == "B": tl.N(t, ds_read("ds_read_b128", BF(0, x), V(vRO + n % 4), x * 1024))
                else: tl.N(t, ds_read("ds_read_b128", AF(0, x), V(vRW + n % 4), x * 1024))
            for k, (kind, x) in enumerate(order0):
                t = T + 51 + 2 * k
                if kind == "B": tl.N(t, ds_read("ds_read_b128", BF(1, x), V(vRO + n % 4), 10240 + x * 1024))
                else: tl.N(t, ds_read("ds_read_b128", AF(1, x), V(vRW + n % 4), 10240 + x * 1024))
        if st >= 0 and st + LA < NS:
            go, gw = grp(st + LA, "O"), grp(st + LA, "W")
            tl.N(T + 0, go[0])
            for j, t_ in enumerate([2, 6, 10, 14]): tl.N(T + t_, go[1 + j])
            tl.N(T + 17, go[5]); tl.N(T + 18, go[6]); tl.N(T + 20, go[7])
            tl.N(T + 21, gw[0])
            for j, t_ in enumerate([22, 25, 28, 47]): tl.N(T + t_, gw[1 + j])
            tl.N(T + 48, gw[5]); tl.N(T + 49, gw[6]); tl.N(T + 49, gw[7])
    pre = tl.stream(-II + 30, 0, fill_nop=False)
    stages = [tl.stream(st * II, (st + 1) * II) for st in range(NS)]
    flat = []
    def mark(n): flat.append(I(f"@@{n}", "label"))
    mark("init"); flat += init
    mark("pre"); flat += pre + [I("s_waitcnt lgkmcnt(0)", "wait", info="lgkm0")]
    for st in range(NS):
        mark(f"s{st}"); flat += stages[st]
    resolve_vm_waits(flat)
    flat = insert_lgkm_waits(flat, lat=6)
    flat, notes = check_hazards(flat, "k3", fix=True)
    assert not check_hazards(flat, "k3")
    seg = {}; cur = None
    for ins in flat:
        if ins.kind == "label" and ins.text.startswith("@@"):
            cur = ins.text[2:]; seg[cur] = []
        else: seg[cur].append(ins)
    cat = lambda names: [x for n in names for x in seg[n]]
    txt = lambda st: [x.text for x in st]
    body = cat([f"s{k}" for k in range(4, 8)])
    for it in range(1, 6):
        assert txt(body) == txt(cat([f"s{k}" for k in range(4 + 4 * it, 8 + 4 * it)])), f"k3 iteration {it}"
    L += st2(1) + emit(seg["init"]) + st2(2) + emit(seg["pre"]) + st2(3) + emit(cat(["s0", "s1", "s2", "s3"])) + st2(4)
    L.append(f"    s_mov_b32 {s(S_CNT)}, 6")
    L.append(".p2align 6"); L.append("L2_loop:")
    L += emit(body)
    L += [f"    s_sub_u32 {s(S_CNT)}, {s(S_CNT)}, 1", f"    s_cmp_lg_u32 {s(S_CNT)}, 0", "    s_cbranch_scc1 L2_loop"]
    L += st2(5) + emit(cat(["s28", "s29", "s30", "s31"])) + st2(6)
    F = []; f = F.append
    f("s_nop 7")
    f(f"s_cmp_eq_u32 {s(S_KH)}, 0"); f("s_cbranch_scc0 L2_x1")
    for kh in range(2):
        keep = list(range(0, 13)) if kh == 0 else list(range(13, 25))
        send = list(range(13, 25)) if kh == 0 else list(range(0, 13))
        if kh == 1: F.append("L2_x1:")
        f(f"s_mov_b32 {s(S_T0)}, {s(S_XS)}")
        for i, k in enumerate(send):
            off = f" offset:{1024*(i%4)}" if i % 4 else ""
            f(f"buffer_store_dwordx4 a[{4*k}:{4*k+3}], v{vL16}, {srd(sWS)}, {s(S_T0)} offen{off} sc1")
            if i % 4 == 3: f(f"s_add_u32 {s(S_T0)}, {s(S_T0)}, 4096")
        f("s_waitcnt vmcnt(0)")
        f("s_barrier")
        f(f"s_cmp_lg_u32 {s(S_W)}, 0"); f(f"s_cbranch_scc1 L2_w{kh}")
        f(f"v_mov_b32 v{vFl}, s2"); f("v_mov_b32 v24, 1"); f("v_mov_b32 v25, 0x1000")
        f("v_cmp_eq_u32 vcc, 0, v2"); f("s_nop 1"); f(f"v_cndmask_b32 v{vFl}, v25, v{vFl}, vcc")
        f(f"buffer_store_byte v24, v{vFl}, {srd(sDbg)}, 0 offen sc1")
        f(f"s_xor_b32 {s(S_T0)}, s2, 8"); f(f"v_mov_b32 v{vFl}, {s(S_T0)}")
        F.append(f"L2_poll{kh}:")
        f(f"buffer_load_ubyte v24, v{vFl}, {srd(sDbg)}, 0 offen sc1")
        f("s_waitcnt vmcnt(0)")
        f(f"v_readfirstlane_b32 {s(S_T0)}, v24")
        f("s_nop 3")
        f(f"s_cmp_eq_u32 {s(S_T0)}, 0"); f(f"s_cbranch_scc1 L2_poll{kh}")
        F.append(f"L2_w{kh}:")
        f("s_barrier")
        f(f"s_mov_b32 {s(S_T0)}, {s(S_XR)}")
        for i, k in enumerate(keep):
            off = f" offset:{1024*(i%4)}" if i % 4 else ""
            f(f"buffer_load_dwordx4 v[{vX+4*i}:{vX+4*i+3}], v{vL16}, {srd(sWS)}, {s(S_T0)} offen{off} sc1")
            if i % 4 == 3: f(f"s_add_u32 {s(S_T0)}, {s(S_T0)}, 4096")
        for i, k in enumerate(keep):
            tt, q = k // 5, k % 5
            r = vX + 4 * i
            t = vA + 4 * (i % 4)
            for j in range(4):
                f(f"v_accvgpr_read_b32 v{t + j}, a{4*k + j}")
            f(f"s_waitcnt vmcnt({len(keep) - 1 - i + i})" if False else f"s_waitcnt vmcnt({len(keep) - 1})" if i == 0 else f"s_waitcnt vmcnt({len(keep) - 1})")
            f(f"v_pk_add_f32 v[{r}:{r+1}], v[{r}:{r+1}], v[{t}:{t+1}]")
            f(f"v_pk_add_f32 v[{r+2}:{r+3}], v[{r+2}:{r+3}], v[{t+2}:{t+3}]")
            f(f"s_add_u32 {s(S_T0)}, {s(S_OUTOFF)}, {q*16*2560}")
            f(f"v_cvt_pk_bf16_f32 v{r}, v{r}, v{r+1}")
            f(f"v_cvt_pk_bf16_f32 v{r+1}, v{r+2}, v{r+3}")
            f(f"buffer_store_dwordx2 v[{r}:{r+1}], v{vOut}, {srd(sOut)}, {s(S_T0)} offen offset:{32*tt}")
        if kh == 0: f("s_branch L2_fin")
    F.append("L2_fin:")
    for x in F:
        L.append(x if x.endswith(":") else "    " + x)
    if ST:
        L += ["    s_waitcnt vmcnt(0)"] + st2(7)
        L += [f"    s_cmp_lg_u32 {s(S_W)}, 0", "    s_cbranch_scc1 L2_done", "    s_lshl_b32 s80, s2, 8", f"    s_add_u32 s80, s80, {57<<20}"]
        for k in range(8):
            L += [f"    v_mov_b32 v2, s{40+4*k}", f"    v_mov_b32 v3, s{42+4*k}", f"    v_mov_b32 v4, {8*k}", f"    buffer_store_dwordx2 v[2:3], v4, s[12:15], s80 offen"]
        L += ["    s_waitcnt vmcnt(0)"]
    L.append("L2_done:"); L.append("    s_endpgm")
    return L
```

```python
import sys, math, struct, os
from asmlib import *

NAME = "concat_heads__mha_block_cached__mha_block_cached__near_ridge"
K1 = "mha_attn_kernel"
K2 = "mha_oproj_kernel"

def fbits(x):
    return struct.unpack("<I", struct.pack("<f", x))[0]

KR = 0
VR = 65536
XR = 131072
XSLOT = 20480
FLAGS = 61440
LDS1 = 163840
WF_BASE = 42 << 20
WS_USED = (64 << 20) + 256 * 81920
STAMP_BASE = 56 << 20

sX, sWQ, sK, sV, sO = 8, 12, 16, 20, 24
sWO = 88
S_W, S_HSEL, S_HALF, S_TASK, S_B, S_H = 28, 29, 30, 31, 32, 33
S_KOFF, S_VOFF, S_XOFF, S_WQOFF, S_XWR, S_XRD, S_CNT = 34, 35, 36, 37, 38, 39, 40
S_LK, S_LV, S_C, S_KQS, S_KQM, S_HOFF, S_OOFF = 41, 42, 44, 72, 46, 47, 48
S_KQSMAX, S_KQMMAX, S_B0, S_XW0 = 49, 50, 51, 43
S_T0, S_T1, S_T2, S_T3 = 68, 69, 70, 71
S_XWEND = 73
S_PFX, S_PFW, S_PAIR = 80, 81, 82
S_WQST, S_WQEND, S_XST, S_XEND, S_ROT = 92, 93, 94, 95, 96
PF = True
PF1 = False
ROT = False
MAP2 = False
S_TYPE, S_PASS, S_ADONE, S_BQ, S_BA, S_B8, S_QS, S_STK = 97, 98, 99, 100, 32, 83, 72, 79
QS_BASE = 64 << 20
XY = False
XSEL = "odd"
S_FOFF, S_FB = 46, 49
sDBG = 52
S_XCC, S_PT0, S_PT1, S_PN = 56, 57, 58, 59
PACE = False
WIN = 4
OST = os.environ.get('OST', 'sc1')
PACE_DELTA, PACE_SPINS = 96, 6
L_LO, L_HI = 2.0 ** -14, 2.0 ** 20
S_TASKI = 79
def s(n): return f"s{n}"
def srd(n): return f"s[{n}:{n+3}]"

vQ, vS, vP = 16, 96, 136
vKr, vVr, vWr, vXr, vXpat = 176, 180, 188, 192, 232
vKd, vVd, vWd, vXd = 194, 198, 200, 234
vL = 207
vOst = 212
vPfX, vPfW, vDum = 213, 214, 12
vPfX2, vPfW2 = 239, 240
vT = 216
aO, aKF, aVF = 0, 160, 192

def Qf(qt, st): return V(vQ + (qt * 4 + st) * 4, 4)
def Sf(kt, qt): return V(vS + (kt * 5 + qt) * 4, 4)
def Pf(par, qt): return V(vP + (par * 5 + qt) * 4, 4)
def KF(kt, st): return A(aKF + (kt * 4 + st) * 4, 4)
def VF(dt): return A(aVF + dt * 4, 4)
def Of(dt, qt): return A(aO + (dt * 5 + qt) * 4, 4)

def dma(voff, srdn, soff, ioff, nt, tag):
    t = f"buffer_load_dwordx4 v{voff}, {srd(srdn)}, {soff} offen"
    if ioff: t += f" offset:{ioff}"
    if nt: t += " " + os.environ.get("KVPOL", "nt")
    t += " lds"
    return I(t, "dma", [f"v{voff}", "m0"], [], tag=tag)

def set_m0(base_s, const):
    if const == 0:
        return salu(f"s_mov_b32 m0, {s(base_s)}", [], ["m0"])
    return salu(f"s_add_u32 m0, {s(base_s)}, {const}", [], ["m0"])

def vmwait(tags, lgkm0=False, cap=None):
    t = "s_waitcnt vmcnt(?)" + (" lgkmcnt(0)" if lgkm0 else "")
    return I(t, "wait", info=("vm", tags, cap))

def lgkm0():
    return I("s_waitcnt lgkmcnt(0)", "wait", info="lgkm0")

def barrier():
    return I("s_barrier", "barrier")


class Timeline:
    def __init__(self):
        self.m = {}; self.n = {}; self.v = {}
    def mfma(self, t, ins):
        assert t not in self.m, t
        self.m[t] = ins
    def N(self, t, ins):
        self.n.setdefault(t, []).append(ins)
    def Vv(self, t, ins):
        self.v.setdefault(t, []).append(ins)
    def stream(self, t0, t1, fill_nop=True):
        out = []
        for t in range(t0, t1):
            if t in self.m:
                out.append(self.m[t])
            elif fill_nop:
                out.append(nop(0))
            out += self.n.get(t, [])
            out += self.v.get(t, [])
        return out


def lgkm0_mark(ins):
    return ins


def x_dma(sc, m0_ins, soff=None, tg="x"):
    soff = S_XOFF if soff is None else soff
    out = [m0_ins]
    for j in range(4):
        out.append(dma(vXd + j, sX, s(soff), 1024 * j, False, (tg, sc)))
    out.append(salu("s_add_u32 m0, m0, 4096", ["m0"], ["m0"]))
    out.append(dma(vXd + 4, sX, s(soff), 0, False, (tg, sc)))
    out.append(salu(f"s_add_u32 {s(S_XOFF)}, {s(S_XOFF)}, 128"))
    out.append(salu(f"s_cmp_lt_u32 {s(S_XOFF)}, {s(S_XEND)}"))
    out.append(salu(f"s_cselect_b32 {s(S_XOFF)}, {s(S_XOFF)}, {s(S_XST)}"))
    return out

def wq_advance():
    return [salu(f"s_add_u32 {s(S_WQOFF)}, {s(S_WQOFF)}, {32*8192}"),
            salu(f"s_cmp_lt_u32 {s(S_WQOFF)}, {s(S_WQEND)}"),
            salu(f"s_cselect_b32 {s(S_WQOFF)}, {s(S_WQOFF)}, {s(S_WQST)}")]

def pf_loads():
    out = []
    if PF:
        out.append(I(f"buffer_load_dword v{vDum}, v{vPfX}, {srd(sX)}, {s(S_PFX)} offen", "vmem", [f"v{vPfX}"], [f"v{vDum}"], tag=("pf", 0)))
        out.append(I(f"buffer_load_dword v{vDum}, v{vPfW}, {srd(sWQ)}, {s(S_PFW)} offen", "vmem", [f"v{vPfW}"], [f"v{vDum}"], tag=("pf", 1)))
        out.append(I(f"buffer_load_dword v{vDum}, v{vPfX2}, {srd(sX)}, {s(S_PFX)} offen", "vmem", [f"v{vPfX2}"], [f"v{vDum}"], tag=("pf", 0)))
        out.append(I(f"buffer_load_dword v{vDum}, v{vPfW2}, {srd(sWQ)}, {s(S_PFW)} offen", "vmem", [f"v{vPfW2}"], [f"v{vDum}"], tag=("pf", 1)))
    return out

def wo_convert_load():
    out = []
    out.append(salu(f"s_and_b32 {s(S_T0)}, s2, 127"))
    out.append(salu(f"s_mul_i32 {s(S_T0)}, {s(S_T0)}, 40960"))
    out.append(salu(f"s_mul_i32 {s(S_T1)}, {s(S_W)}, 10240"))
    out.append(salu(f"s_add_u32 {s(S_T0)}, {s(S_T0)}, {s(S_T1)}"))
    for grp in range(3):
        out.append(salu(f"s_add_u32 m0, {s(S_T1)}, {grp*4096}", [], ["m0"]))
        out.append(nop(0))
        for j in range(4 if grp < 2 else 2):
            out.append(dma(vOst, sWO, s(S_T0), 1024 * j, False, ("cv", 0)))
        out.append(salu(f"s_add_u32 {s(S_T0)}, {s(S_T0)}, 4096"))
    return out

def wo_convert_store(nyounger):
    out = []
    out.append(I(f"s_waitcnt vmcnt({nyounger})", "wait", info="fixed"))
    out.append(barrier())
    t = vT
    out.append(valu(f"v_lshrrev_b32 v{t}, 6, v{vOst}", [], [f"v{t}"]))
    out.append(valu(f"v_mul_u32_u24 v{t}, 1280, v{t}", [f"v{t}"], [f"v{t}"]))
    out.append(valu(f"v_lshrrev_b32 v{t+1}, 4, v{vOst}", [], [f"v{t+1}"]))
    out.append(valu(f"v_and_b32 v{t+1}, 3, v{t+1}", [f"v{t+1}"], [f"v{t+1}"]))
    out.append(valu(f"v_lshl_add_u32 v{t}, v{t+1}, 3, v{t}", [f"v{t}", f"v{t+1}"], [f"v{t}"]))
    out.append(salu(f"s_mul_i32 {s(S_T0)}, {s(S_W)}, 320"))
    out.append(valu(f"v_add_u32 v{t}, {s(S_T0)}, v{t}", [f"v{t}"], [f"v{t}"]))
    for tt in range(10):
        for u in range(2):
            out.append(ds_read("ds_read_b64_tr_b16", V(vS + 4 * tt + 2 * u, 2), V(t), u * 20480 + 32 * tt))
        if tt == 4: out.append(lgkm0())
    out.append(lgkm0())
    out.append(salu(f"s_lshr_b32 {s(S_T0)}, s2, 7"))
    out.append(salu(f"s_mul_i32 {s(S_T0)}, {s(S_T0)}, 40"))
    out.append(salu(f"s_mul_i32 {s(S_T1)}, {s(S_W)}, 10"))
    out.append(salu(f"s_add_u32 {s(S_T0)}, {s(S_T0)}, {s(S_T1)}"))
    out.append(salu(f"s_lshl_b32 {s(S_T0)}, {s(S_T0)}, 7"))
    out.append(salu(f"s_and_b32 {s(S_T1)}, s2, 127"))
    out.append(salu(f"s_add_u32 {s(S_T0)}, {s(S_T0)}, {s(S_T1)}"))
    out.append(salu(f"s_lshl_b32 {s(S_T0)}, {s(S_T0)}, 10"))
    out.append(salu(f"s_add_u32 {s(S_T0)}, {s(S_T0)}, {WF_BASE}"))
    for tt in range(10):
        d = vS + 4 * tt
        out.append(I(f"buffer_store_dwordx4 v[{d}:{d+3}], v{vOst}, {srd(sO)}, {s(S_T0)} offen{' ' + OST if OST else ''}", "vmem", regs("v", d, 4) + [f"v{vOst}"], [], tag=("cv", 1)))
        out.append(salu(f"s_add_u32 {s(S_T0)}, {s(S_T0)}, 131072"))
    out.append(barrier())
    return out

def q_groups_initial(first=False):
    out = []
    def wq(c):
        out.append(set_m0(S_LV, (c % 4) * 16384))
        out.append(nop(0))
        for j in range(4):
            out.append(dma(vWd + j, sWQ, s(S_WQOFF), 1024 * j, False, ("wq", c)))
        out.extend(wq_advance())
    def x(sc):
        g = x_dma(sc, set_m0(S_XW0, ((sc + 2) % 3) * XSLOT))
        out.extend([g[0], nop(0)] + g[1:6] + [nop(0)] + g[6:])
    if first and PF1:
        out += pf_loads()
    wq(0); x(0); wq(1); wq(2)
    x(1)
    if not first:
        out += pf_loads()
    out.append(salu(f"s_add_u32 {s(S_XWR)}, {s(S_XW0)}, {1*XSLOT}"))
    out.append(salu(f"s_mov_b32 {s(S_XRD)}, {2*XSLOT}"))
    return out


def k_tile_dma(n):
    out = [set_m0(S_LK, (n % 4) * 16384)]
    for j in range(4):
        out.append(dma(vKd + j, sK, s(S_KOFF), 1024 * j, True, ("K", n)))
    out.append(salu(f"s_add_u32 {s(S_KOFF)}, {s(S_KOFF)}, 8192"))
    return out

def v_tile_dma(n):
    out = [set_m0(S_LV, (n % 4) * 16384)]
    for j in range(4):
        out.append(dma(vVd + (j & 1), sV, s(S_VOFF), 1024 * j, True, ("V", n)))
    out.append(salu(f"s_add_u32 {s(S_VOFF)}, {s(S_VOFF)}, 8192"))
    return out


def q_phase(stash=False):
    II = 40
    tl = Timeline()
    NCH = 20
    def AF(dt): return A(aKF + dt * 4, 4)
    def BF(par, qt): return V(vS + (par * 5 + qt) * 4, 4)
    def acc(dt, qt): return A(aO + (dt * 5 + qt) * 4, 4)
    for c in range(-1, NCH):
        T = c * II
        if c >= 0:
            for t in range(II):
                dt, qt = t // 5, t % 5
                tl.mfma(T + t, mfma16(acc(dt, qt), AF(dt), BF(c & 1, qt), 0 if c == 0 else acc(dt, qt)))
        n = c + 1
        if n < NCH:
            tl.N(T + 24, lgkm0())
            tl.N(T + 25, vmwait([("x", n >> 1), ("wq", n)]))
            tl.N(T + 26, barrier())
            tl.Vv(T + 26, valu(f"v_add_u32 v{vXr}, {s(S_XRD)}, v{vXpat + (n & 1)}", [f"v{vXpat + (n & 1)}"], [f"v{vXr}"]))
            slot = n % 4
            def rdB(t, qt):
                tl.N(T + t, ds_read("ds_read_b128", BF(n & 1, qt), V(vXr), qt * 2048))
            def rdA(t, dt, u):
                st, odd = dt // 2, dt % 2
                tl.N(T + t, ds_read("ds_read_b64_tr_b16", AF(dt).sub(2 * u, 2), V(vWr + st), slot * 16384 + u * 1024 + odd * 8))
            rdB(27, 0); rdA(28, 0, 0); rdA(29, 0, 1); rdB(30, 1); rdB(31, 2); rdB(32, 3); rdB(33, 4)
            rdA(35, 1, 0); rdA(36, 1, 1); rdA(39, 2, 0); rdA(40, 2, 1); rdA(44, 3, 0); rdA(45, 3, 1)
            rdA(49, 4, 0); rdA(50, 4, 1); rdA(54, 5, 0); rdA(55, 5, 1); rdA(58, 6, 0); rdA(59, 6, 1); rdA(61, 7, 0); rdA(62, 7, 1)
            if n & 1:
                tl.N(T + 58, salu(f"s_add_u32 {s(S_XRD)}, {s(S_XRD)}, {XSLOT}"))
                tl.N(T + 59, salu(f"s_cmp_eq_u32 {s(S_XRD)}, {3*XSLOT}"))
                tl.N(T + 59, salu(f"s_cselect_b32 {s(S_XRD)}, 0, {s(S_XRD)}"))
            has_w = n + 3 < NCH
            has_x = n % 2 == 0 and n // 2 + 2 < NCH // 2
            wm0 = lambda: set_m0(S_LV, ((n + 3) % 4) * 16384)
            wd = lambda j: dma(vWd + j, sWQ, s(S_WQOFF), 1024 * j, False, ("wq", n + 3))
            if has_x:
                g = x_dma(n // 2 + 2, salu(f"s_mov_b32 m0, {s(S_XWR)}", [], ["m0"]))
                xm0 = lambda: salu(f"s_mov_b32 m0, {s(S_XWR)}", [], ["m0"])
                tl.N(T + 41, xm0()); tl.N(T + 42, g[1]); tl.N(T + 46, g[2])
                if has_w:
                    tl.N(T + 47, wm0()); tl.N(T + 48, wd(0)); tl.N(T + 52, wd(1))
                tl.N(T + 55, xm0()); tl.N(T + 56, g[3]); tl.N(T + 60, g[4])
                if has_w:
                    tl.N(T + 62, wm0()); tl.N(T + 63, wd(2)); tl.N(T + 74, wd(3))
                tl.N(T + 76, salu(f"s_add_u32 m0, {s(S_XWR)}, 4096", [], ["m0"])); tl.N(T + 77, g[6])
                tl.N(T + 78, g[7]); tl.N(T + 79, g[8]); tl.N(T + 79, g[9])
                tl.N(T + 80, salu(f"s_add_u32 {s(S_XWR)}, {s(S_XWR)}, {XSLOT}"))
                tl.N(T + 80, salu(f"s_cmp_eq_u32 {s(S_XWR)}, {s(S_XWEND)}"))
                tl.N(T + 80, salu(f"s_cselect_b32 {s(S_XWR)}, {s(S_XW0)}, {s(S_XWR)}"))
            elif has_w:
                tl.N(T + 41, wm0()); tl.N(T + 42, wd(0)); tl.N(T + 52, wd(1)); tl.N(T + 63, wd(2)); tl.N(T + 74, wd(3))
            if has_w:
                wa = wq_advance()
                tl.N(T + 75, wa[0]); tl.N(T + 78, wa[1]); tl.N(T + 78, wa[2])
            early = {17: [("K", 0), ("V", 0)], 18: [("V", 1)], 19: [("K", 1), ("V", 2)]}
            if not stash and n in early:
                tt = T + 39
                for kind, idx in early[n]:
                    g = k_tile_dma(idx) if kind == "K" else v_tile_dma(idx)
                    tl.N(tt, g[0])
                    for j in range(4):
                        tl.N(tt + 1 + j, g[1 + j])
                    tl.N(tt + 4, g[5])
                    tt += 5
            if stash:
                def wq2(c, tt):
                    tl.N(tt, set_m0(S_LV, (c % 4) * 16384))
                    for j in range(4):
                        tl.N(tt + 1 + j, dma(vWd + j, sWQ, s(S_WQOFF), 1024 * j, False, ("wq2", c)))
                    wa = wq_advance()
                    tl.N(tt + 5, wa[0]); tl.N(tt + 6, wa[1]); tl.N(tt + 6, wa[2])
                if n == 16:
                    su = [salu(f"s_mov_b32 {s(S_BQ)}, {s(S_B0)}")] + task_setup_q()
                    for k_, ins in enumerate(su):
                        tl.N(T + 79, ins)
                if n == 17:
                    wq2(0, T + 39)
                    tl.N(T + 46, salu(f"s_add_u32 {s(S_T1)}, {s(S_XOFF)}, 128"))
                    g = x_dma(1, set_m0(S_XW0, 0), soff=S_T1, tg="x2")
                    tl.N(T + 47, g[0])
                    for j in range(4):
                        tl.N(T + 48 + j, g[1 + j])
                    tl.N(T + 51, g[5])
                    tl.N(T + 52, g[6])
                if n == 18: wq2(1, T + 39)
                if n == 19: wq2(2, T + 39)
    pre = tl.stream(-II + 24, 0, fill_nop=False)
    chunks = [tl.stream(c * II, (c + 1) * II) for c in range(NCH)]
    return pre, chunks


def q_convert():
    out = []
    for qt in range(5):
        for st in range(4):
            t0 = vT + ((qt * 4 + st) % 2) * 8
            for odd in range(2):
                src = Of(2 * st + odd, qt)
                for j in range(4):
                    out.append(valu(f"v_accvgpr_read_b32 v{t0 + odd*4 + j}, a{src.b + j}", [f"a{src.b+j}"], [f"v{t0+odd*4+j}"]))
            for p in range(4):
                r = t0 + 2 * p
                out.append(valu(f"v_pk_mul_f32 v[{r}:{r+1}], v[{r}:{r+1}], s[{S_C}:{S_C+1}]", [f"v{r}", f"v{r+1}"], [f"v{r}", f"v{r+1}"]))
            q = Qf(qt, st)
            for p in range(4):
                out.append(valu(f"v_cvt_pk_bf16_f32 v{q.b + p}, v{t0 + 2*p}, v{t0 + 2*p + 1}", [f"v{t0+2*p}", f"v{t0+2*p+1}"], [f"v{q.b+p}"]))
    return out


WINPAR = 0
WIN2 = 63
def win_wait(e, k):
    n_ = WIN if (k == 0 or WIN2 is None) else WIN2
    if n_ >= 63: return []
    w = I(f"s_waitcnt vmcnt({n_})", "wait", info="fixed")
    if WINPAR is None: return [w]
    return [I("s_cbranch_vccz 1", "branch"), w]

def a_phase(next_task_loads):
    II = 80
    tl = Timeline()
    NE = 32
    simple = [0,1,2,7,8,9] + list(range(10, 20)) + [24,25,26,31,32,33,38,39,40,45,46,47,52,53,54,59,60,61,66,67,68,73,74,75]
    kt0_reads = [66, 67, 68, 73]
    kt1_reads = [74, 75, 80, 81]
    dma_t = [int(x) for x in os.environ.get('ADMA', '82,87,88,89,90,91,92,93').split(',')]
    v_reads = [94,95,96,97,98,99,104,105,106,111,112,113,118,119,120,125]
    for e in range(-1, NE + 1):
        T = e * II
        if 0 <= e < NE:
            for t in range(40):
                kt, st, qt = t // 20, (t % 20) // 5, t % 5
                tl.mfma(T + t, mfma16(Sf(kt, qt), KF(kt, st), Qf(qt, st), 0 if st == 0 else Sf(kt, qt)))
        if 1 <= e <= NE:
            for t in range(40):
                dt, qt = t // 5, t % 5
                tl.mfma(T + 40 + t, mfma16(Of(dt, qt), VF(dt), Pf((e - 1) & 1, qt), 0 if e == 1 else Of(dt, qt)))
        if 0 <= e < NE:
            for kt in range(2):
                t = T + 20 + 35 * kt
                for qt in range(5):
                    S = Sf(kt, qt); P = Pf(e & 1, qt)
                    for j in range(4):
                        r = f"v{S.b + j}"
                        tl.Vv(t + j, valu(f"v_exp_f32 {r}, {r}", [r], [r], trans=True))
                    L = f"v{vL + qt}"
                    for j in range(4):
                        r = f"v{S.b + j}"
                        if e == 0 and kt == 0 and j == 0:
                            tl.Vv(t + 4, valu(f"v_mov_b32 {L}, {r}", [r], [L]))
                        else:
                            tl.Vv(t + 4 + j // 2, valu(f"v_add_f32 {L}, {L}, {r}", [L, r], [L]))
                    for jj in range(2):
                        d = f"v{P.b + 2*kt + jj}"
                        tl.Vv(t + 6, valu(f"v_cvt_pk_bf16_f32 {d}, v{S.b + 2*jj}, v{S.b + 2*jj + 1}", [f"v{S.b+2*jj}", f"v{S.b+2*jj+1}"], [d]))
                    t += 7
        n = e + 1
        if n <= NE:
            if e >= 0:
                tags = []
                if n < NE: tags.append(("K", n))
                tags.append(("V", e))
                tl.N(T + 63, lgkm0())
                tl.N(T + 64, vmwait(tags, cap=(0 if e == 31 else None)))
                tl.N(T + 65, barrier())
            if n < NE:
                slot = n % 4
                for st in range(4):
                    tl.N(T + kt0_reads[st], ds_read("ds_read_b128", KF(0, st), V(vKr + st), slot * 16384))
                    tl.N(T + kt1_reads[st], ds_read("ds_read_b128", KF(1, st), V(vKr + st), slot * 16384 + 4096))
            if 0 <= e < NE:
                slot = e % 4
                for dt in range(8):
                    for u in range(2):
                        tl.N(T + v_reads[2 * dt + u], ds_read("ds_read_b64_tr_b16", VF(dt).sub(2 * u, 2), V(vVr + dt), slot * 16384 + u * 4096))
            if 0 <= e <= 29:
                kn, vn = e + 4, e + 3
                if WIN is not None:
                    for x_ in win_wait(e, 0): tl.N(T + 79, x_)
                tl.N(T + 79, set_m0(S_LK, (kn % 4) * 16384))
                for j in range(4):
                    tl.N(T + dma_t[j], dma(vKd + j, sK, s(S_KOFF), 1024 * j, True, ("K", kn)))
                tl.N(T + max(dma_t[3], dma_t[4] - 1), set_m0(S_LV, (vn % 4) * 16384))
                if WIN is not None:
                    for x_ in win_wait(e, 1): tl.N(T + max(dma_t[3], dma_t[4] - 1), x_)
                for j in range(4):
                    tl.N(T + dma_t[4 + j], dma(vVd + (j & 1), sV, s(S_VOFF), 1024 * j, True, ("V", vn)))
                tl.N(T + max(100, dma_t[3] + 1), salu(f"s_add_u32 {s(S_KOFF)}, {s(S_KOFF)}, 8192"))
                tl.N(T + max(101, dma_t[7] + 1), salu(f"s_add_u32 {s(S_VOFF)}, {s(S_VOFF)}, 8192"))
            if e == 31:
                for k, ins in enumerate(next_task_loads):
                    tl.N(T + 66, ins)
    pre = tl.stream(-II + 63, 0, fill_nop=False)
    ep = [tl.stream(e * II, (e + 1) * II, fill_nop=(0 < e < NE)) for e in range(NE + 1)]
    return pre, ep


def o_epilogue():
    out = []
    t = vT
    for qt in range(5):
        L = vL + qt
        a_, b_ = t + 2 * qt, t + 2 * qt + 1
        out.append(valu(f"v_mov_b32 v{a_}, v{L}", [f"v{L}"], [f"v{a_}"]))
        out.append(valu(f"v_mov_b32 v{b_}, v{L}", [f"v{L}"], [f"v{b_}"]))
    out.append(nop(1))
    for qt in range(5):
        a_, b_ = t + 2 * qt, t + 2 * qt + 1
        out.append(valu(f"v_permlane32_swap_b32 v{a_}, v{b_}", [f"v{a_}", f"v{b_}"], [f"v{a_}", f"v{b_}"]))
    out.append(nop(1))
    for qt in range(5):
        a_, b_ = t + 2 * qt, t + 2 * qt + 1
        out.append(valu(f"v_add_f32 v{a_}, v{a_}, v{b_}", [f"v{a_}", f"v{b_}"], [f"v{a_}"]))
    for qt in range(5):
        a_, b_ = t + 2 * qt, t + 2 * qt + 1
        out.append(valu(f"v_mov_b32 v{b_}, v{a_}", [f"v{a_}"], [f"v{b_}"]))
    out.append(nop(1))
    for qt in range(5):
        a_, b_ = t + 2 * qt, t + 2 * qt + 1
        out.append(valu(f"v_permlane16_swap_b32 v{a_}, v{b_}", [f"v{a_}", f"v{b_}"], [f"v{a_}", f"v{b_}"]))
    out.append(nop(1))
    for qt in range(5):
        a_, b_ = t + 2 * qt, t + 2 * qt + 1
        L = vL + qt
        out.append(valu(f"v_add_f32 v{L}, v{a_}, v{b_}", [f"v{a_}", f"v{b_}"], [f"v{L}"]))
    return out

def o_store():
    out = []
    t = vT
    for qt in range(5):
        L = vL + qt
        r = t + 2 * qt
        out.append(valu(f"v_rcp_f32 v{r}, v{L}", [f"v{L}"], [f"v{r}"], trans=True))
    out.append(nop(0))
    for qt in range(5):
        r = t + 2 * qt
        out.append(valu(f"v_mov_b32 v{r+1}, v{r}", [f"v{r}"], [f"v{r+1}"]))
    base = t + 10
    k = 0
    for qt in range(5):
        inv = t + 2 * qt
        for vv in range(4):
            t0 = base + 2 + (k % 2) * 12
            t0 = vS + (k % 3) * 12
            for odd in range(2):
                src = Of(2 * vv + odd, qt)
                for j in range(4):
                    out.append(valu(f"v_accvgpr_read_b32 v{t0 + odd*4 + j}, a{src.b + j}", [f"a{src.b+j}"], [f"v{t0+odd*4+j}"]))
            for p in range(4):
                r = t0 + 2 * p
                out.append(valu(f"v_pk_mul_f32 v[{r}:{r+1}], v[{r}:{r+1}], v[{inv}:{inv+1}]", [f"v{r}", f"v{r+1}", f"v{inv}", f"v{inv+1}"], [f"v{r}", f"v{r+1}"]))
            d = t0 + 8
            for p in range(4):
                out.append(valu(f"v_cvt_pk_bf16_f32 v{d + p}, v{t0 + 2*p}, v{t0 + 2*p + 1}", [f"v{t0+2*p}", f"v{t0+2*p+1}"], [f"v{d+p}"]))
            out.append(salu(f"s_add_u32 {s(S_T0)}, {s(S_OOFF)}, {qt*131072 + vv*1024}"))
            out.append(I(f"buffer_store_dwordx4 v[{d}:{d+3}], v{vOst}, {srd(sO)}, {s(S_T0)} offen{' ' + OST if OST else ''}", "vmem", regs("v", d, 4) + [f"v{vOst}"], [], tag=("O", k)))
            k += 1
    return out


def xlane_reduce(regs5, op):
    out = []
    t = vT
    for qt in range(5):
        L = regs5 + qt
        a_, b_ = t + 2 * qt, t + 2 * qt + 1
        out.append(valu(f"v_mov_b32 v{a_}, v{L}", [f"v{L}"], [f"v{a_}"]))
        out.append(valu(f"v_mov_b32 v{b_}, v{L}", [f"v{L}"], [f"v{b_}"]))
    for qt in range(5):
        a_, b_ = t + 2 * qt, t + 2 * qt + 1
        out.append(valu(f"v_permlane32_swap_b32 v{a_}, v{b_}", [f"v{a_}", f"v{b_}"], [f"v{a_}", f"v{b_}"]))
    for qt in range(5):
        a_, b_ = t + 2 * qt, t + 2 * qt + 1
        out.append(valu(f"{op} v{a_}, v{a_}, v{b_}", [f"v{a_}", f"v{b_}"], [f"v{a_}"]))
    for qt in range(5):
        a_, b_ = t + 2 * qt, t + 2 * qt + 1
        out.append(valu(f"v_mov_b32 v{b_}, v{a_}", [f"v{a_}"], [f"v{b_}"]))
    for qt in range(5):
        a_, b_ = t + 2 * qt, t + 2 * qt + 1
        out.append(valu(f"v_permlane16_swap_b32 v{a_}, v{b_}", [f"v{a_}", f"v{b_}"], [f"v{a_}", f"v{b_}"]))
    for qt in range(5):
        a_, b_ = t + 2 * qt, t + 2 * qt + 1
        L = regs5 + qt
        out.append(valu(f"{op} v{L}, v{a_}, v{b_}", [f"v{a_}", f"v{b_}"], [f"v{L}"]))
    return out

def range_flag():
    o = []
    t = vS + 36
    o.append(salu(f"s_mov_b32 {s(S_T0)}, {fbits(L_LO):#x}"))
    o.append(salu(f"s_mov_b32 {s(S_T1)}, {fbits(L_HI):#x}"))
    o.append(valu(f"v_mov_b32 v{t+1}, {s(S_T1)}", [], [f"v{t+1}"]))
    o.append(salu("s_mov_b64 s[74:75], 0"))
    for qt in range(5):
        L = vL + qt
        o.append(valu(f"v_med3_f32 v{t}, v{L}, {s(S_T0)}, v{t+1}", [f"v{L}", f"v{t+1}"], [f"v{t}"]))
        o.append(valu(f"v_cmp_neq_f32 vcc, v{t}, v{L}", [f"v{t}", f"v{L}"], ["vcc"]))
        o.append(nop(1))
        o.append(salu("s_or_b64 s[74:75], s[74:75], vcc"))
    o.append(salu("s_cmp_lg_u64 s[74:75], 0"))
    o.append(salu(f"s_cselect_b32 {s(S_T0)}, 1, 0"))
    o.append(salu(f"s_lshl_b32 {s(S_T1)}, {s(S_W)}, 2"))
    o.append(salu(f"s_add_u32 {s(S_T1)}, {s(S_T1)}, {FLAGS}"))
    o.append(valu(f"v_mov_b32 v{t}, {s(S_T0)}", [], [f"v{t}"]))
    o.append(valu(f"v_mov_b32 v{t+1}, {s(S_T1)}", [], [f"v{t+1}"]))
    o.append(I(f"ds_write_b32 v{t+1}, v{t}", "lds", [f"v{t}", f"v{t+1}"], []))
    return o

def range_check():
    t = vS
    return [lgkm0(), barrier(),
            valu(f"v_mov_b32 v{t}, {FLAGS}", [], [f"v{t}"]),
            I(f"ds_read_b128 v[{t+2}:{t+5}], v{t}", "lds", [f"v{t}"], regs("v", t + 2, 4)),
            lgkm0(),
            valu(f"v_or3_b32 v{t}, v{t+2}, v{t+3}, v{t+4}", regs("v", t + 2, 3), [f"v{t}"]),
            valu(f"v_or_b32 v{t}, v{t}, v{t+5}", [f"v{t}", f"v{t+5}"], [f"v{t}"]),
            nop(0),
            valu(f"v_readfirstlane_b32 {s(S_T0)}, v{t}", [f"v{t}"], [s(S_T0)]),
            nop(3)]

def fallback():
    vFK, vFV, vM = vP + 20, vP + 24, vP + 32
    def kdma():
        o = [salu(f"s_add_u32 m0, {s(S_LK)}, {XR}", [], ["m0"]), nop(0)]
        for j in range(4): o.append(dma(vKd + j, sK, s(S_FOFF), 1024 * j, False, ("fb", 0)))
        return o
    def vdma():
        o = [salu(f"s_add_u32 m0, {s(S_LK)}, {XR + 16384}", [], ["m0"]), nop(0)]
        for j in range(4): o.append(dma(vVd + (j & 1), sV, s(S_FOFF), 1024 * j, False, ("fb", 1)))
        return o
    def foff_init():
        return [salu(f"s_lshl_b32 {s(S_T0)}, {s(S_HALF)}, 12"), salu(f"s_add_u32 {s(S_FOFF)}, {s(S_HOFF)}, {s(S_T0)}"),
                salu(f"s_mov_b32 {s(S_CNT)}, 32")]
    def qk():
        o = []
        for kt in range(2):
            for st in range(4):
                o.append(ds_read("ds_read_b128", KF(kt, st), V(vFK + st), kt * 4096))
        o.append(lgkm0())
        for t in range(40):
            kt, st, qt = t // 20, (t % 20) // 5, t % 5
            o.append(mfma16(Sf(kt, qt), KF(kt, st), Qf(qt, st), 0 if st == 0 else Sf(kt, qt)))
        return o
    wait0 = lambda: [I("s_waitcnt vmcnt(0)", "wait", info="fixed"), barrier()]
    pre = []
    for st in range(4): pre.append(valu(f"v_add_u32 v{vFK+st}, {XR}, v{vKr+st}", [f"v{vKr+st}"], [f"v{vFK+st}"]))
    for dt in range(8): pre.append(valu(f"v_add_u32 v{vFV+dt}, {XR + 16384 - VR}, v{vVr+dt}", [f"v{vVr+dt}"], [f"v{vFV+dt}"]))
    for qt in range(5): pre.append(valu(f"v_mov_b32 v{vM+qt}, 0xff800000", [], [f"v{vM+qt}"]))
    pre += foff_init()
    p1 = kdma() + wait0() + qk()
    for qt in range(5):
        for kt in range(2):
            S_ = Sf(kt, qt)
            for jj in range(2):
                m = f"v{vM+qt}"
                p1.append(valu(f"v_max3_f32 {m}, {m}, v{S_.b+2*jj}, v{S_.b+2*jj+1}", [m, f"v{S_.b+2*jj}", f"v{S_.b+2*jj+1}"], [m]))
    p1 += [barrier(), salu(f"s_add_u32 {s(S_FOFF)}, {s(S_FOFF)}, 8192")]
    mid = xlane_reduce(vM, "v_max_f32")
    for k in range(160): mid.append(valu(f"v_accvgpr_write_b32 a{aO+k}, 0", [], [f"a{aO+k}"]))
    for qt in range(5): mid.append(valu(f"v_mov_b32 v{vL+qt}, 0", [], [f"v{vL+qt}"]))
    mid += foff_init()
    p2 = kdma() + vdma() + wait0() + qk()
    for kt in range(2):
        for qt in range(5):
            S_ = Sf(kt, qt); P_ = Pf(0, qt); L = f"v{vL+qt}"; m = f"v{vM+qt}"
            for j in range(4):
                r = f"v{S_.b+j}"
                p2.append(valu(f"v_sub_f32 {r}, {r}, {m}", [r, m], [r]))
            for j in range(4):
                r = f"v{S_.b+j}"
                p2.append(valu(f"v_exp_f32 {r}, {r}", [r], [r], trans=True))
            for j in range(4):
                r = f"v{S_.b+j}"
                p2.append(valu(f"v_add_f32 {L}, {L}, {r}", [L, r], [L]))
            for jj in range(2):
                d = f"v{P_.b+2*kt+jj}"
                p2.append(valu(f"v_cvt_pk_bf16_f32 {d}, v{S_.b+2*jj}, v{S_.b+2*jj+1}", [f"v{S_.b+2*jj}", f"v{S_.b+2*jj+1}"], [d]))
    for dt in range(8):
        for u in range(2):
            p2.append(ds_read("ds_read_b64_tr_b16", VF(dt).sub(2 * u, 2), V(vFV + dt), u * 4096))
        if dt == 3: p2.append(lgkm0())
    p2.append(lgkm0())
    for t in range(40):
        dt, qt = t // 5, t % 5
        p2.append(mfma16(Of(dt, qt), VF(dt), Pf(0, qt), Of(dt, qt)))
    p2 += [barrier(), salu(f"s_add_u32 {s(S_FOFF)}, {s(S_FOFF)}, 8192")]
    return [("fb_pre", pre), ("fb_p1", p1), ("fb_mid", mid), ("fb_p2", p2)]


def pace_code():
    if not PACE: return []
    L = []
    a = lambda t: L.append("    " + t)
    a(f"s_cmp_lg_u32 {s(S_W)}, 0"); a("s_cbranch_scc1 L1_pace_end")
    a(f"s_mov_b32 {s(S_PN)}, {PACE_SPINS}")
    L.append("L1_pace:")
    for x in range(8):
        a(f"v_readlane_b32 s{60+x}, v5, {x}")
    a(f"v_readlane_b32 {s(S_PT0)}, v5, {s(S_XCC)}")
    a("s_nop 2")
    a("s_add_u32 s60, s60, s61"); a("s_add_u32 s62, s62, s63"); a("s_add_u32 s64, s64, s65"); a("s_add_u32 s66, s66, s67")
    a("s_add_u32 s60, s60, s62"); a("s_add_u32 s64, s64, s66"); a("s_add_u32 s60, s60, s64")
    a(f"s_lshl_b32 {s(S_PT0)}, {s(S_PT0)}, 3")
    a(f"s_add_u32 s60, s60, {PACE_DELTA}")
    a(f"s_cmp_le_u32 {s(S_PT0)}, s60"); a("s_cbranch_scc1 L1_pace_go")
    a(f"s_sub_u32 {s(S_PN)}, {s(S_PN)}, 1"); a(f"s_cmp_eq_u32 {s(S_PN)}, 0"); a("s_cbranch_scc1 L1_pace_go")
    a(f"buffer_load_dword v5, v6, {srd(sDBG)}, 0 offen sc1")
    a("s_waitcnt vmcnt(0)")
    a("s_branch L1_pace")
    L.append("L1_pace_go:")
    a(f"buffer_atomic_add v8, v7, {srd(sDBG)}, 0 offen sc1")
    a(f"buffer_load_dword v5, v6, {srd(sDBG)}, 0 offen sc1")
    L.append("L1_pace_end:")
    return L


def k1_prologue():
    L = []
    a = L.append
    a("s_cmp_ge_u32 s2, 256")
    a("s_cbranch_scc1 L1_done")
    a("s_load_dwordx8 s[52:59], s[0:1], 0")
    a("s_load_dwordx8 s[60:67], s[0:1], 40")
    a("s_load_dwordx2 s[4:5], s[0:1], 96")
    if PACE: a("s_load_dwordx2 s[92:93], s[0:1], 88")
    a("s_load_dwordx2 s[84:85], s[0:1], 32")
    a("s_load_dwordx2 s[86:87], s[0:1], 72")
    a("v_lshrrev_b32 v1, 6, v0")
    a("v_and_b32 v2, 63, v0")
    a(f"v_readfirstlane_b32 {s(S_W)}, v1")
    a("s_and_b32 s3, s2, 7")
    a("s_lshr_b32 s6, s2, 3")
    a(f"s_lshr_b32 {s(S_HSEL)}, {s(S_W)}, 1")
    a(f"s_and_b32 {s(S_HALF)}, {s(S_W)}, 1")
    a(f"s_lshr_b32 {s(S_B0)}, s6, 2")
    a("s_and_b32 s6, s6, 3")
    a(f"s_mov_b32 {s(S_PAIR)}, s6")
    if ROT:
        a(f"s_lshr_b32 s7, {s(S_B0)}, 2"); a(f"s_add_u32 s7, s7, {s(S_B0)}"); a("s_lshl_b32 s7, s7, 1")
        a(f"s_mul_i32 {s(S_ROT)}, s6, 5"); a(f"s_add_u32 s7, s7, {s(S_ROT)}")
        a(f"s_and_b32 {s(S_ROT)}, s6, 1"); a(f"s_sub_u32 s7, s7, {s(S_ROT)}")
        a("s_sub_u32 s3, s7, 20"); a("s_cmp_ge_u32 s7, 20"); a(f"s_cselect_b32 {s(S_ROT)}, s3, s7")
        a("s_and_b32 s3, s2, 7")
    else:
        a(f"s_mov_b32 {s(S_ROT)}, 0")
    if MAP2:
        a("s_lshr_b32 s7, s3, 1")
    else:
        a("s_and_b32 s7, s3, 3")
    a("s_lshl_b32 s7, s7, 3")
    a("s_lshl_b32 s6, s6, 1")
    a("s_add_u32 s7, s7, s6")
    a(f"s_add_u32 {s(S_H)}, s7, {s(S_HSEL)}")
    if MAP2:
        a("s_and_b32 s3, s3, 1")
    else:
        a("s_lshr_b32 s3, s3, 2")
    a(f"s_mov_b32 {s(S_T3)}, s3")
    a("s_waitcnt lgkmcnt(0)")
    a("s_cmp_eq_u32 s3, 0")
    for k in range(8):
        a(f"s_cselect_b32 s{52+k}, s{52+k}, s{60+k}")
    def mk(n, lo, hi, size):
        a(f"s_mov_b32 s{n}, s{lo}")
        a(f"s_and_b32 s{n+1}, s{hi}, 0xffff")
        a(f"s_mov_b32 s{n+2}, {size}")
        a(f"s_mov_b32 s{n+3}, 0x20000")
    mk(sX, 52, 53, 16 * 160 * 1280)
    mk(sK, 54, 55, 0x8000000)
    mk(sV, 56, 57, 0x8000000)
    mk(sWQ, 58, 59, 640 * 8192)
    mk(sO, 4, 5, WS_USED)
    a("s_cmp_lt_u32 s2, 128")
    a("s_cselect_b32 s84, s84, s86")
    a("s_cselect_b32 s85, s85, s87")
    mk(sWO, 84, 85, 4096 * 1280)
    if PACE: mk(sDBG, 92, 93, 256)
    c = math.log2(math.e) / math.sqrt(128.0)
    a(f"s_mov_b32 s{S_C}, {fbits(c):#x}")
    a(f"s_mov_b32 s{S_C+1}, {fbits(c):#x}")
    a(f"s_lshl_b32 s6, {s(S_HSEL)}, 13")
    a(f"s_lshl_b32 s7, {s(S_HALF)}, 12")
    a(f"s_add_u32 {s(S_LK)}, s6, s7")
    a(f"s_add_u32 {s(S_LV)}, {s(S_LK)}, {VR}")
    a(f"s_mul_i32 {s(S_XW0)}, {s(S_W)}, 5120")
    a(f"s_add_u32 {s(S_XWEND)}, {s(S_XW0)}, {3*XSLOT}")
    a("v_and_b32 v3, 15, v2")
    a("v_lshrrev_b32 v4, 4, v2")
    a(f"s_lshl_b32 s6, {s(S_HSEL)}, 13")
    a("v_lshlrev_b32 v8, 2, v4")
    a("v_xor_b32 v8, v8, v3")
    a("v_lshlrev_b32 v8, 4, v8")
    a("v_lshl_add_u32 v8, v4, 13, v8")
    for j in range(4):
        a(f"v_add_u32 v{vWd+j}, {j*31744}, v8")
    a("v_lshrrev_b32 v9, 3, v2")
    a("v_mul_u32_u24 v9, 1280, v9")
    a("v_and_b32 v10, 7, v2")
    for j in range(5):
        a(f"s_add_u32 s7, {s(S_W)}, {j}")
        a("s_and_b32 s7, s7, 1")
        a("s_lshl_b32 s7, s7, 2")
        a("v_add_u32 v8, s7, v4")
        a("v_xor_b32 v8, v8, v10")
        a("v_lshlrev_b32 v8, 4, v8")
        a(f"v_add3_u32 v{vXd+j}, v8, v9, {0}") if False else None
        a(f"s_mov_b32 s7, {8*j*1280 - (1024*j if j < 4 else 0)}")
        a(f"v_add3_u32 v{vXd+j}, v8, v9, s7")
    if XY:
        a(f"s_getreg_b32 {s(S_TYPE)}, hwreg(HW_REG_XCC_ID)")
        a(f"s_and_b32 {s(S_TYPE)}, {s(S_TYPE)}, 1")
        if XSEL == "even":
            a(f"s_xor_b32 {s(S_TYPE)}, {s(S_TYPE)}, 1")
        elif XSEL == "slot":
            a(f"s_lshr_b32 {s(S_TYPE)}, s2, 5"); a(f"s_and_b32 {s(S_TYPE)}, {s(S_TYPE)}, 1")
        elif XSEL == "all":
            a(f"s_mov_b32 {s(S_TYPE)}, 1")
    else:
        a(f"s_mov_b32 {s(S_TYPE)}, 0")
    import os
    if os.environ.get("K1XEXIT"):
        a(f"s_cmp_eq_u32 {s(S_TYPE)}, 1"); a("s_cbranch_scc1 L1_done")
    if os.environ.get("K1BURN"):
        a(f"s_mov_b32 s6, {int(os.environ['K1BURN'])}")
        for i_ in range(64): a(f"v_mov_b32 v{96+i_}, v{176+i_%30}")
        L.append("L1_burn:")
        for i_ in range(64):
            c_ = 4 * (i_ % 32)
            a(f"v_mfma_f32_16x16x32_bf16 a[{c_}:{c_+3}], v[{96+4*(i_%8)}:{99+4*(i_%8)}], v[{128+4*(i_%7)}:{131+4*(i_%7)}], a[{c_}:{c_+3}]")
        a("s_sub_u32 s6, s6, 1"); a("s_cmp_lg_u32 s6, 0"); a("s_cbranch_scc1 L1_burn")
    if os.environ.get("K1DELAY"):
        n_ = int(os.environ["K1DELAY"])
        a("s_lshr_b32 s6, s2, 5"); a("s_and_b32 s6, s6, 1"); a("s_cmp_eq_u32 s6, 0"); a("s_cbranch_scc1 L1_nodelay")
        for _ in range(n_): a("s_sleep 127")
        L.append("L1_nodelay:")
    a(f"s_mov_b32 {s(S_PASS)}, {s(S_TYPE)}")
    a(f"s_mov_b32 {s(S_ADONE)}, 0")
    a(f"s_mov_b32 {s(S_BA)}, {s(S_B0)}")
    a(f"s_add_u32 {s(S_B8)}, {s(S_B0)}, 8")
    a(f"s_cmp_eq_u32 {s(S_TYPE)}, 1")
    a(f"s_cselect_b32 {s(S_BQ)}, {s(S_B8)}, {s(S_B0)}")
    a(f"s_mul_i32 s6, s2, 81920"); a(f"s_mul_i32 s7, {s(S_W)}, 20480"); a("s_add_u32 s6, s6, s7")
    a(f"s_add_u32 {s(S_QS)}, s6, {QS_BASE}")
    L.append("@@SPLIT")
    a(f"s_lshl_b32 s6, {s(S_HSEL)}, 13")
    a("v_xor_b32 v5, v4, v3")
    a("v_lshlrev_b32 v5, 4, v5")
    a("v_lshlrev_b32 v6, 8, v3")
    a("v_add3_u32 v5, v5, v6, s6")
    for st in range(4):
        a(f"v_xor_b32 v{vKr+st}, {st << 6}, v5")
    a("v_lshrrev_b32 v6, 2, v3")
    a("v_and_b32 v7, 3, v3")
    a("v_lshl_add_u32 v8, v4, 2, v6")
    a("v_and_b32 v9, 7, v8")
    a("v_lshlrev_b32 v9, 1, v9")
    a("v_lshrrev_b32 v10, 1, v7")
    a("v_xor_b32 v9, v9, v10")
    a("v_lshlrev_b32 v9, 4, v9")
    a("v_and_b32 v10, 1, v7")
    a("v_lshlrev_b32 v10, 3, v10")
    a("v_lshlrev_b32 v8, 8, v8")
    a("v_add3_u32 v9, v9, v10, v8")
    a(f"s_add_u32 s7, s6, {VR}")
    a("v_add_u32 v9, s7, v9")
    for dt in range(8):
        a(f"v_xor_b32 v{vVr+dt}, {dt << 5}, v9")
    a("v_lshl_add_u32 v8, v4, 3, v6")
    a("v_lshlrev_b32 v8, 8, v8")
    a("v_lshlrev_b32 v9, 2, v6")
    a("v_xor_b32 v9, v9, v7")
    a("v_lshlrev_b32 v9, 4, v9")
    a("v_add3_u32 v9, v9, v8, s7")
    for st in range(4):
        a(f"v_xor_b32 v{vWr+st}, {st << 6}, v9")
    a("v_lshrrev_b32 v8, 1, v3")
    a("v_xor_b32 v8, v8, v4")
    a("v_lshlrev_b32 v8, 4, v8")
    a("v_lshlrev_b32 v9, 7, v3")
    a(f"s_mul_i32 s7, {s(S_HALF)}, {80*128}")
    a(f"v_add3_u32 v{vXpat}, v8, v9, s7")
    a(f"v_xor_b32 v{vXpat+1}, 64, v{vXpat}")
    a("v_xor_b32 v8, v3, v4")
    a("v_lshlrev_b32 v8, 4, v8")
    a("v_lshl_add_u32 v8, v4, 8, v8")
    for j in range(4):
        a(f"v_xor_b32 v{vKd+j}, {j << 6}, v8")
    a("v_lshlrev_b32 v8, 1, v4")
    a("v_xor_b32 v8, v8, v3")
    a("v_lshlrev_b32 v8, 4, v8")
    a("v_lshl_add_u32 v8, v4, 8, v8")
    a(f"v_mov_b32 v{vVd}, v8")
    a(f"v_xor_b32 v{vVd+1}, {8 << 4}, v8")
    a(f"v_lshlrev_b32 v{vOst}, 4, v2")
    a(f"v_lshlrev_b32 v{vPfX}, 7, v2")
    a("v_lshrrev_b32 v8, 2, v2"); a("v_lshlrev_b32 v8, 13, v8"); a("v_and_b32 v9, 3, v2"); a("v_lshlrev_b32 v9, 7, v9")
    a(f"v_add_u32 v{vPfW}, v8, v9")
    a("v_mov_b32 v9, 0x7ff00000")
    a(f"v_add_u32 v8, 8192, v{vPfX}"); a("v_cmp_gt_u32 vcc, 36, v2"); a("s_nop 1"); a(f"v_cndmask_b32 v{vPfX2}, v9, v8, vcc")
    a(f"v_add_u32 v8, {16*8192}, v{vPfW}"); a("v_cmp_gt_u32 vcc, 16, v2"); a("s_nop 1"); a(f"v_cndmask_b32 v{vPfW2}, v9, v8, vcc")
    a(f"s_getreg_b32 {s(S_XCC)}, hwreg(HW_REG_XCC_ID)")
    a(f"s_and_b32 {s(S_XCC)}, {s(S_XCC)}, 7")
    if PACE:
        a("v_mov_b32 v5, 0"); a("v_mov_b32 v8, 1")
        a("v_lshlrev_b32 v6, 5, v2"); a("v_mov_b32 v9, 0x1000")
        a("v_cmp_gt_u32 vcc, 8, v2"); a("s_nop 1"); a("v_cndmask_b32 v6, v9, v6, vcc")
        a(f"s_lshl_b32 s6, {s(S_XCC)}, 5"); a("v_mov_b32 v7, s6")
        a("v_cmp_eq_u32 vcc, 0, v2"); a("s_nop 1"); a("v_cndmask_b32 v7, v9, v7, vcc")
    return L


def task_setup_q():
    o = []
    o.append(salu(f"s_mul_i32 {s(S_T0)}, {s(S_BQ)}, 160"))
    o.append(salu(f"s_mul_i32 {s(S_T1)}, {s(S_W)}, 40"))
    o.append(salu(f"s_add_u32 {s(S_T0)}, {s(S_T0)}, {s(S_T1)}"))
    o.append(salu(f"s_mul_i32 {s(S_XST)}, {s(S_T0)}, 1280"))
    o.append(salu(f"s_add_u32 {s(S_XEND)}, {s(S_XST)}, 1280"))
    o.append(salu(f"s_lshl_b32 {s(S_T0)}, {s(S_ROT)}, 6"))
    o.append(salu(f"s_add_u32 {s(S_XOFF)}, {s(S_XST)}, {s(S_T0)}"))
    o.append(salu(f"s_lshl_b32 {s(S_T0)}, {s(S_HALF)}, 17"))
    o.append(salu(f"s_lshl_b32 {s(S_T1)}, {s(S_H)}, 8"))
    o.append(salu(f"s_add_u32 {s(S_WQST)}, {s(S_T0)}, {s(S_T1)}"))
    o.append(salu(f"s_add_u32 {s(S_WQEND)}, {s(S_WQST)}, {640*8192}"))
    o.append(salu(f"s_lshl_b32 {s(S_T0)}, {s(S_ROT)}, 18"))
    o.append(salu(f"s_add_u32 {s(S_WQOFF)}, {s(S_WQST)}, {s(S_T0)}"))
    if PF:
        o.append(salu(f"s_mul_i32 {s(S_T0)}, {s(S_BQ)}, 160"))
        o.append(salu(f"s_mul_i32 {s(S_T1)}, {s(S_PAIR)}, 40"))
        o.append(salu(f"s_add_u32 {s(S_T0)}, {s(S_T0)}, {s(S_T1)}"))
        o.append(salu(f"s_mul_i32 {s(S_T0)}, {s(S_T0)}, 1280"))
        o.append(salu(f"s_mul_i32 {s(S_T1)}, {s(S_W)}, 12800"))
        o.append(salu(f"s_add_u32 {s(S_PFX)}, {s(S_T0)}, {s(S_T1)}"))
        o.append(salu(f"s_mul_i32 {s(S_T0)}, {s(S_B0)}, 80"))
        o.append(salu(f"s_mul_i32 {s(S_T1)}, {s(S_W)}, 20"))
        o.append(salu(f"s_add_u32 {s(S_T0)}, {s(S_T0)}, {s(S_T1)}"))
        o.append(salu(f"s_lshl_b32 {s(S_T0)}, {s(S_T0)}, 13"))
        o.append(salu(f"s_sub_u32 {s(S_T1)}, {s(S_H)}, {s(S_HSEL)}"))
        o.append(salu(f"s_lshl_b32 {s(S_T1)}, {s(S_T1)}, 8"))
        o.append(salu(f"s_add_u32 {s(S_PFW)}, {s(S_T0)}, {s(S_T1)}"))
    return o

def kv_stream(breg):
    o = []
    o.append(salu(f"s_lshl_b32 {s(S_T0)}, {s(breg)}, 5"))
    o.append(salu(f"s_add_u32 {s(S_T0)}, {s(S_T0)}, {s(S_H)}"))
    o.append(salu(f"s_lshl_b32 {s(S_HOFF)}, {s(S_T0)}, 18"))
    o.append(salu(f"s_add_u32 {s(sK+2)}, {s(S_HOFF)}, 262144"))
    o.append(salu(f"s_mov_b32 {s(sV+2)}, {s(sK+2)}"))
    o.append(salu(f"s_lshl_b32 {s(S_T0)}, {s(S_HALF)}, 12"))
    o.append(salu(f"s_add_u32 {s(S_KOFF)}, {s(S_HOFF)}, {s(S_T0)}"))
    o.append(salu(f"s_mov_b32 {s(S_VOFF)}, {s(S_KOFF)}"))
    return o

def kv_out(breg):
    o = []
    o.append(salu(f"s_lshl_b32 {s(S_T0)}, {s(S_T3)}, 4"))
    o.append(salu(f"s_add_u32 {s(S_T0)}, {s(S_T0)}, {s(breg)}"))
    o.append(salu(f"s_mul_i32 {s(S_T0)}, {s(S_T0)}, 10"))
    o.append(salu(f"s_mul_i32 {s(S_T1)}, {s(S_HALF)}, 5"))
    o.append(salu(f"s_add_u32 {s(S_T0)}, {s(S_T0)}, {s(S_T1)}"))
    o.append(salu(f"s_lshl_b32 {s(S_T0)}, {s(S_T0)}, 7"))
    o.append(salu(f"s_lshl_b32 {s(S_T1)}, {s(S_H)}, 2"))
    o.append(salu(f"s_add_u32 {s(S_T0)}, {s(S_T0)}, {s(S_T1)}"))
    o.append(salu(f"s_lshl_b32 {s(S_OOFF)}, {s(S_T0)}, 10"))
    return o

def q_stash(store):
    o = []
    o.append(salu(f"s_mov_b32 {s(S_T0)}, {s(S_QS)}"))
    for f in range(20):
        r = vQ + 4 * f
        off = f" offset:{1024 * (f % 4)}" if f % 4 else ""
        if store:
            o.append(I(f"buffer_store_dwordx4 v[{r}:{r+3}], v{vOst}, {srd(sO)}, {s(S_T0)} offen{off}", "vmem", regs("v", r, 4) + [f"v{vOst}"], [], tag=("qs", f)))
        else:
            o.append(I(f"buffer_load_dwordx4 v[{r}:{r+3}], v{vOst}, {srd(sO)}, {s(S_T0)} offen{off}", "vmem", [f"v{vOst}"], regs("v", r, 4), tag=("ql", f)))
        if f % 4 == 3 and f < 19:
            o.append(salu(f"s_add_u32 {s(S_T0)}, {s(S_T0)}, 4096"))
    return o


STAMP = False
def stamp(idx):
    if not STAMP: return []
    return ["    s_memtime s[74:75]", "    s_memrealtime s[76:77]", "    s_waitcnt lgkmcnt(0)",
            f"    s_lshl_b32 s78, {s(S_STK)}, 1",
            "    v_mbcnt_lo_u32_b32 v13, -1, 0", "    v_mbcnt_hi_u32_b32 v13, -1, v13",
            "    v_cmp_eq_u32 vcc, s78, v13", "    v_mov_b32 v14, s74", "    s_nop 1", "    v_cndmask_b32 v15, v15, v14, vcc",
            "    s_add_u32 s78, s78, 1",
            "    v_cmp_eq_u32 vcc, s78, v13", "    v_mov_b32 v14, s76", "    s_nop 1", "    v_cndmask_b32 v15, v15, v14, vcc",
            f"    v_cmp_eq_u32 vcc, {s(S_STK)}, v13", f"    v_mov_b32 v14, {idx}", "    s_nop 1", "    v_cndmask_b32 v11, v11, v14, vcc",
            f"    s_add_u32 {s(S_STK)}, {s(S_STK)}, 1"]

def same_text(a, b):
    return [x.text for x in a] == [x.text for x in b]


def process(named, name):
    tagged = []
    for nme, st in named:
        tagged.append(I(f"@@{nme}", "label"))
        tagged.extend(st)
    resolve_vm_waits(tagged, ignore=('pf', 'cv', 'next', 'qs', 'ql'))
    tagged = insert_lgkm_waits(tagged, lat=6)
    tagged, notes = check_hazards(tagged, name, fix=True)
    for e_ in notes[:40]:
        print("NOTE", e_, file=sys.stderr)
    errs = check_hazards(tagged, name)
    assert not errs, errs[:5]
    seg = {}
    cur = None
    for ins in tagged:
        if ins.kind == "label" and ins.text.startswith("@@"):
            cur = ins.text[2:]; seg[cur] = []
        else:
            seg[cur].append(ins)
    return seg

def with_nops(g):
    return g[:1] + [nop(0)] + g[1:]

def build_k1():
    import os
    lines = []
    pro = k1_prologue()
    isp = pro.index("@@SPLIT")
    lines += ["    " + x for x in pro[:isp]]
    pro2 = ["    " + x for x in pro[isp + 1:]]
    hookY = [salu(f"s_mov_b32 {s(S_BQ)}, {s(S_B8)}")] + task_setup_q() + q_groups_initial()
    hookX = kv_stream(S_B8) + q_stash(False)
    for kind, idx in (("K", 0), ("V", 0), ("V", 1), ("K", 1), ("V", 2), ("K", 2), ("K", 3)):
        hookX += with_nops(k_tile_dma(idx) if kind == "K" else v_tile_dma(idx))
    if XY:
        nxt = [raw(f"s_cmp_eq_u32 {s(S_ADONE)}, 1"), raw("s_cbranch_scc1 L1_hlast", "branch"),
               raw(f"s_cmp_eq_u32 {s(S_TYPE)}, 1"), raw("s_cbranch_scc1 L1_hX", "branch")] + hookY + \
              [raw("s_branch L1_hend", "branch"), label("L1_hX")] + hookX + [raw("s_branch L1_hend", "branch"), label("L1_hlast")] + \
              wo_convert_load() + [label("L1_hend")]
    else:
        nxt = [raw(f"s_cmp_eq_u32 {s(S_ADONE)}, 1"), raw("s_cbranch_scc1 L1_hlast", "branch")] + hookY + \
              [raw("s_branch L1_hend", "branch"), label("L1_hlast")] + wo_convert_load() + [label("L1_hend")]
    for x in nxt:
        if x.kind in ("dma", "vmem"): x.tag = ("next", x.tag)
    qpre, qch = q_phase(False)
    apre, aep = a_phase(nxt)
    mid = [lgkm0(), vmwait([("K", 0)]), barrier()] + with_nops(k_tile_dma(2)) + with_nops(k_tile_dma(3))
    named = [("setup_q", task_setup_q()), ("init", q_groups_initial(first=True)), ("qpre", qpre)]
    named += [(f"q{c}", qch[c]) for c in range(16)]
    named += [("kvset", kv_stream(S_BA) + kv_out(S_BA))]
    named += [(f"q{c}", qch[c]) for c in range(16, 20)]
    named += [("mid", mid), ("apre", apre), ("conv", [nop(7)] + q_convert())]
    named += [(f"e{e}", aep[e]) for e in range(33)]
    named += [("epi1", [nop(7)] + o_epilogue() + range_flag()), ("epi2", o_store()), ("chk", range_check())]
    seg = process(named, "k1")
    segF = process([("fb0", [nop(7)])] + fallback() + [("fb_end", [nop(7)])], "k1F")
    qpreS, qchS = q_phase(True)
    g0 = x_dma(0, set_m0(S_XW0, 2 * XSLOT), tg="x2")
    midS = [lgkm0(), barrier(), g0[0], nop(0)] + g0[1:6] + [nop(0), g0[6]] + \
           [salu(f"s_add_u32 {s(S_XOFF)}, {s(S_XOFF)}, 256"),
            salu(f"s_add_u32 {s(S_XWR)}, {s(S_XW0)}, {1*XSLOT}"), salu(f"s_mov_b32 {s(S_XRD)}, {2*XSLOT}")]
    namedS = [("setup_q", task_setup_q()), ("init", q_groups_initial(first=True)), ("qpre", qpreS)]
    namedS += [(f"q{c}", qchS[c]) for c in range(20)]
    namedS += [("midS", midS), ("convS", [nop(7)] + q_convert()), ("stash", q_stash(True))]
    segS = process(namedS, "k1S")
    for c in range(16):
        assert same_text(seg[f"q{c}"], segS[f"q{c}"]), f"stash flow differs in chunk {c}"
    DBG = os.environ.get("K1DBG", "")
    if DBG:
        def filt(st, pre):
            o = []
            for x in st:
                tg = x.tag[0] if isinstance(x.tag, tuple) else None
                if pre + 'l' in DBG and x.kind == 'lds': continue
                if pre + 'x' in DBG and x.kind == 'dma' and tg == 'x': continue
                if pre + 'w' in DBG and x.kind == 'dma' and tg == 'wq': continue
                if pre + 'k' in DBG and x.kind == 'dma' and tg in ('kq', 'K'): continue
                if pre + 'v' in DBG and x.kind == 'dma' and tg == 'V': continue
                if pre + 'b' in DBG and x.kind == 'barrier': continue
                if pre + 'm' in DBG and x.kind == 'mfma': continue
                if pre + 'e' in DBG and x.kind in ('valu', 'trans'): continue
                if pre + 'W' in DBG and x.kind == 'wait' and 'vmcnt' in x.text: continue
                o.append(x)
            return o
        for k in list(seg.keys()):
            if k[0] == 'q' and k[1:].isdigit(): seg[k] = filt(seg[k], 'q')
            if k[0] == 'e' and k[1:].isdigit(): seg[k] = filt(seg[k], 'a')
    def cat(names, sg=None): return [x for n in names for x in (sg or seg)[n]]
    qloop = cat([f"q{c}" for c in range(4, 8)])
    for it in range(2, 4):
        assert same_text(qloop, cat([f"q{c}" for c in range(4 * it, 4 * it + 4)])), f"Q loop iteration {it} differs"
    aloop = cat([f"e{e}" for e in range(2, 6)])
    for it in range(1, 7):
        other = cat([f"e{e}" for e in range(2 + 4 * it, 6 + 4 * it)])
        assert same_text(aloop, other), f"A loop iteration {it} differs"
    E = lambda st: emit(st)
    A_ = lambda *x: lines.extend(["    " + t for t in x])
    A_(f"s_mov_b32 {s(S_STK)}, 0")
    lines += stamp(6)
    lines += E(seg["setup_q"]) + E(seg["init"])
    lines += pro2
    lines.append("L1_q:")
    lines += stamp(0)
    lines += E(seg["qpre"])
    lines += E(cat(["q0", "q1", "q2", "q3"]))
    A_(f"s_mov_b32 {s(S_CNT)}, 3")
    lines.append(".p2align 6")
    lines.append("L1_qloop:")
    lines += E(qloop)
    A_(f"s_sub_u32 {s(S_CNT)}, {s(S_CNT)}, 1", f"s_cmp_lg_u32 {s(S_CNT)}, 0", "s_cbranch_scc1 L1_qloop")
    if XY: A_(f"s_cmp_eq_u32 {s(S_PASS)}, 1", "s_cbranch_scc1 L1_qS")
    lines += E(seg["kvset"])
    lines += E(cat(["q16", "q17", "q18", "q19"]))
    lines += stamp(1)
    lines += E(seg["mid"]) + E(seg["apre"]) + E(seg["conv"])
    lines.append("L1_a:")
    lines += stamp(2)
    if WIN is not None and WINPAR is not None:
        A_(f"s_and_b32 {s(S_PT0)}, {s(S_XCC)}, 1", f"s_cmp_eq_u32 {s(S_PT0)}, {WINPAR}", "s_cselect_b64 vcc, -1, 0")
    lines += E(cat(["e0", "e1"]))
    A_(f"s_mov_b32 {s(S_CNT)}, 7")
    lines.append(".p2align 6")
    lines.append("L1_aloop:")
    lines += E(aloop)
    lines += pace_code()
    A_(f"s_sub_u32 {s(S_CNT)}, {s(S_CNT)}, 1", f"s_cmp_lg_u32 {s(S_CNT)}, 0", "s_cbranch_scc1 L1_aloop")
    lines += stamp(3)
    lines += E(cat(["e30", "e31", "e32"]))
    lines += stamp(4)
    A_(f"s_mov_b32 {s(S_FB)}, 0")
    lines.append("L1_epi:")
    lines += E(seg["epi1"]) + E(seg["epi2"]) + E(seg["chk"])
    A_(f"s_cmp_eq_u32 {s(S_T0)}, 0", "s_cbranch_scc1 L1_ok", f"s_cmp_eq_u32 {s(S_FB)}, 0", "s_cbranch_scc1 L1_fallback")
    lines.append("L1_ok:")
    lines += stamp(5)
    A_(f"s_cmp_eq_u32 {s(S_ADONE)}, 1", "s_cbranch_scc1 L1_fin",
       f"s_mov_b32 {s(S_ADONE)}, 1", f"s_mov_b32 {s(S_BA)}, {s(S_B8)}")
    if not XY:
        A_("s_branch L1_q")
    else:
        A_(f"s_cmp_eq_u32 {s(S_TYPE)}, 0", "s_cbranch_scc1 L1_q")
        lines += E(kv_out(S_BA))
        A_("s_waitcnt vmcnt(44)", "s_barrier")
        lines += E(seg["apre"])
        A_("s_branch L1_a")
        lines.append("L1_qS:")
        lines += E(cat(["q16", "q17", "q18", "q19"], segS))
        lines += stamp(7)
        lines += E(segS["midS"]) + E(segS["convS"]) + E(segS["stash"])
        A_(f"s_mov_b32 {s(S_PASS)}, 0", "s_branch L1_q")
    lines.append("L1_fallback:")
    A_(f"s_mov_b32 {s(S_FB)}, 1")
    lines += E(segF["fb0"]) + E(segF["fb_pre"])
    lines.append("L1_fb1:")
    lines += E(segF["fb_p1"])
    A_(f"s_sub_u32 {s(S_CNT)}, {s(S_CNT)}, 1", f"s_cmp_lg_u32 {s(S_CNT)}, 0", "s_cbranch_scc1 L1_fb1")
    lines += E(segF["fb_mid"])
    lines.append("L1_fb2:")
    lines += E(segF["fb_p2"])
    A_(f"s_sub_u32 {s(S_CNT)}, {s(S_CNT)}, 1", f"s_cmp_lg_u32 {s(S_CNT)}, 0", "s_cbranch_scc1 L1_fb2")
    lines += E(segF["fb_end"])
    A_("s_branch L1_epi")
    lines.append("L1_fin:")
    lines += E(insert_lgkm_waits(wo_convert_store(20)))
    lines += stamp(8)
    if STAMP:
        lines += [f"    s_cmp_lg_u32 {s(S_W)}, 0", "    s_cbranch_scc1 L1_done",
                  f"    s_lshl_b32 s78, s2, 9", f"    s_add_u32 s78, s78, {STAMP_BASE}",
                  "    v_mbcnt_lo_u32_b32 v14, -1, 0", "    v_mbcnt_hi_u32_b32 v14, -1, v14", "    v_lshlrev_b32 v14, 2, v14",
                  f"    buffer_store_dword v15, v14, {srd(sO)}, s78 offen", f"    buffer_store_dword v11, v14, {srd(sO)}, s78 offen offset:256", "    s_waitcnt vmcnt(0)"]
    lines.append("L1_done:")
    lines.append("    s_endpgm")
    return lines


def kernel_desc(name, vgpr, accum, sgpr=102):
    return [f".amdhsa_kernel {name}",
            f"  .amdhsa_next_free_vgpr {vgpr}", f"  .amdhsa_next_free_sgpr {sgpr}", f"  .amdhsa_accum_offset {accum}",
            "  .amdhsa_group_segment_fixed_size 0", "  .amdhsa_kernarg_size 104",
            "  .amdhsa_user_sgpr_count 2", "  .amdhsa_user_sgpr_kernarg_segment_ptr 1",
            "  .amdhsa_system_sgpr_workgroup_id_x 1", "  .amdhsa_float_denorm_mode_32 3", ".end_amdhsa_kernel"]


HEADER = open("cdna_kernels/" + NAME + ".s.ref").read().split("; Override launch")[0]

def build(only=None):
    if os.environ.get("K2V", "2") == "3":
        from gen_k3 import build_k3 as build_k2, LDS3 as LDS2
        K2REGS = (512, 256)
    else:
        from gen_k2 import build_k2, LDS2
        K2REGS = (336, 232)
    out = [HEADER.rstrip("\n")]
    if only != "k2":
        out.append(f"; @launch kernel={K1} grid=(256,1,1) block=(256,1,1) lds={LDS1}")
    if only != "k1":
        out.append(f"; @launch kernel={K2} grid=(256,1,1) block=(256,1,1) lds={LDS2}")
    out.append('.amdgcn_target "amdgcn-amd-amdhsa--gfx950"')
    out.append(".text")
    for nm, body in ((K1, build_k1()), (K2, build_k2())):
        out += [f".globl {nm}", ".p2align 8", f".type {nm},@function", f"{nm}:"]
        out += body
    out += ['.section .rodata,"a"', ".p2align 6"]
    out += kernel_desc(K1, 512, 256)
    out += [".p2align 6"]
    out += kernel_desc(K2, *K2REGS)
    return "\n".join(out) + "\n"

if __name__ == "__main__":
    if "--map2" in sys.argv:
        MAP2 = True; sys.argv.remove("--map2")
    if "--noxy" in sys.argv:
        XY = False; sys.argv.remove("--noxy")
    if "--xy" in sys.argv:
        XY = True; sys.argv.remove("--xy")
    if "--pf1" in sys.argv:
        PF1 = True; sys.argv.remove("--pf1")
    if "--nowin" in sys.argv:
        WIN = None; sys.argv.remove("--nowin")
    if "--pace" in sys.argv:
        PACE = True; sys.argv.remove("--pace")
    for a_ in list(sys.argv):
        if a_.startswith("--winpar="):
            WINPAR = int(a_.split("=")[1]); sys.argv.remove(a_); continue
        if a_.startswith("--win2="):
            WIN2 = int(a_.split("=")[1]); sys.argv.remove(a_); continue
        if a_.startswith("--win="):
            WIN = int(a_.split("=")[1]); sys.argv.remove(a_)
    if "--nopace" in sys.argv:
        PACE = False; sys.argv.remove("--nopace")
    for a_ in list(sys.argv):
        if a_.startswith("--delta="):
            PACE_DELTA = int(a_.split("=")[1]); sys.argv.remove(a_)
        if a_.startswith("--spins="):
            PACE_SPINS = int(a_.split("=")[1]); sys.argv.remove(a_)
    if "--nopf" in sys.argv:
        PF = False; sys.argv.remove("--nopf")
    for o_ in ("odd", "even", "slot", "all"):
        if "--x" + o_ in sys.argv:
            XSEL = o_; sys.argv.remove("--x" + o_)
    if "--pf" in sys.argv:
        PF = True; sys.argv.remove("--pf")
    if "--norot" in sys.argv:
        ROT = False; sys.argv.remove("--norot")
    if "--stamp" in sys.argv:
        STAMP = True; sys.argv.remove("--stamp")
    only = None
    for o_ in ("k1", "k2"):
        if "--" + o_ in sys.argv:
            only = o_; sys.argv.remove("--" + o_)
    txt = build(only)
    path = sys.argv[1] if len(sys.argv) > 1 else "cdna_kernels/" + NAME + ".s"
    open(path, "w").write(txt)
    print("wrote", path, len(txt), "bytes")
```

```python
from asmlib import *
LDS2 = 81920
def s(n): return f"s{n}"
def srd(n): return f"s[{n}:{n+3}]"
sWO, sOi, sOut = 8, 12, 16
S_W, S_KP, S_QH, S_WOFF, S_OOFF, S_LW, S_CNT, S_T0, S_T1, S_OUTOFF = 20, 21, 22, 23, 24, 25, 26, 27, 28, 29
vWd = 8
vOd = 13
vAr = 18
vOut = 19
vRed = 20
vAr2 = 21
vB = 32
vA = 192
SLOT = 20480
def BF(buf, i2, q): return V(vB + ((buf * 2 + i2) * 5 + q) * 4, 4)
def AF(i2, t): return V(vA + (i2 * 5 + t) * 4, 4)
def acc(t, q): return A((t * 5 + q) * 4, 4)

class Timeline:
    def __init__(self):
        self.m = {}; self.n = {}; self.v = {}
    def mfma(self, t, ins): self.m[t] = ins
    def N(self, t, ins): self.n.setdefault(t, []).append(ins)
    def stream(self, t0, t1, fill_nop=True):
        out = []
        for t in range(t0, t1):
            if t in self.m: out.append(self.m[t])
            elif fill_nop: out.append(nop(0))
            out += self.n.get(t, [])
        return out

def wo_dma(st):
    out = []
    out.append(salu(f"s_add_u32 m0, {s(S_LW)}, {(st % 4) * SLOT}", [], ["m0"]) if st % 4 else salu(f"s_mov_b32 m0, {s(S_LW)}", [], ["m0"]))
    for j in range(4):
        t = f"buffer_load_dwordx4 v{vWd + j}, {srd(sOi)}, {s(S_WOFF)} offen" + (f" offset:{1024*j}" if j else "") + " lds"
        out.append(I(t, "dma", [f"v{vWd+j}", "m0"], [], tag=("wo", st)))
    out.append(salu(f"s_add_u32 m0, {s(S_LW)}, {(st % 4) * SLOT + 4096}", [], ["m0"]))
    out.append(I(f"buffer_load_dwordx4 v{vWd + 4}, {srd(sOi)}, {s(S_WOFF)} offen lds", "dma", [f"v{vWd+4}", "m0"], [], tag=("wo", st)))
    out.append(salu(f"s_add_u32 {s(S_WOFF)}, {s(S_WOFF)}, 4096"))
    return out

def o_loads(st):
    out = []
    for i2 in range(2):
        for q in range(5):
            d = BF(st % 4, i2, q)
            t = f"buffer_load_dwordx4 {d}, v{vOd + q}, {srd(sOi)}, {s(S_OOFF)} offen" + (f" offset:{2048*i2}" if i2 else "")
            out.append(I(t, "vmem", [f"v{vOd+q}"], d.regs(), tag=("O", st)))
    out.append(salu(f"s_add_u32 {s(S_OOFF)}, {s(S_OOFF)}, 4096"))
    return out

import os
LA = int(os.environ.get('K2LA', '3'))
DBG = os.environ.get('K2DBG', '')
ST = bool(os.environ.get('K2STAMP'))
def st2(k):
    if not ST: return []
    return [f'    s_memtime s[{40+4*k}:{41+4*k}]', f'    s_memrealtime s[{42+4*k}:{43+4*k}]', '    s_waitcnt lgkmcnt(0)']
def build_k2():
    L = []; a = L.append
    a("    s_cmp_ge_u32 s2, 256"); a("    s_cbranch_scc1 L2_done")
    P = []
    p = P.append
    p("s_load_dwordx2 s[30:31], s[0:1], 80")
    p("s_load_dwordx2 s[32:33], s[0:1], 96")
    p("v_lshrrev_b32 v1, 6, v0")
    p("v_and_b32 v2, 63, v0")
    p(f"v_readfirstlane_b32 {s(S_W)}, v1")
    p("s_and_b32 s3, s2, 7")
    p("s_lshr_b32 s34, s2, 3")
    p("s_and_b32 s35, s34, 7")
    p("s_lshr_b32 s34, s34, 3")
    p("s_lshl_b32 s36, s3, 2")
    p("s_add_u32 s36, s36, s34")
    p("s_lshr_b32 s37, s36, 4")
    p("s_and_b32 s38, s36, 15")
    p(f"s_lshr_b32 {s(S_KP)}, {s(S_W)}, 1")
    p(f"s_and_b32 {s(S_QH)}, {s(S_W)}, 1")
    p("s_waitcnt lgkmcnt(0)")
    def mk(n, lo, hi, size):
        p(f"s_mov_b32 s{n}, s{lo}"); p(f"s_and_b32 s{n+1}, s{hi}, 0xffff"); p(f"s_mov_b32 s{n+2}, {size}"); p(f"s_mov_b32 s{n+3}, 0x20000")
    mk(sOi, 32, 33, (42 << 20) + 2 * 40 * 128 * 1024)
    mk(sOut, 30, 31, 16 * 160 * 2560)
    p(f"s_mul_i32 {s(S_T0)}, s37, 40")
    p(f"s_mul_i32 {s(S_T1)}, s35, 5")
    p(f"s_add_u32 {s(S_T0)}, {s(S_T0)}, {s(S_T1)}")
    p(f"s_lshl_b32 {s(S_T0)}, {s(S_T0)}, 7")
    p(f"s_add_u32 {s(S_T0)}, {s(S_T0)}, {s(S_W)}")
    p(f"s_lshl_b32 {s(S_T0)}, {s(S_T0)}, 10")
    p(f"s_add_u32 {s(S_WOFF)}, {s(S_T0)}, {42 << 20}")
    p(f"s_mul_i32 {s(S_LW)}, {s(S_W)}, 5120")
    p(f"s_mul_i32 {s(S_T0)}, s36, 10")
    p(f"s_mul_i32 {s(S_T1)}, {s(S_QH)}, 5")
    p(f"s_add_u32 {s(S_T0)}, {s(S_T0)}, {s(S_T1)}")
    p(f"s_lshl_b32 {s(S_T0)}, {s(S_T0)}, 7")
    p(f"s_add_u32 {s(S_T0)}, {s(S_T0)}, {s(S_KP)}")
    p(f"s_lshl_b32 {s(S_OOFF)}, {s(S_T0)}, 10")
    p("v_and_b32 v3, 15, v2"); p("v_lshrrev_b32 v4, 4, v2")
    p("v_lshlrev_b32 v5, 4, v2")
    for q in range(5):
        p(f"v_add_u32 v{vOd+q}, {q*131072}, v5")
        p(f"v_add_u32 v{vWd+q}, {q*131072 - (1024*q if q < 4 else 0)}, v5")
    P.append('@@SPLIT')
    p(f"s_mul_i32 {s(S_T0)}, s38, 160")
    p(f"s_mul_i32 {s(S_T1)}, {s(S_QH)}, 80")
    p(f"s_add_u32 {s(S_T0)}, {s(S_T0)}, {s(S_T1)}")
    p(f"s_mul_i32 {s(S_OUTOFF)}, {s(S_T0)}, 2560")
    p(f"s_mul_i32 {s(S_T0)}, s37, 1280")
    p(f"s_add_u32 {s(S_OUTOFF)}, {s(S_OUTOFF)}, {s(S_T0)}")
    p(f"s_mul_i32 {s(S_T0)}, s35, 160")
    p(f"s_add_u32 {s(S_OUTOFF)}, {s(S_OUTOFF)}, {s(S_T0)}")
    p(f"s_mul_i32 {s(S_T0)}, {s(S_KP)}, 5120")
    p(f"v_add_u32 v{vAr}, {s(S_T0)}, v5")
    p(f"v_add_u32 v{vAr2}, {2*SLOT}, v{vAr}")
    p("v_mul_u32_u24 v6, 2560, v3"); p(f"v_lshl_add_u32 v{vOut}, v4, 3, v6")
    p(f"s_mul_i32 {s(S_T0)}, {s(S_QH)}, 26624")
    p(f"v_add_u32 v{vRed}, {s(S_T0)}, v5")
    L += st2(0)
    isp = P.index('@@SPLIT')
    L += ["    " + x for x in P[:isp]]
    P2 = ["    " + x for x in P[isp + 1:]]

    II = 50; NS = 32
    tl = Timeline()
    init = []
    for st in range(LA):
        w_ = wo_dma(st)
        init += w_[:1] + [nop(0)] + w_[1:6] + [nop(0)] + w_[6:]
        init += o_loads(st)
        if st == 3: pass
    for st in range(-1, NS):
        T = st * II
        if st >= 0:
            for t in range(II):
                i2, tt, q = t // 25, (t % 25) // 5, t % 5
                first = (st == 0 and i2 == 0)
                tl.mfma(T + t, mfma16(acc(tt, q), AF(i2, tt), BF(st % 4, i2, q), 0 if first else acc(tt, q)))
        n = st + 1
        if n < NS:
            tl.N(T + 36, I("s_waitcnt lgkmcnt(0)", "wait", info="lgkm0"))
            tl.N(T + 37, I("s_waitcnt vmcnt(?)", "wait", info=("vm", [("wo", n), ("O", n)], None)))
            tl.N(T + 38, I("s_barrier", "barrier"))
            for i2 in range(2):
                for tt in range(5):
                    t = T + 39 + 2 * tt if i2 == 0 else T + 50 + 2 * tt
                    tl.N(t, ds_read("ds_read_b128", AF(i2, tt), V(vAr if n % 4 < 2 else vAr2), (n % 2) * SLOT + i2 * 10240 + 1024 * tt))
        if st >= 0 and st + LA < NS:
            w = wo_dma(st + LA)
            ol = o_loads(st + LA)
            slots = [1, 5, 9, 12, 15, 18, 21, 24, 27, 30, 33, 40, 42, 44, 46]
            order = ["o", "o", "w", "o", "o", "w", "o", "o", "w", "o", "o", "w", "o", "o", "w"]
            tl.N(T + 0, w[0])
            io = iw = 0
            for t_, kind in zip(slots, order):
                if kind == "o":
                    tl.N(T + t_, ol[io]); io += 1
                else:
                    if iw == 4:
                        tl.N(T + t_ - 1, w[5])
                        tl.N(T + t_, w[6])
                    else:
                        tl.N(T + t_, w[1 + iw])
                    iw += 1
            tl.N(T + 48, w[7]); tl.N(T + 48, ol[10])
    pre = tl.stream(-II + 36, 0, fill_nop=False)
    stages = [tl.stream(st * II, (st + 1) * II) for st in range(NS)]
    flat = []
    def mark(n): flat.append(I(f"@@{n}", "label"))
    mark("init"); flat += init
    mark("pre"); flat += pre + [I("s_waitcnt lgkmcnt(0)", "wait", info="lgkm0")]
    for st in range(NS):
        mark(f"s{st}"); flat += stages[st]
    resolve_vm_waits(flat)
    flat = insert_lgkm_waits(flat, lat=6)
    errs = check_hazards(flat, "k2")
    assert not errs, errs[:5]
    seg = {}; cur = None
    for ins in flat:
        if ins.kind == "label" and ins.text.startswith("@@"):
            cur = ins.text[2:]; seg[cur] = []
        else: seg[cur].append(ins)
    cat = lambda names: [x for n in names for x in seg[n]]
    txt = lambda st: [x.text for x in st]
    body = cat([f"s{k}" for k in range(4, 8)])
    for it in range(1, 6):
        assert txt(body) == txt(cat([f"s{k}" for k in range(4 + 4 * it, 8 + 4 * it)])), f"k2 iteration {it}"
    if DBG:
        def filt(st):
            o = []
            for x in st:
                if 'm' in DBG and x.kind == 'mfma': continue
                if 'o' in DBG and x.kind == 'vmem': continue
                if 'w' in DBG and x.kind == 'dma': continue
                if 'l' in DBG and x.kind == 'lds': continue
                if 'b' in DBG and x.kind == 'barrier': continue
                o.append(x)
            return o
        for k in list(seg.keys()):
            if k.startswith('s'): seg[k] = filt(seg[k])
        body = cat([f"s{k}" for k in range(4, 8)])
    L += st2(1) + emit(seg["init"]) + P2 + st2(2) + emit(seg["pre"]) + st2(3) + emit(cat(["s0", "s1", "s2", "s3"])) + st2(4)
    L.append(f"    s_mov_b32 {s(S_CNT)}, 6")
    L.append(".p2align 6"); L.append("L2_loop:")
    L += emit(body)
    L += [f"    s_sub_u32 {s(S_CNT)}, {s(S_CNT)}, 1", f"    s_cmp_lg_u32 {s(S_CNT)}, 0", "    s_cbranch_scc1 L2_loop"]
    L += st2(5) + emit(cat(["s28", "s29", "s30", "s31"])) + st2(6)
    F = []; f = F.append
    f("s_waitcnt vmcnt(0) lgkmcnt(0)")
    f("s_nop 7")
    f("s_barrier")
    f(f"s_cmp_eq_u32 {s(S_KP)}, 0"); f("s_cbranch_scc0 L2_fin1")
    for kp in range(2):
        keep = list(range(0, 13)) if kp == 0 else list(range(13, 25))
        send = list(range(13, 25)) if kp == 0 else list(range(0, 13))
        if kp == 1: F.append("L2_fin1:")
        for i, k in enumerate(send):
            f(f"ds_write_b128 v{vRed}, a[{4*k}:{4*k+3}] offset:{kp*13312 + i*1024}")
        f("s_waitcnt lgkmcnt(0)")
        f("s_barrier")
        for i, k in enumerate(keep):
            f(f"ds_read_b128 v[{vB+4*i}:{vB+4*i+3}], v{vRed} offset:{(1-kp)*13312 + i*1024}")
        for i, k in enumerate(keep):
            tt, q = k // 5, k % 5
            r = vB + 4 * i
            t = vA + 4 * (i % 4)
            for j in range(4):
                f(f"v_accvgpr_read_b32 v{t + j}, a{4*k + j}")
            f(f"s_waitcnt lgkmcnt({len(keep) - 1 - i})")
            f(f"v_pk_add_f32 v[{r}:{r+1}], v[{r}:{r+1}], v[{t}:{t+1}]")
            f(f"v_pk_add_f32 v[{r+2}:{r+3}], v[{r+2}:{r+3}], v[{t+2}:{t+3}]")
            f(f"s_add_u32 {s(S_T0)}, {s(S_OUTOFF)}, {q*16*2560}")
            f(f"v_cvt_pk_bf16_f32 v{r}, v{r}, v{r+1}")
            f(f"v_cvt_pk_bf16_f32 v{r+1}, v{r+2}, v{r+3}")
            f(f"buffer_store_dwordx2 v[{r}:{r+1}], v{vOut}, {srd(sOut)}, {s(S_T0)} offen offset:{32*tt}")
        if kp == 0: f("s_branch L2_fin" if not ST else "s_branch L2_st")
    if not ST: F.append("L2_fin:")
    for x in F:
        L.append(x if x.endswith(":") else "    " + x)
    if ST:
        L.append("L2_st:")
        L += ["    s_waitcnt vmcnt(0)"] + st2(7)
        L += [f"    s_cmp_lg_u32 {s(S_W)}, 0", "    s_cbranch_scc1 L2_done", "    s_mov_b32 s14, 0x4000000", "    s_lshl_b32 s80, s2, 8", f"    s_add_u32 s80, s80, {57<<20}"]
        for k in range(8):
            L += [f"    v_mov_b32 v2, s{40+4*k}", f"    v_mov_b32 v3, s{42+4*k}", f"    v_mov_b32 v4, {8*k}", f"    buffer_store_dwordx2 v[2:3], v4, s[12:15], s80 offen"]
        L += ["    s_waitcnt vmcnt(0)"]
    L.append("L2_done:"); L.append("    s_endpgm")
    return L
```

```python
import sys, math, struct, os
from asmlib import *

NAME = "concat_heads__mha_block_cached__mha_block_cached__near_ridge"
K1 = "mha_attn_kernel"
K2 = "mha_oproj_kernel"

def fbits(x):
    return struct.unpack("<I", struct.pack("<f", x))[0]

KR = 0
VR = 65536
XR = 131072
XSLOT = 20480
FLAGS = 61440
LDS1 = 163840
WF_BASE = 42 << 20
WS_USED = (64 << 20) + 256 * 81920
STAMP_BASE = 56 << 20

sX, sWQ, sK, sV, sO = 8, 12, 16, 20, 24
sWO = 88
S_W, S_HSEL, S_HALF, S_TASK, S_B, S_H = 28, 29, 30, 31, 32, 33
S_KOFF, S_VOFF, S_XOFF, S_WQOFF, S_XWR, S_XRD, S_CNT = 34, 35, 36, 37, 38, 39, 40
S_LK, S_LV, S_C, S_KQS, S_KQM, S_HOFF, S_OOFF = 41, 42, 44, 72, 46, 47, 48
S_KQSMAX, S_KQMMAX, S_B0, S_XW0 = 49, 50, 51, 43
S_T0, S_T1, S_T2, S_T3 = 68, 69, 70, 71
S_XWEND = 73
S_PFX, S_PFW, S_PAIR = 80, 81, 82
S_WQST, S_WQEND, S_XST, S_XEND, S_ROT = 92, 93, 94, 95, 96
PF = True
PF1 = False
ROT = False
MAP2 = False
S_TYPE, S_PASS, S_ADONE, S_BQ, S_BA, S_B8, S_QS, S_STK = 97, 98, 99, 100, 32, 83, 72, 79
QS_BASE = 64 << 20
XY = False
XSEL = "odd"
S_FOFF, S_FB = 46, 49
sDBG = 52
S_XCC, S_PT0, S_PT1, S_PN = 56, 57, 58, 59
PACE = False
WIN = 4
OST = os.environ.get('OST', 'sc1')
PACE_DELTA, PACE_SPINS = 96, 6
L_LO, L_HI = 2.0 ** -14, 2.0 ** 20
S_TASKI = 79
def s(n): return f"s{n}"
def srd(n): return f"s[{n}:{n+3}]"

vQ, vS, vP = 16, 96, 136
vKr, vVr, vWr, vXr, vXpat = 176, 180, 188, 192, 232
vKd, vVd, vWd, vXd = 194, 198, 200, 234
vL = 207
vOst = 212
vPfX, vPfW, vDum = 213, 214, 12
vPfX2, vPfW2 = 239, 240
vT = 216
aO, aKF, aVF = 0, 160, 192

def Qf(qt, st): return V(vQ + (qt * 4 + st) * 4, 4)
def Sf(kt, qt): return V(vS + (kt * 5 + qt) * 4, 4)
def Pf(par, qt): return V(vP + (par * 5 + qt) * 4, 4)
def KF(kt, st): return A(aKF + (kt * 4 + st) * 4, 4)
def VF(dt): return A(aVF + dt * 4, 4)
def Of(dt, qt): return A(aO + (dt * 5 + qt) * 4, 4)

def dma(voff, srdn, soff, ioff, nt, tag):
    t = f"buffer_load_dwordx4 v{voff}, {srd(srdn)}, {soff} offen"
    if ioff: t += f" offset:{ioff}"
    if nt: t += " " + os.environ.get("KVPOL", "nt")
    t += " lds"
    return I(t, "dma", [f"v{voff}", "m0"], [], tag=tag)

def set_m0(base_s, const):
    if const == 0:
        return salu(f"s_mov_b32 m0, {s(base_s)}", [], ["m0"])
    return salu(f"s_add_u32 m0, {s(base_s)}, {const}", [], ["m0"])

def vmwait(tags, lgkm0=False, cap=None):
    t = "s_waitcnt vmcnt(?)" + (" lgkmcnt(0)" if lgkm0 else "")
    return I(t, "wait", info=("vm", tags, cap))

def lgkm0():
    return I("s_waitcnt lgkmcnt(0)", "wait", info="lgkm0")

def barrier():
    return I("s_barrier", "barrier")


class Timeline:
    def __init__(self):
        self.m = {}; self.n = {}; self.v = {}
    def mfma(self, t, ins):
        assert t not in self.m, t
        self.m[t] = ins
    def N(self, t, ins):
        self.n.setdefault(t, []).append(ins)
    def Vv(self, t, ins):
        self.v.setdefault(t, []).append(ins)
    def stream(self, t0, t1, fill_nop=True):
        out = []
        for t in range(t0, t1):
            if t in self.m:
                out.append(self.m[t])
            elif fill_nop:
                out.append(nop(0))
            out += self.n.get(t, [])
            out += self.v.get(t, [])
        return out


def lgkm0_mark(ins):
    return ins


def x_dma(sc, m0_ins, soff=None, tg="x"):
    soff = S_XOFF if soff is None else soff
    out = [m0_ins]
    for j in range(4):
        out.append(dma(vXd + j, sX, s(soff), 1024 * j, False, (tg, sc)))
    out.append(salu("s_add_u32 m0, m0, 4096", ["m0"], ["m0"]))
    out.append(dma(vXd + 4, sX, s(soff), 0, False, (tg, sc)))
    out.append(salu(f"s_add_u32 {s(S_XOFF)}, {s(S_XOFF)}, 128"))
    out.append(salu(f"s_cmp_lt_u32 {s(S_XOFF)}, {s(S_XEND)}"))
    out.append(salu(f"s_cselect_b32 {s(S_XOFF)}, {s(S_XOFF)}, {s(S_XST)}"))
    return out

def wq_advance():
    return [salu(f"s_add_u32 {s(S_WQOFF)}, {s(S_WQOFF)}, {32*8192}"),
            salu(f"s_cmp_lt_u32 {s(S_WQOFF)}, {s(S_WQEND)}"),
            salu(f"s_cselect_b32 {s(S_WQOFF)}, {s(S_WQOFF)}, {s(S_WQST)}")]

def pf_loads():
    out = []
    if PF:
        out.append(I(f"buffer_load_dword v{vDum}, v{vPfX}, {srd(sX)}, {s(S_PFX)} offen", "vmem", [f"v{vPfX}"], [f"v{vDum}"], tag=("pf", 0)))
        out.append(I(f"buffer_load_dword v{vDum}, v{vPfW}, {srd(sWQ)}, {s(S_PFW)} offen", "vmem", [f"v{vPfW}"], [f"v{vDum}"], tag=("pf", 1)))
        out.append(I(f"buffer_load_dword v{vDum}, v{vPfX2}, {srd(sX)}, {s(S_PFX)} offen", "vmem", [f"v{vPfX2}"], [f"v{vDum}"], tag=("pf", 0)))
        out.append(I(f"buffer_load_dword v{vDum}, v{vPfW2}, {srd(sWQ)}, {s(S_PFW)} offen", "vmem", [f"v{vPfW2}"], [f"v{vDum}"], tag=("pf", 1)))
    return out

def wo_convert_load():
    out = []
    out.append(salu(f"s_and_b32 {s(S_T0)}, s2, 127"))
    out.append(salu(f"s_mul_i32 {s(S_T0)}, {s(S_T0)}, 40960"))
    out.append(salu(f"s_mul_i32 {s(S_T1)}, {s(S_W)}, 10240"))
    out.append(salu(f"s_add_u32 {s(S_T0)}, {s(S_T0)}, {s(S_T1)}"))
    for grp in range(3):
        out.append(salu(f"s_add_u32 m0, {s(S_T1)}, {grp*4096}", [], ["m0"]))
        out.append(nop(0))
        for j in range(4 if grp < 2 else 2):
            out.append(dma(vOst, sWO, s(S_T0), 1024 * j, False, ("cv", 0)))
        out.append(salu(f"s_add_u32 {s(S_T0)}, {s(S_T0)}, 4096"))
    return out

def wo_convert_store(nyounger):
    out = []
    out.append(I(f"s_waitcnt vmcnt({nyounger})", "wait", info="fixed"))
    out.append(barrier())
    t = vT
    out.append(valu(f"v_lshrrev_b32 v{t}, 6, v{vOst}", [], [f"v{t}"]))
    out.append(valu(f"v_mul_u32_u24 v{t}, 1280, v{t}", [f"v{t}"], [f"v{t}"]))
    out.append(valu(f"v_lshrrev_b32 v{t+1}, 4, v{vOst}", [], [f"v{t+1}"]))
    out.append(valu(f"v_and_b32 v{t+1}, 3, v{t+1}", [f"v{t+1}"], [f"v{t+1}"]))
    out.append(valu(f"v_lshl_add_u32 v{t}, v{t+1}, 3, v{t}", [f"v{t}", f"v{t+1}"], [f"v{t}"]))
    out.append(salu(f"s_mul_i32 {s(S_T0)}, {s(S_W)}, 320"))
    out.append(valu(f"v_add_u32 v{t}, {s(S_T0)}, v{t}", [f"v{t}"], [f"v{t}"]))
    for tt in range(10):
        for u in range(2):
            out.append(ds_read("ds_read_b64_tr_b16", V(vS + 4 * tt + 2 * u, 2), V(t), u * 20480 + 32 * tt))
        if tt == 4: out.append(lgkm0())
    out.append(lgkm0())
    out.append(salu(f"s_lshr_b32 {s(S_T0)}, s2, 7"))
    out.append(salu(f"s_mul_i32 {s(S_T0)}, {s(S_T0)}, 40"))
    out.append(salu(f"s_mul_i32 {s(S_T1)}, {s(S_W)}, 10"))
    out.append(salu(f"s_add_u32 {s(S_T0)}, {s(S_T0)}, {s(S_T1)}"))
    out.append(salu(f"s_lshl_b32 {s(S_T0)}, {s(S_T0)}, 7"))
    out.append(salu(f"s_and_b32 {s(S_T1)}, s2, 127"))
    out.append(salu(f"s_add_u32 {s(S_T0)}, {s(S_T0)}, {s(S_T1)}"))
    out.append(salu(f"s_lshl_b32 {s(S_T0)}, {s(S_T0)}, 10"))
    out.append(salu(f"s_add_u32 {s(S_T0)}, {s(S_T0)}, {WF_BASE}"))
    for tt in range(10):
        d = vS + 4 * tt
        out.append(I(f"buffer_store_dwordx4 v[{d}:{d+3}], v{vOst}, {srd(sO)}, {s(S_T0)} offen{' ' + OST if OST else ''}", "vmem", regs("v", d, 4) + [f"v{vOst}"], [], tag=("cv", 1)))
        out.append(salu(f"s_add_u32 {s(S_T0)}, {s(S_T0)}, 131072"))
    out.append(barrier())
    return out

def q_groups_initial(first=False):
    out = []
    def wq(c):
        out.append(set_m0(S_LV, (c % 4) * 16384))
        out.append(nop(0))
        for j in range(4):
            out.append(dma(vWd + j, sWQ, s(S_WQOFF), 1024 * j, False, ("wq", c)))
        out.extend(wq_advance())
    def x(sc):
        g = x_dma(sc, set_m0(S_XW0, ((sc + 2) % 3) * XSLOT))
        out.extend([g[0], nop(0)] + g[1:6] + [nop(0)] + g[6:])
    if first and PF1:
        out += pf_loads()
    wq(0); x(0); wq(1); wq(2)
    x(1)
    if not first:
        out += pf_loads()
    out.append(salu(f"s_add_u32 {s(S_XWR)}, {s(S_XW0)}, {1*XSLOT}"))
    out.append(salu(f"s_mov_b32 {s(S_XRD)}, {2*XSLOT}"))
    return out


def k_tile_dma(n):
    out = [set_m0(S_LK, (n % 4) * 16384)]
    for j in range(4):
        out.append(dma(vKd + j, sK, s(S_KOFF), 1024 * j, True, ("K", n)))
    out.append(salu(f"s_add_u32 {s(S_KOFF)}, {s(S_KOFF)}, 8192"))
    return out

def v_tile_dma(n):
    out = [set_m0(S_LV, (n % 4) * 16384)]
    for j in range(4):
        out.append(dma(vVd + (j & 1), sV, s(S_VOFF), 1024 * j, True, ("V", n)))
    out.append(salu(f"s_add_u32 {s(S_VOFF)}, {s(S_VOFF)}, 8192"))
    return out


def q_phase(stash=False):
    II = 40
    tl = Timeline()
    NCH = 20
    def AF(dt): return A(aKF + dt * 4, 4)
    def BF(par, qt): return V(vS + (par * 5 + qt) * 4, 4)
    def acc(dt, qt): return A(aO + (dt * 5 + qt) * 4, 4)
    for c in range(-1, NCH):
        T = c * II
        if c >= 0:
            for t in range(II):
                dt, qt = t // 5, t % 5
                tl.mfma(T + t, mfma16(acc(dt, qt), AF(dt), BF(c & 1, qt), 0 if c == 0 else acc(dt, qt)))
        n = c + 1
        if n < NCH:
            tl.N(T + 24, lgkm0())
            tl.N(T + 25, vmwait([("x", n >> 1), ("wq", n)]))
            tl.N(T + 26, barrier())
            tl.Vv(T + 26, valu(f"v_add_u32 v{vXr}, {s(S_XRD)}, v{vXpat + (n & 1)}", [f"v{vXpat + (n & 1)}"], [f"v{vXr}"]))
            slot = n % 4
            def rdB(t, qt):
                tl.N(T + t, ds_read("ds_read_b128", BF(n & 1, qt), V(vXr), qt * 2048))
            def rdA(t, dt, u):
                st, odd = dt // 2, dt % 2
                tl.N(T + t, ds_read("ds_read_b64_tr_b16", AF(dt).sub(2 * u, 2), V(vWr + st), slot * 16384 + u * 1024 + odd * 8))
            rdB(27, 0); rdA(28, 0, 0); rdA(29, 0, 1); rdB(30, 1); rdB(31, 2); rdB(32, 3); rdB(33, 4)
            rdA(35, 1, 0); rdA(36, 1, 1); rdA(39, 2, 0); rdA(40, 2, 1); rdA(44, 3, 0); rdA(45, 3, 1)
            rdA(49, 4, 0); rdA(50, 4, 1); rdA(54, 5, 0); rdA(55, 5, 1); rdA(58, 6, 0); rdA(59, 6, 1); rdA(61, 7, 0); rdA(62, 7, 1)
            if n & 1:
                tl.N(T + 58, salu(f"s_add_u32 {s(S_XRD)}, {s(S_XRD)}, {XSLOT}"))
                tl.N(T + 59, salu(f"s_cmp_eq_u32 {s(S_XRD)}, {3*XSLOT}"))
                tl.N(T + 59, salu(f"s_cselect_b32 {s(S_XRD)}, 0, {s(S_XRD)}"))
            has_w = n + 3 < NCH
            has_x = n % 2 == 0 and n // 2 + 2 < NCH // 2
            wm0 = lambda: set_m0(S_LV, ((n + 3) % 4) * 16384)
            wd = lambda j: dma(vWd + j, sWQ, s(S_WQOFF), 1024 * j, False, ("wq", n + 3))
            if has_x:
                g = x_dma(n // 2 + 2, salu(f"s_mov_b32 m0, {s(S_XWR)}", [], ["m0"]))
                xm0 = lambda: salu(f"s_mov_b32 m0, {s(S_XWR)}", [], ["m0"])
                tl.N(T + 41, xm0()); tl.N(T + 42, g[1]); tl.N(T + 46, g[2])
                if has_w:
                    tl.N(T + 47, wm0()); tl.N(T + 48, wd(0)); tl.N(T + 52, wd(1))
                tl.N(T + 55, xm0()); tl.N(T + 56, g[3]); tl.N(T + 60, g[4])
                if has_w:
                    tl.N(T + 62, wm0()); tl.N(T + 63, wd(2)); tl.N(T + 74, wd(3))
                tl.N(T + 76, salu(f"s_add_u32 m0, {s(S_XWR)}, 4096", [], ["m0"])); tl.N(T + 77, g[6])
                tl.N(T + 78, g[7]); tl.N(T + 79, g[8]); tl.N(T + 79, g[9])
                tl.N(T + 80, salu(f"s_add_u32 {s(S_XWR)}, {s(S_XWR)}, {XSLOT}"))
                tl.N(T + 80, salu(f"s_cmp_eq_u32 {s(S_XWR)}, {s(S_XWEND)}"))
                tl.N(T + 80, salu(f"s_cselect_b32 {s(S_XWR)}, {s(S_XW0)}, {s(S_XWR)}"))
            elif has_w:
                tl.N(T + 41, wm0()); tl.N(T + 42, wd(0)); tl.N(T + 52, wd(1)); tl.N(T + 63, wd(2)); tl.N(T + 74, wd(3))
            if has_w:
                wa = wq_advance()
                tl.N(T + 75, wa[0]); tl.N(T + 78, wa[1]); tl.N(T + 78, wa[2])
            early = {17: [("K", 0), ("V", 0)], 18: [("V", 1)], 19: [("K", 1), ("V", 2)]}
            if not stash and n in early:
                tt = T + 39
                for kind, idx in early[n]:
                    g = k_tile_dma(idx) if kind == "K" else v_tile_dma(idx)
                    tl.N(tt, g[0])
                    for j in range(4):
                        tl.N(tt + 1 + j, g[1 + j])
                    tl.N(tt + 4, g[5])
                    tt += 5
            if stash:
                def wq2(c, tt):
                    tl.N(tt, set_m0(S_LV, (c % 4) * 16384))
                    for j in range(4):
                        tl.N(tt + 1 + j, dma(vWd + j, sWQ, s(S_WQOFF), 1024 * j, False, ("wq2", c)))
                    wa = wq_advance()
                    tl.N(tt + 5, wa[0]); tl.N(tt + 6, wa[1]); tl.N(tt + 6, wa[2])
                if n == 16:
                    su = [salu(f"s_mov_b32 {s(S_BQ)}, {s(S_B0)}")] + task_setup_q()
                    for k_, ins in enumerate(su):
                        tl.N(T + 79, ins)
                if n == 17:
                    wq2(0, T + 39)
                    tl.N(T + 46, salu(f"s_add_u32 {s(S_T1)}, {s(S_XOFF)}, 128"))
                    g = x_dma(1, set_m0(S_XW0, 0), soff=S_T1, tg="x2")
                    tl.N(T + 47, g[0])
                    for j in range(4):
                        tl.N(T + 48 + j, g[1 + j])
                    tl.N(T + 51, g[5])
                    tl.N(T + 52, g[6])
                if n == 18: wq2(1, T + 39)
                if n == 19: wq2(2, T + 39)
    pre = tl.stream(-II + 24, 0, fill_nop=False)
    chunks = [tl.stream(c * II, (c + 1) * II) for c in range(NCH)]
    return pre, chunks


def q_convert():
    out = []
    for qt in range(5):
        for st in range(4):
            t0 = vT + ((qt * 4 + st) % 2) * 8
            for odd in range(2):
                src = Of(2 * st + odd, qt)
                for j in range(4):
                    out.append(valu(f"v_accvgpr_read_b32 v{t0 + odd*4 + j}, a{src.b + j}", [f"a{src.b+j}"], [f"v{t0+odd*4+j}"]))
            for p in range(4):
                r = t0 + 2 * p
                out.append(valu(f"v_pk_mul_f32 v[{r}:{r+1}], v[{r}:{r+1}], s[{S_C}:{S_C+1}]", [f"v{r}", f"v{r+1}"], [f"v{r}", f"v{r+1}"]))
            q = Qf(qt, st)
            for p in range(4):
                out.append(valu(f"v_cvt_pk_bf16_f32 v{q.b + p}, v{t0 + 2*p}, v{t0 + 2*p + 1}", [f"v{t0+2*p}", f"v{t0+2*p+1}"], [f"v{q.b+p}"]))
    return out


WINPAR = 0
WIN2 = 63
def win_wait(e, k):
    n_ = WIN if (k == 0 or WIN2 is None) else WIN2
    if n_ >= 63: return []
    w = I(f"s_waitcnt vmcnt({n_})", "wait", info="fixed")
    if WINPAR is None: return [w]
    return [I("s_cbranch_vccz 1", "branch"), w]

def a_phase(next_task_loads):
    II = 80
    tl = Timeline()
    NE = 32
    simple = [0,1,2,7,8,9] + list(range(10, 20)) + [24,25,26,31,32,33,38,39,40,45,46,47,52,53,54,59,60,61,66,67,68,73,74,75]
    kt0_reads = [66, 67, 68, 73]
    kt1_reads = [74, 75, 80, 81]
    dma_t = [int(x) for x in os.environ.get('ADMA', '82,87,88,89,90,91,92,93').split(',')]
    v_reads = [94,95,96,97,98,99,104,105,106,111,112,113,118,119,120,125]
    for e in range(-1, NE + 1):
        T = e * II
        if 0 <= e < NE:
            for t in range(40):
                kt, st, qt = t // 20, (t % 20) // 5, t % 5
                tl.mfma(T + t, mfma16(Sf(kt, qt), KF(kt, st), Qf(qt, st), 0 if st == 0 else Sf(kt, qt)))
        if 1 <= e <= NE:
            for t in range(40):
                dt, qt = t // 5, t % 5
                tl.mfma(T + 40 + t, mfma16(Of(dt, qt), VF(dt), Pf((e - 1) & 1, qt), 0 if e == 1 else Of(dt, qt)))
        if 0 <= e < NE:
            for kt in range(2):
                t = T + 20 + 35 * kt
                for qt in range(5):
                    S = Sf(kt, qt); P = Pf(e & 1, qt)
                    for j in range(4):
                        r = f"v{S.b + j}"
                        tl.Vv(t + j, valu(f"v_exp_f32 {r}, {r}", [r], [r], trans=True))
                    L = f"v{vL + qt}"
                    for j in range(4):
                        r = f"v{S.b + j}"
                        if e == 0 and kt == 0 and j == 0:
                            tl.Vv(t + 4, valu(f"v_mov_b32 {L}, {r}", [r], [L]))
                        else:
                            tl.Vv(t + 4 + j // 2, valu(f"v_add_f32 {L}, {L}, {r}", [L, r], [L]))
                    for jj in range(2):
                        d = f"v{P.b + 2*kt + jj}"
                        tl.Vv(t + 6, valu(f"v_cvt_pk_bf16_f32 {d}, v{S.b + 2*jj}, v{S.b + 2*jj + 1}", [f"v{S.b+2*jj}", f"v{S.b+2*jj+1}"], [d]))
                    t += 7
        n = e + 1
        if n <= NE:
            if e >= 0:
                tags = []
                if n < NE: tags.append(("K", n))
                tags.append(("V", e))
                tl.N(T + 63, lgkm0())
                tl.N(T + 64, vmwait(tags, cap=(0 if e == 31 else None)))
                tl.N(T + 65, barrier())
            if n < NE:
                slot = n % 4
                for st in range(4):
                    tl.N(T + kt0_reads[st], ds_read("ds_read_b128", KF(0, st), V(vKr + st), slot * 16384))
                    tl.N(T + kt1_reads[st], ds_read("ds_read_b128", KF(1, st), V(vKr + st), slot * 16384 + 4096))
            if 0 <= e < NE:
                slot = e % 4
                for dt in range(8):
                    for u in range(2):
                        tl.N(T + v_reads[2 * dt + u], ds_read("ds_read_b64_tr_b16", VF(dt).sub(2 * u, 2), V(vVr + dt), slot * 16384 + u * 4096))
            if 0 <= e <= 29:
                kn, vn = e + 4, e + 3
                if WIN is not None:
                    for x_ in win_wait(e, 0): tl.N(T + 79, x_)
                tl.N(T + 79, set_m0(S_LK, (kn % 4) * 16384))
                for j in range(4):
                    tl.N(T + dma_t[j], dma(vKd + j, sK, s(S_KOFF), 1024 * j, True, ("K", kn)))
                tl.N(T + max(dma_t[3], dma_t[4] - 1), set_m0(S_LV, (vn % 4) * 16384))
                if WIN is not None:
                    for x_ in win_wait(e, 1): tl.N(T + max(dma_t[3], dma_t[4] - 1), x_)
                for j in range(4):
                    tl.N(T + dma_t[4 + j], dma(vVd + (j & 1), sV, s(S_VOFF), 1024 * j, True, ("V", vn)))
                tl.N(T + max(100, dma_t[3] + 1), salu(f"s_add_u32 {s(S_KOFF)}, {s(S_KOFF)}, 8192"))
                tl.N(T + max(101, dma_t[7] + 1), salu(f"s_add_u32 {s(S_VOFF)}, {s(S_VOFF)}, 8192"))
            if e == 31:
                for k, ins in enumerate(next_task_loads):
                    tl.N(T + 66, ins)
    pre = tl.stream(-II + 63, 0, fill_nop=False)
    ep = [tl.stream(e * II, (e + 1) * II, fill_nop=(0 < e < NE)) for e in range(NE + 1)]
    return pre, ep


def o_epilogue():
    out = []
    t = vT
    for qt in range(5):
        L = vL + qt
        a_, b_ = t + 2 * qt, t + 2 * qt + 1
        out.append(valu(f"v_mov_b32 v{a_}, v{L}", [f"v{L}"], [f"v{a_}"]))
        out.append(valu(f"v_mov_b32 v{b_}, v{L}", [f"v{L}"], [f"v{b_}"]))
    out.append(nop(1))
    for qt in range(5):
        a_, b_ = t + 2 * qt, t + 2 * qt + 1
        out.append(valu(f"v_permlane32_swap_b32 v{a_}, v{b_}", [f"v{a_}", f"v{b_}"], [f"v{a_}", f"v{b_}"]))
    out.append(nop(1))
    for qt in range(5):
        a_, b_ = t + 2 * qt, t + 2 * qt + 1
        out.append(valu(f"v_add_f32 v{a_}, v{a_}, v{b_}", [f"v{a_}", f"v{b_}"], [f"v{a_}"]))
    for qt in range(5):
        a_, b_ = t + 2 * qt, t + 2 * qt + 1
        out.append(valu(f"v_mov_b32 v{b_}, v{a_}", [f"v{a_}"], [f"v{b_}"]))
    out.append(nop(1))
    for qt in range(5):
        a_, b_ = t + 2 * qt, t + 2 * qt + 1
        out.append(valu(f"v_permlane16_swap_b32 v{a_}, v{b_}", [f"v{a_}", f"v{b_}"], [f"v{a_}", f"v{b_}"]))
    out.append(nop(1))
    for qt in range(5):
        a_, b_ = t + 2 * qt, t + 2 * qt + 1
        L = vL + qt
        out.append(valu(f"v_add_f32 v{L}, v{a_}, v{b_}", [f"v{a_}", f"v{b_}"], [f"v{L}"]))
    return out

def o_store():
    out = []
    t = vT
    for qt in range(5):
        L = vL + qt
        r = t + 2 * qt
        out.append(valu(f"v_rcp_f32 v{r}, v{L}", [f"v{L}"], [f"v{r}"], trans=True))
    out.append(nop(0))
    for qt in range(5):
        r = t + 2 * qt
        out.append(valu(f"v_mov_b32 v{r+1}, v{r}", [f"v{r}"], [f"v{r+1}"]))
    base = t + 10
    k = 0
    for qt in range(5):
        inv = t + 2 * qt
        for vv in range(4):
            t0 = base + 2 + (k % 2) * 12
            t0 = vS + (k % 3) * 12
            for odd in range(2):
                src = Of(2 * vv + odd, qt)
                for j in range(4):
                    out.append(valu(f"v_accvgpr_read_b32 v{t0 + odd*4 + j}, a{src.b + j}", [f"a{src.b+j}"], [f"v{t0+odd*4+j}"]))
            for p in range(4):
                r = t0 + 2 * p
                out.append(valu(f"v_pk_mul_f32 v[{r}:{r+1}], v[{r}:{r+1}], v[{inv}:{inv+1}]", [f"v{r}", f"v{r+1}", f"v{inv}", f"v{inv+1}"], [f"v{r}", f"v{r+1}"]))
            d = t0 + 8
            for p in range(4):
                out.append(valu(f"v_cvt_pk_bf16_f32 v{d + p}, v{t0 + 2*p}, v{t0 + 2*p + 1}", [f"v{t0+2*p}", f"v{t0+2*p+1}"], [f"v{d+p}"]))
            out.append(salu(f"s_add_u32 {s(S_T0)}, {s(S_OOFF)}, {qt*131072 + vv*1024}"))
            out.append(I(f"buffer_store_dwordx4 v[{d}:{d+3}], v{vOst}, {srd(sO)}, {s(S_T0)} offen{' ' + OST if OST else ''}", "vmem", regs("v", d, 4) + [f"v{vOst}"], [], tag=("O", k)))
            k += 1
    return out


def xlane_reduce(regs5, op):
    out = []
    t = vT
    for qt in range(5):
        L = regs5 + qt
        a_, b_ = t + 2 * qt, t + 2 * qt + 1
        out.append(valu(f"v_mov_b32 v{a_}, v{L}", [f"v{L}"], [f"v{a_}"]))
        out.append(valu(f"v_mov_b32 v{b_}, v{L}", [f"v{L}"], [f"v{b_}"]))
    for qt in range(5):
        a_, b_ = t + 2 * qt, t + 2 * qt + 1
        out.append(valu(f"v_permlane32_swap_b32 v{a_}, v{b_}", [f"v{a_}", f"v{b_}"], [f"v{a_}", f"v{b_}"]))
    for qt in range(5):
        a_, b_ = t + 2 * qt, t + 2 * qt + 1
        out.append(valu(f"{op} v{a_}, v{a_}, v{b_}", [f"v{a_}", f"v{b_}"], [f"v{a_}"]))
    for qt in range(5):
        a_, b_ = t + 2 * qt, t + 2 * qt + 1
        out.append(valu(f"v_mov_b32 v{b_}, v{a_}", [f"v{a_}"], [f"v{b_}"]))
    for qt in range(5):
        a_, b_ = t + 2 * qt, t + 2 * qt + 1
        out.append(valu(f"v_permlane16_swap_b32 v{a_}, v{b_}", [f"v{a_}", f"v{b_}"], [f"v{a_}", f"v{b_}"]))
    for qt in range(5):
        a_, b_ = t + 2 * qt, t + 2 * qt + 1
        L = regs5 + qt
        out.append(valu(f"{op} v{L}, v{a_}, v{b_}", [f"v{a_}", f"v{b_}"], [f"v{L}"]))
    return out

def range_flag():
    o = []
    t = vS + 36
    o.append(salu(f"s_mov_b32 {s(S_T0)}, {fbits(L_LO):#x}"))
    o.append(salu(f"s_mov_b32 {s(S_T1)}, {fbits(L_HI):#x}"))
    o.append(valu(f"v_mov_b32 v{t+1}, {s(S_T1)}", [], [f"v{t+1}"]))
    o.append(salu("s_mov_b64 s[74:75], 0"))
    for qt in range(5):
        L = vL + qt
        o.append(valu(f"v_med3_f32 v{t}, v{L}, {s(S_T0)}, v{t+1}", [f"v{L}", f"v{t+1}"], [f"v{t}"]))
        o.append(valu(f"v_cmp_neq_f32 vcc, v{t}, v{L}", [f"v{t}", f"v{L}"], ["vcc"]))
        o.append(nop(1))
        o.append(salu("s_or_b64 s[74:75], s[74:75], vcc"))
    o.append(salu("s_cmp_lg_u64 s[74:75], 0"))
    o.append(salu(f"s_cselect_b32 {s(S_T0)}, 1, 0"))
    o.append(salu(f"s_lshl_b32 {s(S_T1)}, {s(S_W)}, 2"))
    o.append(salu(f"s_add_u32 {s(S_T1)}, {s(S_T1)}, {FLAGS}"))
    o.append(valu(f"v_mov_b32 v{t}, {s(S_T0)}", [], [f"v{t}"]))
    o.append(valu(f"v_mov_b32 v{t+1}, {s(S_T1)}", [], [f"v{t+1}"]))
    o.append(I(f"ds_write_b32 v{t+1}, v{t}", "lds", [f"v{t}", f"v{t+1}"], []))
    return o

def range_check():
    t = vS
    return [lgkm0(), barrier(),
            valu(f"v_mov_b32 v{t}, {FLAGS}", [], [f"v{t}"]),
            I(f"ds_read_b128 v[{t+2}:{t+5}], v{t}", "lds", [f"v{t}"], regs("v", t + 2, 4)),
            lgkm0(),
            valu(f"v_or3_b32 v{t}, v{t+2}, v{t+3}, v{t+4}", regs("v", t + 2, 3), [f"v{t}"]),
            valu(f"v_or_b32 v{t}, v{t}, v{t+5}", [f"v{t}", f"v{t+5}"], [f"v{t}"]),
            nop(0),
            valu(f"v_readfirstlane_b32 {s(S_T0)}, v{t}", [f"v{t}"], [s(S_T0)]),
            nop(3)]

def fallback():
    vFK, vFV, vM = vP + 20, vP + 24, vP + 32
    def kdma():
        o = [salu(f"s_add_u32 m0, {s(S_LK)}, {XR}", [], ["m0"]), nop(0)]
        for j in range(4): o.append(dma(vKd + j, sK, s(S_FOFF), 1024 * j, False, ("fb", 0)))
        return o
    def vdma():
        o = [salu(f"s_add_u32 m0, {s(S_LK)}, {XR + 16384}", [], ["m0"]), nop(0)]
        for j in range(4): o.append(dma(vVd + (j & 1), sV, s(S_FOFF), 1024 * j, False, ("fb", 1)))
        return o
    def foff_init():
        return [salu(f"s_lshl_b32 {s(S_T0)}, {s(S_HALF)}, 12"), salu(f"s_add_u32 {s(S_FOFF)}, {s(S_HOFF)}, {s(S_T0)}"),
                salu(f"s_mov_b32 {s(S_CNT)}, 32")]
    def qk():
        o = []
        for kt in range(2):
            for st in range(4):
                o.append(ds_read("ds_read_b128", KF(kt, st), V(vFK + st), kt * 4096))
        o.append(lgkm0())
        for t in range(40):
            kt, st, qt = t // 20, (t % 20) // 5, t % 5
            o.append(mfma16(Sf(kt, qt), KF(kt, st), Qf(qt, st), 0 if st == 0 else Sf(kt, qt)))
        return o
    wait0 = lambda: [I("s_waitcnt vmcnt(0)", "wait", info="fixed"), barrier()]
    pre = []
    for st in range(4): pre.append(valu(f"v_add_u32 v{vFK+st}, {XR}, v{vKr+st}", [f"v{vKr+st}"], [f"v{vFK+st}"]))
    for dt in range(8): pre.append(valu(f"v_add_u32 v{vFV+dt}, {XR + 16384 - VR}, v{vVr+dt}", [f"v{vVr+dt}"], [f"v{vFV+dt}"]))
    for qt in range(5): pre.append(valu(f"v_mov_b32 v{vM+qt}, 0xff800000", [], [f"v{vM+qt}"]))
    pre += foff_init()
    p1 = kdma() + wait0() + qk()
    for qt in range(5):
        for kt in range(2):
            S_ = Sf(kt, qt)
            for jj in range(2):
                m = f"v{vM+qt}"
                p1.append(valu(f"v_max3_f32 {m}, {m}, v{S_.b+2*jj}, v{S_.b+2*jj+1}", [m, f"v{S_.b+2*jj}", f"v{S_.b+2*jj+1}"], [m]))
    p1 += [barrier(), salu(f"s_add_u32 {s(S_FOFF)}, {s(S_FOFF)}, 8192")]
    mid = xlane_reduce(vM, "v_max_f32")
    for k in range(160): mid.append(valu(f"v_accvgpr_write_b32 a{aO+k}, 0", [], [f"a{aO+k}"]))
    for qt in range(5): mid.append(valu(f"v_mov_b32 v{vL+qt}, 0", [], [f"v{vL+qt}"]))
    mid += foff_init()
    p2 = kdma() + vdma() + wait0() + qk()
    for kt in range(2):
        for qt in range(5):
            S_ = Sf(kt, qt); P_ = Pf(0, qt); L = f"v{vL+qt}"; m = f"v{vM+qt}"
            for j in range(4):
                r = f"v{S_.b+j}"
                p2.append(valu(f"v_sub_f32 {r}, {r}, {m}", [r, m], [r]))
            for j in range(4):
                r = f"v{S_.b+j}"
                p2.append(valu(f"v_exp_f32 {r}, {r}", [r], [r], trans=True))
            for j in range(4):
                r = f"v{S_.b+j}"
                p2.append(valu(f"v_add_f32 {L}, {L}, {r}", [L, r], [L]))
            for jj in range(2):
                d = f"v{P_.b+2*kt+jj}"
                p2.append(valu(f"v_cvt_pk_bf16_f32 {d}, v{S_.b+2*jj}, v{S_.b+2*jj+1}", [f"v{S_.b+2*jj}", f"v{S_.b+2*jj+1}"], [d]))
    for dt in range(8):
        for u in range(2):
            p2.append(ds_read("ds_read_b64_tr_b16", VF(dt).sub(2 * u, 2), V(vFV + dt), u * 4096))
        if dt == 3: p2.append(lgkm0())
    p2.append(lgkm0())
    for t in range(40):
        dt, qt = t // 5, t % 5
        p2.append(mfma16(Of(dt, qt), VF(dt), Pf(0, qt), Of(dt, qt)))
    p2 += [barrier(), salu(f"s_add_u32 {s(S_FOFF)}, {s(S_FOFF)}, 8192")]
    return [("fb_pre", pre), ("fb_p1", p1), ("fb_mid", mid), ("fb_p2", p2)]


def pace_code():
    if not PACE: return []
    L = []
    a = lambda t: L.append("    " + t)
    a(f"s_cmp_lg_u32 {s(S_W)}, 0"); a("s_cbranch_scc1 L1_pace_end")
    a(f"s_mov_b32 {s(S_PN)}, {PACE_SPINS}")
    L.append("L1_pace:")
    for x in range(8):
        a(f"v_readlane_b32 s{60+x}, v5, {x}")
    a(f"v_readlane_b32 {s(S_PT0)}, v5, {s(S_XCC)}")
    a("s_nop 2")
    a("s_add_u32 s60, s60, s61"); a("s_add_u32 s62, s62, s63"); a("s_add_u32 s64, s64, s65"); a("s_add_u32 s66, s66, s67")
    a("s_add_u32 s60, s60, s62"); a("s_add_u32 s64, s64, s66"); a("s_add_u32 s60, s60, s64")
    a(f"s_lshl_b32 {s(S_PT0)}, {s(S_PT0)}, 3")
    a(f"s_add_u32 s60, s60, {PACE_DELTA}")
    a(f"s_cmp_le_u32 {s(S_PT0)}, s60"); a("s_cbranch_scc1 L1_pace_go")
    a(f"s_sub_u32 {s(S_PN)}, {s(S_PN)}, 1"); a(f"s_cmp_eq_u32 {s(S_PN)}, 0"); a("s_cbranch_scc1 L1_pace_go")
    a(f"buffer_load_dword v5, v6, {srd(sDBG)}, 0 offen sc1")
    a("s_waitcnt vmcnt(0)")
    a("s_branch L1_pace")
    L.append("L1_pace_go:")
    a(f"buffer_atomic_add v8, v7, {srd(sDBG)}, 0 offen sc1")
    a(f"buffer_load_dword v5, v6, {srd(sDBG)}, 0 offen sc1")
    L.append("L1_pace_end:")
    return L


def k1_prologue():
    L = []
    a = L.append
    a("s_cmp_ge_u32 s2, 256")
    a("s_cbranch_scc1 L1_done")
    a("s_load_dwordx8 s[52:59], s[0:1], 0")
    a("s_load_dwordx8 s[60:67], s[0:1], 40")
    a("s_load_dwordx2 s[4:5], s[0:1], 96")
    if PACE: a("s_load_dwordx2 s[92:93], s[0:1], 88")
    a("s_load_dwordx2 s[84:85], s[0:1], 32")
    a("s_load_dwordx2 s[86:87], s[0:1], 72")
    a("v_lshrrev_b32 v1, 6, v0")
    a("v_and_b32 v2, 63, v0")
    a(f"v_readfirstlane_b32 {s(S_W)}, v1")
    a("s_and_b32 s3, s2, 7")
    a("s_lshr_b32 s6, s2, 3")
    a(f"s_lshr_b32 {s(S_HSEL)}, {s(S_W)}, 1")
    a(f"s_and_b32 {s(S_HALF)}, {s(S_W)}, 1")
    a(f"s_lshr_b32 {s(S_B0)}, s6, 2")
    a("s_and_b32 s6, s6, 3")
    a(f"s_mov_b32 {s(S_PAIR)}, s6")
    if ROT:
        a(f"s_lshr_b32 s7, {s(S_B0)}, 2"); a(f"s_add_u32 s7, s7, {s(S_B0)}"); a("s_lshl_b32 s7, s7, 1")
        a(f"s_mul_i32 {s(S_ROT)}, s6, 5"); a(f"s_add_u32 s7, s7, {s(S_ROT)}")
        a(f"s_and_b32 {s(S_ROT)}, s6, 1"); a(f"s_sub_u32 s7, s7, {s(S_ROT)}")
        a("s_sub_u32 s3, s7, 20"); a("s_cmp_ge_u32 s7, 20"); a(f"s_cselect_b32 {s(S_ROT)}, s3, s7")
        a("s_and_b32 s3, s2, 7")
    else:
        a(f"s_mov_b32 {s(S_ROT)}, 0")
    if MAP2:
        a("s_lshr_b32 s7, s3, 1")
    else:
        a("s_and_b32 s7, s3, 3")
    a("s_lshl_b32 s7, s7, 3")
    a("s_lshl_b32 s6, s6, 1")
    a("s_add_u32 s7, s7, s6")
    a(f"s_add_u32 {s(S_H)}, s7, {s(S_HSEL)}")
    if MAP2:
        a("s_and_b32 s3, s3, 1")
    else:
        a("s_lshr_b32 s3, s3, 2")
    a(f"s_mov_b32 {s(S_T3)}, s3")
    a("s_waitcnt lgkmcnt(0)")
    a("s_cmp_eq_u32 s3, 0")
    for k in range(8):
        a(f"s_cselect_b32 s{52+k}, s{52+k}, s{60+k}")
    def mk(n, lo, hi, size):
        a(f"s_mov_b32 s{n}, s{lo}")
        a(f"s_and_b32 s{n+1}, s{hi}, 0xffff")
        a(f"s_mov_b32 s{n+2}, {size}")
        a(f"s_mov_b32 s{n+3}, 0x20000")
    mk(sX, 52, 53, 16 * 160 * 1280)
    mk(sK, 54, 55, 0x8000000)
    mk(sV, 56, 57, 0x8000000)
    mk(sWQ, 58, 59, 640 * 8192)
    mk(sO, 4, 5, WS_USED)
    a("s_cmp_lt_u32 s2, 128")
    a("s_cselect_b32 s84, s84, s86")
    a("s_cselect_b32 s85, s85, s87")
    mk(sWO, 84, 85, 4096 * 1280)
    if PACE: mk(sDBG, 92, 93, 256)
    c = math.log2(math.e) / math.sqrt(128.0)
    a(f"s_mov_b32 s{S_C}, {fbits(c):#x}")
    a(f"s_mov_b32 s{S_C+1}, {fbits(c):#x}")
    a(f"s_lshl_b32 s6, {s(S_HSEL)}, 13")
    a(f"s_lshl_b32 s7, {s(S_HALF)}, 12")
    a(f"s_add_u32 {s(S_LK)}, s6, s7")
    a(f"s_add_u32 {s(S_LV)}, {s(S_LK)}, {VR}")
    a(f"s_mul_i32 {s(S_XW0)}, {s(S_W)}, 5120")
    a(f"s_add_u32 {s(S_XWEND)}, {s(S_XW0)}, {3*XSLOT}")
    a("v_and_b32 v3, 15, v2")
    a("v_lshrrev_b32 v4, 4, v2")
    a(f"s_lshl_b32 s6, {s(S_HSEL)}, 13")
    a("v_lshlrev_b32 v8, 2, v4")
    a("v_xor_b32 v8, v8, v3")
    a("v_lshlrev_b32 v8, 4, v8")
    a("v_lshl_add_u32 v8, v4, 13, v8")
    for j in range(4):
        a(f"v_add_u32 v{vWd+j}, {j*31744}, v8")
    a("v_lshrrev_b32 v9, 3, v2")
    a("v_mul_u32_u24 v9, 1280, v9")
    a("v_and_b32 v10, 7, v2")
    for j in range(5):
        a(f"s_add_u32 s7, {s(S_W)}, {j}")
        a("s_and_b32 s7, s7, 1")
        a("s_lshl_b32 s7, s7, 2")
        a("v_add_u32 v8, s7, v4")
        a("v_xor_b32 v8, v8, v10")
        a("v_lshlrev_b32 v8, 4, v8")
        a(f"v_add3_u32 v{vXd+j}, v8, v9, {0}") if False else None
        a(f"s_mov_b32 s7, {8*j*1280 - (1024*j if j < 4 else 0)}")
        a(f"v_add3_u32 v{vXd+j}, v8, v9, s7")
    if XY:
        a(f"s_getreg_b32 {s(S_TYPE)}, hwreg(HW_REG_XCC_ID)")
        a(f"s_and_b32 {s(S_TYPE)}, {s(S_TYPE)}, 1")
        if XSEL == "even":
            a(f"s_xor_b32 {s(S_TYPE)}, {s(S_TYPE)}, 1")
        elif XSEL == "slot":
            a(f"s_lshr_b32 {s(S_TYPE)}, s2, 5"); a(f"s_and_b32 {s(S_TYPE)}, {s(S_TYPE)}, 1")
        elif XSEL == "all":
            a(f"s_mov_b32 {s(S_TYPE)}, 1")
    else:
        a(f"s_mov_b32 {s(S_TYPE)}, 0")
    import os
    if os.environ.get("K1XEXIT"):
        a(f"s_cmp_eq_u32 {s(S_TYPE)}, 1"); a("s_cbranch_scc1 L1_done")
    if os.environ.get("K1BURN"):
        a(f"s_mov_b32 s6, {int(os.environ['K1BURN'])}")
        for i_ in range(64): a(f"v_mov_b32 v{96+i_}, v{176+i_%30}")
        L.append("L1_burn:")
        for i_ in range(64):
            c_ = 4 * (i_ % 32)
            a(f"v_mfma_f32_16x16x32_bf16 a[{c_}:{c_+3}], v[{96+4*(i_%8)}:{99+4*(i_%8)}], v[{128+4*(i_%7)}:{131+4*(i_%7)}], a[{c_}:{c_+3}]")
        a("s_sub_u32 s6, s6, 1"); a("s_cmp_lg_u32 s6, 0"); a("s_cbranch_scc1 L1_burn")
    if os.environ.get("K1DELAY"):
        n_ = int(os.environ["K1DELAY"])
        a("s_lshr_b32 s6, s2, 5"); a("s_and_b32 s6, s6, 1"); a("s_cmp_eq_u32 s6, 0"); a("s_cbranch_scc1 L1_nodelay")
        for _ in range(n_): a("s_sleep 127")
        L.append("L1_nodelay:")
    a(f"s_mov_b32 {s(S_PASS)}, {s(S_TYPE)}")
    a(f"s_mov_b32 {s(S_ADONE)}, 0")
    a(f"s_mov_b32 {s(S_BA)}, {s(S_B0)}")
    a(f"s_add_u32 {s(S_B8)}, {s(S_B0)}, 8")
    a(f"s_cmp_eq_u32 {s(S_TYPE)}, 1")
    a(f"s_cselect_b32 {s(S_BQ)}, {s(S_B8)}, {s(S_B0)}")
    a(f"s_mul_i32 s6, s2, 81920"); a(f"s_mul_i32 s7, {s(S_W)}, 20480"); a("s_add_u32 s6, s6, s7")
    a(f"s_add_u32 {s(S_QS)}, s6, {QS_BASE}")
    L.append("@@SPLIT")
    a(f"s_lshl_b32 s6, {s(S_HSEL)}, 13")
    a("v_xor_b32 v5, v4, v3")
    a("v_lshlrev_b32 v5, 4, v5")
    a("v_lshlrev_b32 v6, 8, v3")
    a("v_add3_u32 v5, v5, v6, s6")
    for st in range(4):
        a(f"v_xor_b32 v{vKr+st}, {st << 6}, v5")
    a("v_lshrrev_b32 v6, 2, v3")
    a("v_and_b32 v7, 3, v3")
    a("v_lshl_add_u32 v8, v4, 2, v6")
    a("v_and_b32 v9, 7, v8")
    a("v_lshlrev_b32 v9, 1, v9")
    a("v_lshrrev_b32 v10, 1, v7")
    a("v_xor_b32 v9, v9, v10")
    a("v_lshlrev_b32 v9, 4, v9")
    a("v_and_b32 v10, 1, v7")
    a("v_lshlrev_b32 v10, 3, v10")
    a("v_lshlrev_b32 v8, 8, v8")
    a("v_add3_u32 v9, v9, v10, v8")
    a(f"s_add_u32 s7, s6, {VR}")
    a("v_add_u32 v9, s7, v9")
    for dt in range(8):
        a(f"v_xor_b32 v{vVr+dt}, {dt << 5}, v9")
    a("v_lshl_add_u32 v8, v4, 3, v6")
    a("v_lshlrev_b32 v8, 8, v8")
    a("v_lshlrev_b32 v9, 2, v6")
    a("v_xor_b32 v9, v9, v7")
    a("v_lshlrev_b32 v9, 4, v9")
    a("v_add3_u32 v9, v9, v8, s7")
    for st in range(4):
        a(f"v_xor_b32 v{vWr+st}, {st << 6}, v9")
    a("v_lshrrev_b32 v8, 1, v3")
    a("v_xor_b32 v8, v8, v4")
    a("v_lshlrev_b32 v8, 4, v8")
    a("v_lshlrev_b32 v9, 7, v3")
    a(f"s_mul_i32 s7, {s(S_HALF)}, {80*128}")
    a(f"v_add3_u32 v{vXpat}, v8, v9, s7")
    a(f"v_xor_b32 v{vXpat+1}, 64, v{vXpat}")
    a("v_xor_b32 v8, v3, v4")
    a("v_lshlrev_b32 v8, 4, v8")
    a("v_lshl_add_u32 v8, v4, 8, v8")
    for j in range(4):
        a(f"v_xor_b32 v{vKd+j}, {j << 6}, v8")
    a("v_lshlrev_b32 v8, 1, v4")
    a("v_xor_b32 v8, v8, v3")
    a("v_lshlrev_b32 v8, 4, v8")
    a("v_lshl_add_u32 v8, v4, 8, v8")
    a(f"v_mov_b32 v{vVd}, v8")
    a(f"v_xor_b32 v{vVd+1}, {8 << 4}, v8")
    a(f"v_lshlrev_b32 v{vOst}, 4, v2")
    a(f"v_lshlrev_b32 v{vPfX}, 7, v2")
    a("v_lshrrev_b32 v8, 2, v2"); a("v_lshlrev_b32 v8, 13, v8"); a("v_and_b32 v9, 3, v2"); a("v_lshlrev_b32 v9, 7, v9")
    a(f"v_add_u32 v{vPfW}, v8, v9")
    a("v_mov_b32 v9, 0x7ff00000")
    a(f"v_add_u32 v8, 8192, v{vPfX}"); a("v_cmp_gt_u32 vcc, 36, v2"); a("s_nop 1"); a(f"v_cndmask_b32 v{vPfX2}, v9, v8, vcc")
    a(f"v_add_u32 v8, {16*8192}, v{vPfW}"); a("v_cmp_gt_u32 vcc, 16, v2"); a("s_nop 1"); a(f"v_cndmask_b32 v{vPfW2}, v9, v8, vcc")
    a(f"s_getreg_b32 {s(S_XCC)}, hwreg(HW_REG_XCC_ID)")
    a(f"s_and_b32 {s(S_XCC)}, {s(S_XCC)}, 7")
    if PACE:
        a("v_mov_b32 v5, 0"); a("v_mov_b32 v8, 1")
        a("v_lshlrev_b32 v6, 5, v2"); a("v_mov_b32 v9, 0x1000")
        a("v_cmp_gt_u32 vcc, 8, v2"); a("s_nop 1"); a("v_cndmask_b32 v6, v9, v6, vcc")
        a(f"s_lshl_b32 s6, {s(S_XCC)}, 5"); a("v_mov_b32 v7, s6")
        a("v_cmp_eq_u32 vcc, 0, v2"); a("s_nop 1"); a("v_cndmask_b32 v7, v9, v7, vcc")
    return L


def task_setup_q():
    o = []
    o.append(salu(f"s_mul_i32 {s(S_T0)}, {s(S_BQ)}, 160"))
    o.append(salu(f"s_mul_i32 {s(S_T1)}, {s(S_W)}, 40"))
    o.append(salu(f"s_add_u32 {s(S_T0)}, {s(S_T0)}, {s(S_T1)}"))
    o.append(salu(f"s_mul_i32 {s(S_XST)}, {s(S_T0)}, 1280"))
    o.append(salu(f"s_add_u32 {s(S_XEND)}, {s(S_XST)}, 1280"))
    o.append(salu(f"s_lshl_b32 {s(S_T0)}, {s(S_ROT)}, 6"))
    o.append(salu(f"s_add_u32 {s(S_XOFF)}, {s(S_XST)}, {s(S_T0)}"))
    o.append(salu(f"s_lshl_b32 {s(S_T0)}, {s(S_HALF)}, 17"))
    o.append(salu(f"s_lshl_b32 {s(S_T1)}, {s(S_H)}, 8"))
    o.append(salu(f"s_add_u32 {s(S_WQST)}, {s(S_T0)}, {s(S_T1)}"))
    o.append(salu(f"s_add_u32 {s(S_WQEND)}, {s(S_WQST)}, {640*8192}"))
    o.append(salu(f"s_lshl_b32 {s(S_T0)}, {s(S_ROT)}, 18"))
    o.append(salu(f"s_add_u32 {s(S_WQOFF)}, {s(S_WQST)}, {s(S_T0)}"))
    if PF:
        o.append(salu(f"s_mul_i32 {s(S_T0)}, {s(S_BQ)}, 160"))
        o.append(salu(f"s_mul_i32 {s(S_T1)}, {s(S_PAIR)}, 40"))
        o.append(salu(f"s_add_u32 {s(S_T0)}, {s(S_T0)}, {s(S_T1)}"))
        o.append(salu(f"s_mul_i32 {s(S_T0)}, {s(S_T0)}, 1280"))
        o.append(salu(f"s_mul_i32 {s(S_T1)}, {s(S_W)}, 12800"))
        o.append(salu(f"s_add_u32 {s(S_PFX)}, {s(S_T0)}, {s(S_T1)}"))
        o.append(salu(f"s_mul_i32 {s(S_T0)}, {s(S_B0)}, 80"))
        o.append(salu(f"s_mul_i32 {s(S_T1)}, {s(S_W)}, 20"))
        o.append(salu(f"s_add_u32 {s(S_T0)}, {s(S_T0)}, {s(S_T1)}"))
        o.append(salu(f"s_lshl_b32 {s(S_T0)}, {s(S_T0)}, 13"))
        o.append(salu(f"s_sub_u32 {s(S_T1)}, {s(S_H)}, {s(S_HSEL)}"))
        o.append(salu(f"s_lshl_b32 {s(S_T1)}, {s(S_T1)}, 8"))
        o.append(salu(f"s_add_u32 {s(S_PFW)}, {s(S_T0)}, {s(S_T1)}"))
    return o

def kv_stream(breg):
    o = []
    o.append(salu(f"s_lshl_b32 {s(S_T0)}, {s(breg)}, 5"))
    o.append(salu(f"s_add_u32 {s(S_T0)}, {s(S_T0)}, {s(S_H)}"))
    o.append(salu(f"s_lshl_b32 {s(S_HOFF)}, {s(S_T0)}, 18"))
    o.append(salu(f"s_add_u32 {s(sK+2)}, {s(S_HOFF)}, 262144"))
    o.append(salu(f"s_mov_b32 {s(sV+2)}, {s(sK+2)}"))
    o.append(salu(f"s_lshl_b32 {s(S_T0)}, {s(S_HALF)}, 12"))
    o.append(salu(f"s_add_u32 {s(S_KOFF)}, {s(S_HOFF)}, {s(S_T0)}"))
    o.append(salu(f"s_mov_b32 {s(S_VOFF)}, {s(S_KOFF)}"))
    return o

def kv_out(breg):
    o = []
    o.append(salu(f"s_lshl_b32 {s(S_T0)}, {s(S_T3)}, 4"))
    o.append(salu(f"s_add_u32 {s(S_T0)}, {s(S_T0)}, {s(breg)}"))
    o.append(salu(f"s_mul_i32 {s(S_T0)}, {s(S_T0)}, 10"))
    o.append(salu(f"s_mul_i32 {s(S_T1)}, {s(S_HALF)}, 5"))
    o.append(salu(f"s_add_u32 {s(S_T0)}, {s(S_T0)}, {s(S_T1)}"))
    o.append(salu(f"s_lshl_b32 {s(S_T0)}, {s(S_T0)}, 7"))
    o.append(salu(f"s_lshl_b32 {s(S_T1)}, {s(S_H)}, 2"))
    o.append(salu(f"s_add_u32 {s(S_T0)}, {s(S_T0)}, {s(S_T1)}"))
    o.append(salu(f"s_lshl_b32 {s(S_OOFF)}, {s(S_T0)}, 10"))
    return o

def q_stash(store):
    o = []
    o.append(salu(f"s_mov_b32 {s(S_T0)}, {s(S_QS)}"))
    for f in range(20):
        r = vQ + 4 * f
        off = f" offset:{1024 * (f % 4)}" if f % 4 else ""
        if store:
            o.append(I(f"buffer_store_dwordx4 v[{r}:{r+3}], v{vOst}, {srd(sO)}, {s(S_T0)} offen{off}", "vmem", regs("v", r, 4) + [f"v{vOst}"], [], tag=("qs", f)))
        else:
            o.append(I(f"buffer_load_dwordx4 v[{r}:{r+3}], v{vOst}, {srd(sO)}, {s(S_T0)} offen{off}", "vmem", [f"v{vOst}"], regs("v", r, 4), tag=("ql", f)))
        if f % 4 == 3 and f < 19:
            o.append(salu(f"s_add_u32 {s(S_T0)}, {s(S_T0)}, 4096"))
    return o


STAMP = False
def stamp(idx):
    if not STAMP: return []
    return ["    s_memtime s[74:75]", "    s_memrealtime s[76:77]", "    s_waitcnt lgkmcnt(0)",
            f"    s_lshl_b32 s78, {s(S_STK)}, 1",
            "    v_mbcnt_lo_u32_b32 v13, -1, 0", "    v_mbcnt_hi_u32_b32 v13, -1, v13",
            "    v_cmp_eq_u32 vcc, s78, v13", "    v_mov_b32 v14, s74", "    s_nop 1", "    v_cndmask_b32 v15, v15, v14, vcc",
            "    s_add_u32 s78, s78, 1",
            "    v_cmp_eq_u32 vcc, s78, v13", "    v_mov_b32 v14, s76", "    s_nop 1", "    v_cndmask_b32 v15, v15, v14, vcc",
            f"    v_cmp_eq_u32 vcc, {s(S_STK)}, v13", f"    v_mov_b32 v14, {idx}", "    s_nop 1", "    v_cndmask_b32 v11, v11, v14, vcc",
            f"    s_add_u32 {s(S_STK)}, {s(S_STK)}, 1"]

def same_text(a, b):
    return [x.text for x in a] == [x.text for x in b]


def process(named, name):
    tagged = []
    for nme, st in named:
        tagged.append(I(f"@@{nme}", "label"))
        tagged.extend(st)
    resolve_vm_waits(tagged, ignore=('pf', 'cv', 'next', 'qs', 'ql'))
    tagged = insert_lgkm_waits(tagged, lat=6)
    tagged, notes = check_hazards(tagged, name, fix=True)
    for e_ in notes[:40]:
        print("NOTE", e_, file=sys.stderr)
    errs = check_hazards(tagged, name)
    assert not errs, errs[:5]
    seg = {}
    cur = None
    for ins in tagged:
        if ins.kind == "label" and ins.text.startswith("@@"):
            cur = ins.text[2:]; seg[cur] = []
        else:
            seg[cur].append(ins)
    return seg

def with_nops(g):
    return g[:1] + [nop(0)] + g[1:]

def build_k1():
    import os
    lines = []
    pro = k1_prologue()
    isp = pro.index("@@SPLIT")
    lines += ["    " + x for x in pro[:isp]]
    pro2 = ["    " + x for x in pro[isp + 1:]]
    hookY = [salu(f"s_mov_b32 {s(S_BQ)}, {s(S_B8)}")] + task_setup_q() + q_groups_initial()
    hookX = kv_stream(S_B8) + q_stash(False)
    for kind, idx in (("K", 0), ("V", 0), ("V", 1), ("K", 1), ("V", 2), ("K", 2), ("K", 3)):
        hookX += with_nops(k_tile_dma(idx) if kind == "K" else v_tile_dma(idx))
    if XY:
        nxt = [raw(f"s_cmp_eq_u32 {s(S_ADONE)}, 1"), raw("s_cbranch_scc1 L1_hlast", "branch"),
               raw(f"s_cmp_eq_u32 {s(S_TYPE)}, 1"), raw("s_cbranch_scc1 L1_hX", "branch")] + hookY + \
              [raw("s_branch L1_hend", "branch"), label("L1_hX")] + hookX + [raw("s_branch L1_hend", "branch"), label("L1_hlast")] + \
              wo_convert_load() + [label("L1_hend")]
    else:
        nxt = [raw(f"s_cmp_eq_u32 {s(S_ADONE)}, 1"), raw("s_cbranch_scc1 L1_hlast", "branch")] + hookY + \
              [raw("s_branch L1_hend", "branch"), label("L1_hlast")] + wo_convert_load() + [label("L1_hend")]
    for x in nxt:
        if x.kind in ("dma", "vmem"): x.tag = ("next", x.tag)
    qpre, qch = q_phase(False)
    apre, aep = a_phase(nxt)
    mid = [lgkm0(), vmwait([("K", 0)]), barrier()] + with_nops(k_tile_dma(2)) + with_nops(k_tile_dma(3))
    named = [("setup_q", task_setup_q()), ("init", q_groups_initial(first=True)), ("qpre", qpre)]
    named += [(f"q{c}", qch[c]) for c in range(16)]
    named += [("kvset", kv_stream(S_BA) + kv_out(S_BA))]
    named += [(f"q{c}", qch[c]) for c in range(16, 20)]
    named += [("mid", mid), ("apre", apre), ("conv", [nop(7)] + q_convert())]
    named += [(f"e{e}", aep[e]) for e in range(33)]
    named += [("epi1", [nop(7)] + o_epilogue() + range_flag()), ("epi2", o_store()), ("chk", range_check())]
    seg = process(named, "k1")
    segF = process([("fb0", [nop(7)])] + fallback() + [("fb_end", [nop(7)])], "k1F")
    qpreS, qchS = q_phase(True)
    g0 = x_dma(0, set_m0(S_XW0, 2 * XSLOT), tg="x2")
    midS = [lgkm0(), barrier(), g0[0], nop(0)] + g0[1:6] + [nop(0), g0[6]] + \
           [salu(f"s_add_u32 {s(S_XOFF)}, {s(S_XOFF)}, 256"),
            salu(f"s_add_u32 {s(S_XWR)}, {s(S_XW0)}, {1*XSLOT}"), salu(f"s_mov_b32 {s(S_XRD)}, {2*XSLOT}")]
    namedS = [("setup_q", task_setup_q()), ("init", q_groups_initial(first=True)), ("qpre", qpreS)]
    namedS += [(f"q{c}", qchS[c]) for c in range(20)]
    namedS += [("midS", midS), ("convS", [nop(7)] + q_convert()), ("stash", q_stash(True))]
    segS = process(namedS, "k1S")
    for c in range(16):
        assert same_text(seg[f"q{c}"], segS[f"q{c}"]), f"stash flow differs in chunk {c}"
    DBG = os.environ.get("K1DBG", "")
    if DBG:
        def filt(st, pre):
            o = []
            for x in st:
                tg = x.tag[0] if isinstance(x.tag, tuple) else None
                if pre + 'l' in DBG and x.kind == 'lds': continue
                if pre + 'x' in DBG and x.kind == 'dma' and tg == 'x': continue
                if pre + 'w' in DBG and x.kind == 'dma' and tg == 'wq': continue
                if pre + 'k' in DBG and x.kind == 'dma' and tg in ('kq', 'K'): continue
                if pre + 'v' in DBG and x.kind == 'dma' and tg == 'V': continue
                if pre + 'b' in DBG and x.kind == 'barrier': continue
                if pre + 'm' in DBG and x.kind == 'mfma': continue
                if pre + 'e' in DBG and x.kind in ('valu', 'trans'): continue
                if pre + 'W' in DBG and x.kind == 'wait' and 'vmcnt' in x.text: continue
                o.append(x)
            return o
        for k in list(seg.keys()):
            if k[0] == 'q' and k[1:].isdigit(): seg[k] = filt(seg[k], 'q')
            if k[0] == 'e' and k[1:].isdigit(): seg[k] = filt(seg[k], 'a')
    def cat(names, sg=None): return [x for n in names for x in (sg or seg)[n]]
    qloop = cat([f"q{c}" for c in range(4, 8)])
    for it in range(2, 4):
        assert same_text(qloop, cat([f"q{c}" for c in range(4 * it, 4 * it + 4)])), f"Q loop iteration {it} differs"
    aloop = cat([f"e{e}" for e in range(2, 6)])
    for it in range(1, 7):
        other = cat([f"e{e}" for e in range(2 + 4 * it, 6 + 4 * it)])
        assert same_text(aloop, other), f"A loop iteration {it} differs"
    E = lambda st: emit(st)
    A_ = lambda *x: lines.extend(["    " + t for t in x])
    A_(f"s_mov_b32 {s(S_STK)}, 0")
    lines += stamp(6)
    lines += E(seg["setup_q"]) + E(seg["init"])
    lines += pro2
    lines.append("L1_q:")
    lines += stamp(0)
    lines += E(seg["qpre"])
    lines += E(cat(["q0", "q1", "q2", "q3"]))
    A_(f"s_mov_b32 {s(S_CNT)}, 3")
    lines.append(".p2align 6")
    lines.append("L1_qloop:")
    lines += E(qloop)
    A_(f"s_sub_u32 {s(S_CNT)}, {s(S_CNT)}, 1", f"s_cmp_lg_u32 {s(S_CNT)}, 0", "s_cbranch_scc1 L1_qloop")
    if XY: A_(f"s_cmp_eq_u32 {s(S_PASS)}, 1", "s_cbranch_scc1 L1_qS")
    lines += E(seg["kvset"])
    lines += E(cat(["q16", "q17", "q18", "q19"]))
    lines += stamp(1)
    lines += E(seg["mid"]) + E(seg["apre"]) + E(seg["conv"])
    lines.append("L1_a:")
    lines += stamp(2)
    if WIN is not None and WINPAR is not None:
        A_(f"s_and_b32 {s(S_PT0)}, {s(S_XCC)}, 1", f"s_cmp_eq_u32 {s(S_PT0)}, {WINPAR}", "s_cselect_b64 vcc, -1, 0")
    lines += E(cat(["e0", "e1"]))
    A_(f"s_mov_b32 {s(S_CNT)}, 7")
    lines.append(".p2align 6")
    lines.append("L1_aloop:")
    lines += E(aloop)
    lines += pace_code()
    A_(f"s_sub_u32 {s(S_CNT)}, {s(S_CNT)}, 1", f"s_cmp_lg_u32 {s(S_CNT)}, 0", "s_cbranch_scc1 L1_aloop")
    lines += stamp(3)
    lines += E(cat(["e30", "e31", "e32"]))
    lines += stamp(4)
    A_(f"s_mov_b32 {s(S_FB)}, 0")
    lines.append("L1_epi:")
    lines += E(seg["epi1"]) + E(seg["epi2"]) + E(seg["chk"])
    A_(f"s_cmp_eq_u32 {s(S_T0)}, 0", "s_cbranch_scc1 L1_ok", f"s_cmp_eq_u32 {s(S_FB)}, 0", "s_cbranch_scc1 L1_fallback")
    lines.append("L1_ok:")
    lines += stamp(5)
    A_(f"s_cmp_eq_u32 {s(S_ADONE)}, 1", "s_cbranch_scc1 L1_fin",
       f"s_mov_b32 {s(S_ADONE)}, 1", f"s_mov_b32 {s(S_BA)}, {s(S_B8)}")
    if not XY:
        A_("s_branch L1_q")
    else:
        A_(f"s_cmp_eq_u32 {s(S_TYPE)}, 0", "s_cbranch_scc1 L1_q")
        lines += E(kv_out(S_BA))
        A_("s_waitcnt vmcnt(44)", "s_barrier")
        lines += E(seg["apre"])
        A_("s_branch L1_a")
        lines.append("L1_qS:")
        lines += E(cat(["q16", "q17", "q18", "q19"], segS))
        lines += stamp(7)
        lines += E(segS["midS"]) + E(segS["convS"]) + E(segS["stash"])
        A_(f"s_mov_b32 {s(S_PASS)}, 0", "s_branch L1_q")
    lines.append("L1_fallback:")
    A_(f"s_mov_b32 {s(S_FB)}, 1")
    lines += E(segF["fb0"]) + E(segF["fb_pre"])
    lines.append("L1_fb1:")
    lines += E(segF["fb_p1"])
    A_(f"s_sub_u32 {s(S_CNT)}, {s(S_CNT)}, 1", f"s_cmp_lg_u32 {s(S_CNT)}, 0", "s_cbranch_scc1 L1_fb1")
    lines += E(segF["fb_mid"])
    lines.append("L1_fb2:")
    lines += E(segF["fb_p2"])
    A_(f"s_sub_u32 {s(S_CNT)}, {s(S_CNT)}, 1", f"s_cmp_lg_u32 {s(S_CNT)}, 0", "s_cbranch_scc1 L1_fb2")
    lines += E(segF["fb_end"])
    A_("s_branch L1_epi")
    lines.append("L1_fin:")
    lines += E(insert_lgkm_waits(wo_convert_store(20)))
    lines += stamp(8)
    if STAMP:
        lines += [f"    s_cmp_lg_u32 {s(S_W)}, 0", "    s_cbranch_scc1 L1_done",
                  f"    s_lshl_b32 s78, s2, 9", f"    s_add_u32 s78, s78, {STAMP_BASE}",
                  "    v_mbcnt_lo_u32_b32 v14, -1, 0", "    v_mbcnt_hi_u32_b32 v14, -1, v14", "    v_lshlrev_b32 v14, 2, v14",
                  f"    buffer_store_dword v15, v14, {srd(sO)}, s78 offen", f"    buffer_store_dword v11, v14, {srd(sO)}, s78 offen offset:256", "    s_waitcnt vmcnt(0)"]
    lines.append("L1_done:")
    lines.append("    s_endpgm")
    return lines


def kernel_desc(name, vgpr, accum, sgpr=102):
    return [f".amdhsa_kernel {name}",
            f"  .amdhsa_next_free_vgpr {vgpr}", f"  .amdhsa_next_free_sgpr {sgpr}", f"  .amdhsa_accum_offset {accum}",
            "  .amdhsa_group_segment_fixed_size 0", "  .amdhsa_kernarg_size 104",
            "  .amdhsa_user_sgpr_count 2", "  .amdhsa_user_sgpr_kernarg_segment_ptr 1",
            "  .amdhsa_system_sgpr_workgroup_id_x 1", "  .amdhsa_float_denorm_mode_32 3", ".end_amdhsa_kernel"]


HEADER = open("cdna_kernels/" + NAME + ".s.ref").read().split("; Override launch")[0]

def build(only=None):
    if os.environ.get("K2V", "2") == "3":
        from gen_k3 import build_k3 as build_k2, LDS3 as LDS2
        K2REGS = (512, 256)
    else:
        from gen_k2 import build_k2, LDS2
        K2REGS = (336, 232)
    out = [HEADER.rstrip("\n")]
    if only != "k2":
        out.append(f"; @launch kernel={K1} grid=(256,1,1) block=(256,1,1) lds={LDS1}")
    if only != "k1":
        out.append(f"; @launch kernel={K2} grid=(256,1,1) block=(256,1,1) lds={LDS2}")
    out += [
        "; Kernel 1 (persistent, 256 workgroups x 4 waves, 2 tasks each; task = one batch, two heads):",
        ";   Q = x*wq (bf16 MFMA 16x16x32, scaled by log2(e)/sqrt(128)), S^T = K Q^T, P = 2^S, O^T = V^T P^T,",
        ";   K/V/x/wq streamed through LDS rings by LDS-DMA; O is written to d_ws in MFMA fragment order.",
        ";   Softmax guard: exp2 runs on the raw scaled scores (stand-in max 0); every row sum is range checked",
        ";   ([2^-14, 2^20], NaN fails) and a workgroup with any row outside recomputes its task with the true row",
        ";   maximum (two-pass path at L1_fallback).  Kernel 1 also re-lays wo out in fragment order in d_ws.",
        "; Kernel 2: out = O * wo, 160 x 80 tiles, one per workgroup.",
        "; Generated by the author's own Python generator (static modulo schedule)."]
    out.append('.amdgcn_target "amdgcn-amd-amdhsa--gfx950"')
    out.append(".text")
    for nm, body in ((K1, build_k1()), (K2, build_k2())):
        out += [f".globl {nm}", ".p2align 8", f".type {nm},@function", f"{nm}:"]
        out += body
    out += ['.section .rodata,"a"', ".p2align 6"]
    out += kernel_desc(K1, 512, 256)
    out += [".p2align 6"]
    out += kernel_desc(K2, *K2REGS)
    return "\n".join(out) + "\n"

if __name__ == "__main__":
    if "--map2" in sys.argv:
        MAP2 = True; sys.argv.remove("--map2")
    if "--noxy" in sys.argv:
        XY = False; sys.argv.remove("--noxy")
    if "--xy" in sys.argv:
        XY = True; sys.argv.remove("--xy")
    if "--pf1" in sys.argv:
        PF1 = True; sys.argv.remove("--pf1")
    if "--nowin" in sys.argv:
        WIN = None; sys.argv.remove("--nowin")
    if "--pace" in sys.argv:
        PACE = True; sys.argv.remove("--pace")
    for a_ in list(sys.argv):
        if a_.startswith("--winpar="):
            WINPAR = int(a_.split("=")[1]); sys.argv.remove(a_); continue
        if a_.startswith("--win2="):
            WIN2 = int(a_.split("=")[1]); sys.argv.remove(a_); continue
        if a_.startswith("--win="):
            WIN = int(a_.split("=")[1]); sys.argv.remove(a_)
    if "--nopace" in sys.argv:
        PACE = False; sys.argv.remove("--nopace")
    for a_ in list(sys.argv):
        if a_.startswith("--delta="):
            PACE_DELTA = int(a_.split("=")[1]); sys.argv.remove(a_)
        if a_.startswith("--spins="):
            PACE_SPINS = int(a_.split("=")[1]); sys.argv.remove(a_)
    if "--nopf" in sys.argv:
        PF = False; sys.argv.remove("--nopf")
    for o_ in ("odd", "even", "slot", "all"):
        if "--x" + o_ in sys.argv:
            XSEL = o_; sys.argv.remove("--x" + o_)
    if "--pf" in sys.argv:
        PF = True; sys.argv.remove("--pf")
    if "--norot" in sys.argv:
        ROT = False; sys.argv.remove("--norot")
    if "--stamp" in sys.argv:
        STAMP = True; sys.argv.remove("--stamp")
    only = None
    for o_ in ("k1", "k2"):
        if "--" + o_ in sys.argv:
            only = o_; sys.argv.remove("--" + o_)
    txt = build(only)
    path = sys.argv[1] if len(sys.argv) > 1 else "cdna_kernels/" + NAME + ".s"
    open(path, "w").write(txt)
    print("wrote", path, len(txt), "bytes")
```
